```python
import torch

def _softmax(x, axis=-1):
    return torch.softmax(x, dim=axis)
def _gelu(x):
    return torch.nn.functional.gelu(x, approximate="tanh")
def _silu(x):
    return torch.nn.functional.silu(x)
def _sigmoid(x):
    return torch.sigmoid(x)
def _layernorm(x, axis=-1, eps=1e-5):
    m = x.mean(dim=axis, keepdim=True)
    v = x.var(dim=axis, keepdim=True, unbiased=False)
    return (x - m) / torch.sqrt(v + eps)
def _scatter_add(tgt, idx, src, axis=0):
    return tgt.clone().index_add_(axis, idx, src)
def _segment_sum(src, seg, n):
    out = torch.zeros((n,) + src.shape[1:], dtype=src.dtype)
    return out.index_add_(0, seg, src)
def _pad(x, pw):
    flat = tuple(v for pair in reversed(pw) for v in pair)
    return torch.nn.functional.pad(x, flat)

kernel_name = 'gated_mix__sliding_local_dilated__dense_activation_mish__prompt'

def setup_inputs():

    _w = (lambda a: (lambda t: t.to(torch.bfloat16) if t.is_floating_point() else t)(torch.as_tensor(a)))
    def _A_setup():
        B, S, D = 1, 2048, 640
        return {
            "x": _w((lambda *s: torch.randn(*s, dtype=torch.bfloat16) * 0.05)(B, S, D)),
            "wqkv": _w((lambda *s: torch.randn(*s, dtype=torch.bfloat16) * 0.8)(D, 3 * D)),
            "wo": _w((lambda *s: torch.randn(*s, dtype=torch.bfloat16) * 0.05)(D, D)),
        }
    _A_in = _A_setup()

    def _B_setup():
        B, S, D, F = 1, 2048, 640, 1728
        return {
            "x": _w((lambda *s: torch.randn(*s, dtype=torch.bfloat16) * 0.05)(B, S, D)),
            "w1": _w((lambda *s: torch.randn(*s, dtype=torch.bfloat16) * 12.8)(D, F) * (D ** -0.5)),
            "b1": _w((lambda *s: torch.randn(*s, dtype=torch.bfloat16) * 0.8)(F)),
            "w2": _w((lambda *s: torch.randn(*s, dtype=torch.bfloat16) * 0.8)(F, D) * (F ** -0.5)),
        }
    _B_in = _B_setup()

    return {
        "A_x": _A_in["x"],
        "A_wqkv": _A_in["wqkv"],
        "A_wo": _A_in["wo"],
        "B_x": _B_in["x"],
        "B_w1": _B_in["w1"],
        "B_b1": _B_in["b1"],
        "B_w2": _B_in["w2"],
        "gate_w": _w((lambda *s: torch.randn(*s, dtype=torch.bfloat16) * 0.05)(640) * 16.0),
    }

def reference(A_x, A_wqkv, A_wo, B_x, B_w1, B_b1, B_w2, gate_w):
    def _A_ref(x, wqkv, wo):
        B, S, D = x.shape
        H = 32; Dh = D // H
        W, dil = 8, 2
        qkv = (lambda x, *d: x.permute(*d))((x @ wqkv).reshape(B, S, 3, H, Dh), 2, 0, 3, 1, 4)
        q, k, v = qkv[0], qkv[1], qkv[2]
        scale = Dh ** -0.5
        pos = torch.arange(S)
        off = torch.arange(W) * dil
        idx = pos[:, None] - off[None, :]
        mask = idx >= 0
        idx_c = torch.where(mask, idx, 0).reshape(-1)
        kg = k[:, :, idx_c, :].reshape(B, H, S, W, Dh)
        vg = v[:, :, idx_c, :].reshape(B, H, S, W, Dh)
        logits = torch.einsum("bhsd,bhswd->bhsw", q, kg) * scale
        logits = torch.where(mask[None, None, :, :], logits, -1e9)
        attn = _softmax(logits, axis=-1)
        o = torch.einsum("bhsw,bhswd->bhsd", attn, vg)
        return (lambda x, *d: x.permute(*d))(o, 0, 2, 1, 3).reshape(B, S, D) @ wo

    def _B_ref(x, w1, b1, w2):
        h = torch.einsum("bsd,df->bsf", x, w1) + b1
        sp = torch.log1p(torch.exp(-torch.abs(h))) + torch.where(h > 0, h, torch.zeros_like(h))
        act = h * torch.tanh(sp)
        return torch.einsum("bsf,fd->bsd", act, w2)

    x = A_x
    g = _sigmoid((x * gate_w).sum(-1, keepdims=True))
    a = _A_ref(x, A_wqkv, A_wo)
    b = _B_ref(x, B_w1, B_b1, B_w2)
    return g * a + (1 - g) * b
```

```python
import re

TRANS = ("v_exp_f32", "v_log_f32", "v_rcp_f32", "v_rsq_f32", "v_sqrt_f32", "v_sin_f32", "v_cos_f32",
         "v_rcp_iflag_f32")

_reg_re = re.compile(r"(?<![\w.])(-?\|?)(abs\()?([vas])(?:(\d+)|\[(\d+):(\d+)\])")


def regs_of(tok):
    out = set()
    tok = tok.strip()
    if tok in ("vcc", "vcc_lo", "vcc_hi"):
        return {("vcc", 0)}
    if tok == "m0":
        return {("m0", 0)}
    if tok in ("exec", "exec_lo", "exec_hi"):
        return {("exec", 0)}
    if tok == "scc":
        return {("scc", 0)}
    for m in _reg_re.finditer(tok):
        f = m.group(3)
        if m.group(4) is not None:
            out.add((f, int(m.group(4))))
        else:
            for i in range(int(m.group(5)), int(m.group(6)) + 1):
                out.add((f, i))
    return out


class Ins:
    def __init__(self, text):
        self.text = text
        t = text.split(";")[0].strip()
        self.label = t.endswith(":")
        self.op = t.split()[0] if t and not self.label else ""
        rest = t[len(self.op):].strip() if not self.label else ""
        ops, depth, cur = [], 0, ""
        for ch in rest:
            if ch in "[(":
                depth += 1
            if ch in "])":
                depth -= 1
            if ch == "," and depth == 0:
                ops.append(cur.strip()); cur = ""
            else:
                cur += ch
        if cur.strip():
            ops.append(cur.strip())
        self.mods = ""
        if ops:
            parts = ops[-1].split()
            if len(parts) > 1:
                ops[-1] = parts[0]
                self.mods = " ".join(parts[1:])
        self.ops = ops
        op = self.op
        self.kind = "other"
        self.wr, self.rd = set(), set()
        self.srcc = set(); self.srcab = set()
        self.nstates = 1
        if op == "s_nop":
            self.kind = "nop"; self.nstates = int(ops[0], 0) + 1
        elif op.startswith("v_mfma"):
            self.kind = "mfma"
            self.wr = regs_of(ops[0]); self.srcab = regs_of(ops[1]) | regs_of(ops[2]); self.srcc = regs_of(ops[3])
            self.rd = self.srcab | self.srcc
            self.passes = 8 if "32x32" in op else 4
        elif op.startswith("v_"):
            self.kind = "valu"
            if op.startswith("v_permlane"):
                self.wr = regs_of(ops[0]) | regs_of(ops[1]); self.rd = set(self.wr)
            elif op.startswith("v_cmp"):
                self.wr = regs_of(ops[0])
                for o in ops[1:]: self.rd |= regs_of(o)
            elif op.startswith(("v_add_co", "v_sub_co", "v_addc_co", "v_subb_co", "v_subrev_co")):
                self.wr = regs_of(ops[0]) | regs_of(ops[1])
                for o in ops[2:]: self.rd |= regs_of(o)
            else:
                self.wr = regs_of(ops[0])
                for o in ops[1:]: self.rd |= regs_of(o)
                if op.startswith(("v_fmac", "v_pk_fmac", "v_dot2c", "v_fmaak", "v_fmamk")) and op.startswith(("v_fmac", "v_pk_fmac", "v_dot2c")):
                    self.rd |= self.wr
                if op.startswith("v_cndmask") and len(ops) == 3:
                    self.rd |= {("vcc", 0)}
            self.trans = op.replace("_e32", "").replace("_e64", "") in TRANS
            self.dpp = ("row_" in self.mods) or ("quad_perm" in self.mods) or ("wave_" in self.mods) or ("row_" in text)
        elif op.startswith("ds_"):
            self.kind = "ds"
            if op.startswith(("ds_read", "ds_bpermute", "ds_permute", "ds_swizzle")):
                self.wr = regs_of(ops[0])
                for o in ops[1:]: self.rd |= regs_of(o)
            else:
                for o in ops: self.rd |= regs_of(o)
        elif op.startswith(("buffer_", "global_", "flat_")):
            self.kind = "vmem"
            self.lds = " lds" in (" " + self.mods) or "_lds_" in op
            if ("load" in op) and not self.lds:
                self.wr = regs_of(ops[0])
                for o in ops[1:]: self.rd |= regs_of(o)
            else:
                for o in ops: self.rd |= regs_of(o)
            self.widestore = ("store" in op) and op.endswith(("x3", "x4"))
            self.storedata = set()
            if self.widestore:
                self.storedata = regs_of(ops[0]) if op.startswith("buffer_") else regs_of(ops[1])
        elif op.startswith("s_"):
            self.kind = "salu"
            if op.startswith(("s_cmp", "s_waitcnt", "s_barrier", "s_branch", "s_cbranch", "s_endpgm", "s_setprio", "s_sleep")):
                for o in ops: self.rd |= regs_of(o)
            else:
                if ops:
                    self.wr = regs_of(ops[0])
                for o in ops[1:]: self.rd |= regs_of(o)


def need(prev, cur):
    n = 0
    if prev.kind == "valu":
        vw = {r for r in prev.wr if r[0] in "va" and r[0] != "vcc"}
        sw = {r for r in prev.wr if r[0] in ("s", "vcc")}
        if cur.kind == "mfma" and (vw & cur.rd):
            n = max(n, 2)
        if cur.kind == "valu":
            if prev.trans and (vw & cur.rd) and not cur.trans:
                n = max(n, 1)
            if prev.trans and (vw & cur.rd):
                n = max(n, 1)
            if sw & cur.rd:
                n = max(n, 4 if cur.op.startswith(("v_readlane", "v_writelane")) else 2)
            if cur.op.startswith(("v_readfirstlane", "v_readlane")) and (vw & cur.rd):
                n = max(n, 1)
            if cur.op.startswith("v_permlane") and (vw & cur.rd):
                n = max(n, 2)
            if cur.dpp and (vw & cur.rd):
                n = max(n, 2)
        if cur.kind == "vmem" and (sw & cur.rd):
            n = max(n, 5)
        if cur.kind == "salu" and (sw & cur.rd):
            n = max(n, 2)
        if ("exec", 0) in prev.wr and cur.kind in ("mfma", "valu"):
            n = max(n, 5)
    if prev.kind == "mfma":
        p4 = prev.passes == 4
        if cur.kind == "mfma":
            if prev.wr & cur.srcab:
                n = max(n, 8 if p4 else 12)
            if prev.wr & cur.srcc:
                if prev.wr == cur.srcc and prev.passes == cur.passes:
                    pass
                else:
                    n = max(n, 6 if p4 else 10)
            elif prev.wr & cur.wr:
                n = max(n, 8 if p4 else 12)
        elif cur.kind in ("valu", "ds", "vmem"):
            if prev.wr & (cur.rd | cur.wr):
                n = max(n, 8 if p4 else 12)
            if cur.kind == "valu" and (prev.srcc & cur.wr):
                n = max(n, 3 if p4 else 7)
    if prev.kind == "salu":
        if ("m0", 0) in prev.wr and cur.kind == "vmem" and cur.lds:
            n = max(n, 1)
        if ("exec", 0) in prev.wr and cur.kind == "valu" and cur.dpp:
            n = max(n, 2)
    if prev.kind == "vmem" and prev.widestore and (prev.storedata & cur.wr):
        n = max(n, 2)
    return n


class Asm:
    def __init__(self):
        self.lines = []

    def __call__(self, text):
        for ln in text.strip("\n").split("\n"):
            ln = ln.strip()
            if not ln:
                continue
            if ln.startswith((".", ";")):
                self.lines.append(ln)
            else:
                self.lines.append(Ins(ln))

    def raw(self, text):
        self.lines.append(text)

    def finish(self):
        out = []
        hist = []
        for ln in self.lines:
            if isinstance(ln, str):
                out.append(ln); continue
            if ln.label:
                out.append(ln.text); continue
            req = 0
            dist = 0
            for p in reversed(hist[-24:]):
                r = need(p, ln)
                if r - dist > req:
                    req = r - dist
                dist += p.nstates
                if dist >= 20:
                    break
            while req > 0:
                k = min(req, 16)
                nop = Ins("s_nop %d" % (k - 1))
                out.append("    " + nop.text); hist.append(nop)
                req -= k
            out.append("    " + ln.text)
            hist.append(ln)
        return "\n".join(out) + "\n"
```

```python
from asmlib import Asm
from gen_p2 import WS_ACT, WS_WF, WS_G, WS_SIZE, WS_STAMP

P1_LDS = 160 * 1024
STAGE = 49152
XREG = 18432
WROW = 480
RL_BASE = 3 * STAGE
RSQ = 488
LOG2E = 0x3fb8aa3b
SCALE = 0x3e64f92e

ACC = 0
F0 = 72
F1 = 108
VDMA = 144
VXA = 150
VXH = 152
VW = 154
VLANE16 = 155
VBIAS = 156
VBRAW = 172
VG = 180
VGX = 181
VT = 192
VL = 191


def xfrag(fs, i):
    b = fs + 4 * i
    return b
def wfrag(fs, j):
    return fs + 20 + 4 * j
def R(b, n=4):
    return "v[%d:%d]" % (b, b + n - 1)


def gen_p1(A, name="p1_kernel", stamp=False):
    A(f"""
.text
.globl {name}
.p2align 8
.type {name},@function
{name}:
    s_cmp_ge_u32 s2, 256
    s_cbranch_scc1 {name}_exit
    """)
    if stamp:
        A("s_memrealtime s[80:81]")
        A("s_memtime s[92:93]")
    A(f"""
    s_load_dwordx4 s[4:7], s[0:1], 0
    s_load_dwordx2 s[8:9], s[0:1], 16
    s_load_dwordx2 s[10:11], s[0:1], 80
    s_load_dwordx4 s[12:15], s[0:1], 32
    s_load_dwordx4 s[16:19], s[0:1], 48
    v_lshrrev_b32 v1, 6, v0
    v_and_b32 v{VL}, 63, v0
    v_readfirstlane_b32 s50, v1
    v_lshlrev_b32 v{VLANE16}, 4, v{VL}
    s_and_b32 s60, s2, 7
    s_lshr_b32 s61, s2, 3
    s_and_b32 s62, s60, 1
    s_lshl_b32 s62, s62, 3
    s_and_b32 s63, s61, 7
    s_add_u32 s54, s62, s63            ; s54 = mt (0..15)
    s_lshl_b32 s52, s54, 7             ; s52 = m0
    s_lshr_b32 s62, s60, 1             ; cq
    s_lshr_b32 s63, s61, 3             ; cl
    s_lshr_b32 s51, s63, 1             ; s51 = type (0=A,1=B)
    s_and_b32 s63, s63, 1
    s_lshl_b32 s62, s62, 1
    s_add_u32 s53, s62, s63
    s_mul_i32 s55, s53, 14
    s_lshr_b32 s62, s53, 2
    s_lshl_b32 s62, s62, 1
    s_sub_u32 s55, s55, s62
    s_and_b32 s62, s53, 3
    s_cmp_eq_u32 s62, 3
    s_cselect_b32 s56, 1, 0
    s_and_b32 s57, s50, 1              ; s57 = mh
    s_lshr_b32 s58, s50, 1             ; s58 = ng
    s_mov_b32 s64, 3456
    s_cmp_eq_u32 s51, 0
    s_cselect_b32 s64, 3840, s64
    s_cselect_b32 s65, 1120, 0
    s_mul_i32 s62, s53, 160
    s_mul_i32 s63, s55, 32
    s_cselect_b32 s66, s62, s63
    s_lshl_b32 s62, s56, 2
    s_sub_u32 s62, 28, s62
    s_cmp_eq_u32 s51, 0
    s_cselect_b32 s67, 30, s62
    s_waitcnt lgkmcnt(0)
    ; SRDs
    s_mov_b32 s28, s10
    s_and_b32 s29, s11, 0xffff
    s_mov_b32 s30, {WS_SIZE}
    s_mov_b32 s31, 0x20000
    s_mov_b32 s36, s4
    s_and_b32 s37, s5, 0xffff
    s_mov_b32 s38, 2621440
    s_mov_b32 s39, 0x20000
    s_mov_b32 s40, s18
    s_and_b32 s41, s19, 0xffff
    s_mov_b32 s42, 1280
    s_mov_b32 s43, 0x20000
    s_mov_b32 s44, s14
    s_and_b32 s45, s15, 0xffff
    s_mov_b32 s46, 3456
    s_mov_b32 s47, 0x20000
    s_mov_b32 s26, 2211840
    s_cmp_eq_u32 s51, 0
    s_cselect_b32 s24, s6, s12
    s_cselect_b32 s25, s7, s13
    s_cselect_b32 s26, 2457600, s26
    s_lshl_b32 s68, s64, 6
    s_cmp_lt_u32 s50, 3
    s_cselect_b32 s24, s4, s24
    s_cselect_b32 s25, s5, s25
    s_cselect_b32 s26, 2621440, s26
    s_cselect_b32 s68, 128, s68
    s_and_b32 s25, s25, 0xffff
    s_mov_b32 s27, 0x20000
    """)
    A(f"""
    s_lshl_b32 s60, s2, 3
    s_add_u32 s60, s60, s50
    s_mul_i32 s61, s60, 1280
    v_lshlrev_b32 v{VT}, 2, v{VL}
    """)
    for i in range(5):
        A(f"buffer_load_dword v{VGX+i}, v{VT}, s[36:39], s61 offen offset:{i*256}")
    for i in range(5):
        A(f"buffer_load_dword v{VGX+5+i}, v{VT}, s[40:43], 0 offen offset:{i*256}")
    A(f"""
    s_cmp_lt_u32 s50, 3
    s_cbranch_scc0 {name}_woff
    """)
    A(f"""
    v_lshrrev_b32 v{VT}, 3, v{VL}          ; l>>3
    v_and_b32 v{VT+1}, 7, v{VL}            ; p
    v_lshrrev_b32 v{VT+2}, 4, v{VL}        ; l>>4
    s_mul_i32 s60, s50, 48                 ; q*8 for i=0 (q = 6w)
    s_sub_u32 s61, s52, 16
    s_add_u32 s61, s61, s60                ; m0-16+q*8
    s_mul_i32 s62, s50, 24                 ; q*4
    s_lshl_b32 s63, s51, 4
    s_cmp_eq_u32 s52, 0
    s_cselect_b32 s63, 16, s63
    s_mov_b32 s69, 0x80000000
    """)
    for i in range(6):
        A(f"""
        v_add_u32 v{VT+3}, s62, v{VT+2}
        v_add_u32 v{VT+3}, {4*i}, v{VT+3}
        v_and_b32 v{VT+3}, 7, v{VT+3}
        v_xor_b32 v{VT+3}, v{VT+3}, v{VT+1}          ; c
        v_add_u32 v{VT+4}, s61, v{VT}
        v_add_u32 v{VT+4}, {8*i}, v{VT+4}
        v_mul_u32_u24 v{VT+5}, 1280, v{VT+4}
        v_lshl_add_u32 v{VT+5}, v{VT+3}, 4, v{VT+5}
        v_add_u32 v{VT+6}, s60, v{VT}
        v_add_u32 v{VT+6}, {8*i}, v{VT+6}
        v_cmp_gt_u32 vcc, s63, v{VT+6}
        v_mov_b32 v{VT+7}, s69
        v_cndmask_b32 v{VDMA+i}, v{VT+5}, v{VT+7}, vcc
        """)
    A(f"s_branch {name}_offdone")
    A(f"{name}_woff:")
    A(f"""
    s_mul_i32 s60, s50, 384
    s_sub_u32 s60, s60, 1152               ; (6w-18)*64
    s_mov_b32 s69, 0x80000000
    v_add_u32 v{VT}, s60, v{VL}
    """)
    for i in range(6):
        A(f"""
        v_add_u32 v{VT+1}, {64*i}, v{VT}             ; cw
        v_mul_u32_u24 v{VT+2}, 2185, v{VT+1}
        v_lshrrev_b32 v{VT+2}, 16, v{VT+2}           ; slot
        v_mul_u32_u24 v{VT+3}, 30, v{VT+2}
        v_sub_u32 v{VT+3}, v{VT+1}, v{VT+3}          ; cc
        v_and_b32 v{VT+4}, 0x33, v{VT+2}
        v_and_b32 v{VT+5}, 4, v{VT+2}
        v_lshl_or_b32 v{VT+4}, v{VT+5}, 1, v{VT+4}
        v_and_b32 v{VT+5}, 8, v{VT+2}
        v_lshrrev_b32 v{VT+5}, 1, v{VT+5}
        v_or_b32 v{VT+4}, v{VT+4}, v{VT+5}           ; krow
        v_mul_u32_u24 v{VT+5}, 205, v{VT+3}
        v_lshrrev_b32 v{VT+5}, 11, v{VT+5}           ; seg
        v_mul_lo_u32 v{VT+4}, v{VT+4}, s64
        v_mul_lo_u32 v{VT+5}, v{VT+5}, s65
        v_add3_u32 v{VT+4}, v{VT+4}, v{VT+5}, s66
        v_lshl_add_u32 v{VT+4}, v{VT+3}, 4, v{VT+4}
        v_cmp_le_u32 vcc, s67, v{VT+3}
        v_mov_b32 v{VT+7}, s69
        v_cndmask_b32 v{VDMA+i}, v{VT+4}, v{VT+7}, vcc
        """)
    A(f"{name}_offdone:")
    A(f"""
    s_mov_b32 s70, 0
    s_mul_i32 s71, s50, 6144
    """)

    def dma_stage(base_sgpr, extra):
        out = []
        for i in range(6):
            out.append([f"s_add_u32 m0, {base_sgpr}, {extra + i*1024}",
                        f"buffer_load_dwordx4 v{VDMA+i}, s[24:27], s70 offen lds"])
        return out

    for st in range(3):
        for pr in dma_stage("s71", st * STAGE):
            for l in pr: A(l)
        A("s_add_u32 s70, s70, s68")
        if st == 0:
            A(f"""
            s_lshl_b32 s60, s58, 2
            s_cmp_eq_u32 s58, 3
            s_cselect_b32 s60, 11, s60
            s_mul_i32 s61, s58, 3
            s_cmp_eq_u32 s56, 1
            s_cselect_b32 s60, s61, s60
            s_and_b32 s61, s58, 1
            s_lshl_b32 s61, s61, 3
            s_lshr_b32 s62, s58, 1
            s_lshl_b32 s62, s62, 2
            s_add_u32 s61, s61, s62
            s_cmp_eq_u32 s51, 0
            s_cselect_b32 s59, s61, s60
            s_add_u32 s60, s55, s59
            s_lshl_b32 s60, s60, 5
            v_lshrrev_b32 v{VT}, 4, v{VL}
            v_lshlrev_b32 v{VT}, 3, v{VT}
            """)
            for j in range(4):
                A(f"buffer_load_dwordx2 v[{VBRAW+2*j}:{VBRAW+2*j+1}], v{VT}, s[44:47], s60 offen offset:{j*32}")
            A(f"""
            s_lshl_b32 s72, s50, 8
            s_add_u32 s72, s72, s2
            s_cmp_lt_u32 s72, 592
            s_cselect_b32 s73, 1, 0
            s_cmp_lt_u32 s50, 3
            s_cselect_b32 s73, s73, 0
            s_lshr_b32 s74, s72, 3                 ; kb
            s_and_b32 s75, s72, 7                  ; u
            s_mov_b32 s34, 2211840
            s_cmp_lt_u32 s74, 20
            s_cselect_b32 s32, s8, s16
            s_cselect_b32 s33, s9, s17
            s_cselect_b32 s34, 819200, s34
            s_cselect_b32 s60, 0, 20
            s_and_b32 s33, s33, 0xffff
            s_mov_b32 s35, 0x20000
            s_sub_u32 s60, s74, s60
            s_mul_i32 s60, s60, 40960
            s_mul_i32 s61, s75, 160
            s_add_u32 s60, s60, s61
            s_cmp_eq_u32 s73, 0
            s_cbranch_scc1 {name}_norl
            s_mul_i32 s61, s50, 5120
            s_add_u32 s61, s61, {RL_BASE}
            """)
            for i in range(5):
                A(f"""
                v_add_u32 v{VT+1}, {64*i}, v{VL}
                v_mul_u32_u24 v{VT+2}, 205, v{VT+1}
                v_lshrrev_b32 v{VT+2}, 11, v{VT+2}
                v_mul_u32_u24 v{VT+3}, 10, v{VT+2}
                v_sub_u32 v{VT+3}, v{VT+1}, v{VT+3}
                v_mul_u32_u24 v{VT+2}, 1280, v{VT+2}
                v_lshl_add_u32 v{VT+2}, v{VT+3}, 4, v{VT+2}
                s_add_u32 m0, s61, {i*1024}
                buffer_load_dwordx4 v{VT+2}, s[32:35], s60 offen lds
                """)
            A(f"{name}_norl:")
    A(f"""
    v_and_b32 v{VT}, 15, v{VL}                 ; mi
    v_lshrrev_b32 v{VT+1}, 4, v{VL}            ; g
    v_lshrrev_b32 v{VT+2}, 1, v{VT}            ; mi>>1
    v_xor_b32 v{VT+3}, v{VT+1}, v{VT+2}
    v_lshlrev_b32 v{VT+3}, 4, v{VT+3}
    v_lshl_add_u32 v{VXH}, v{VT}, 7, v{VT+3}
    v_xor_b32 v{VXH+1}, 64, v{VXH}
    s_lshl_b32 s60, s57, 13
    s_add_u32 s60, s60, 2048
    v_add_u32 v{VXA}, s60, v{VXH}
    v_add_u32 v{VXA+1}, s60, v{VXH+1}
    v_lshrrev_b32 v{VT+2}, 1, v{VT+1}          ; g1
    v_and_b32 v{VT+3}, 1, v{VT+1}              ; g0
    v_lshrrev_b32 v{VT+4}, 2, v{VT}            ; rr
    v_lshl_add_u32 v{VT+4}, v{VT+3}, 2, v{VT+4}
    v_lshl_add_u32 v{VT+4}, v{VT+2}, 4, v{VT+4}
    v_mul_u32_u24 v{VT+4}, {WROW}, v{VT+4}
    v_and_b32 v{VT+5}, 3, v{VT}
    v_lshl_add_u32 v{VT+4}, v{VT+5}, 3, v{VT+4}
    s_lshl_b32 s60, s59, 5
    s_add_u32 s60, s60, {XREG}
    v_add_u32 v{VW}, s60, v{VT+4}
    """)
    for i in range(72):
        A(f"v_mov_b32 v{ACC+i}, 0")
    A("s_waitcnt vmcnt(22)")
    A(f"s_mov_b32 s69, 0xffff0000")
    A(f"v_mov_b32 v{VG}, 0")
    for i in range(5):
        x, gw = VGX + i, VGX + 5 + i
        A(f"""
        v_lshlrev_b32 v{VT}, 16, v{x}
        v_and_b32 v{VT+1}, s69, v{x}
        v_lshlrev_b32 v{VT+2}, 16, v{gw}
        v_and_b32 v{VT+3}, s69, v{gw}
        v_mul_f32 v{VT}, v{VT}, v{VT+2}
        v_mul_f32 v{VT+1}, v{VT+1}, v{VT+3}
        v_cvt_pk_bf16_f32 v{VT}, v{VT}, v{VT+1}
        v_and_b32 v{VT+1}, s69, v{VT}
        v_lshlrev_b32 v{VT}, 16, v{VT}
        v_add_f32 v{VG}, v{VG}, v{VT}
        v_add_f32 v{VG}, v{VG}, v{VT+1}
        """)
    for sh in (1, 2, 4, 8):
        A(f"v_add_f32_dpp v{VG}, v{VG}, v{VG} row_ror:{sh} row_mask:0xf bank_mask:0xf")
    A(f"""
    v_mov_b32 v{VT}, v{VG}
    v_permlane16_swap_b32 v{VT}, v{VG}
    v_add_f32 v{VG}, v{VG}, v{VT}
    v_mov_b32 v{VT}, v{VG}
    v_permlane32_swap_b32 v{VT}, v{VG}
    v_add_f32 v{VG}, v{VG}, v{VT}
    v_cvt_pk_bf16_f32 v{VG}, v{VG}, v{VG}
    v_lshlrev_b32 v{VG}, 16, v{VG}
    v_mul_f32 v{VG}, 0xbfb8aa3b, v{VG}
    v_exp_f32 v{VG}, v{VG}
    v_add_f32 v{VG}, 1.0, v{VG}
    v_rcp_f32 v{VG}, v{VG}
    v_cvt_pk_bf16_f32 v{VG}, v{VG}, v{VG}
    v_lshlrev_b32 v{VG}, 16, v{VG}
    """)
    A(f"""
    s_waitcnt vmcnt(12)
    s_barrier
    """)
    if stamp:
        A("s_memrealtime s[82:83]")
    A("""
    s_mov_b32 s76, 0
    s_mov_b32 s77, 0
    s_mov_b32 s49, %d
    """ % STAGE)
    classes = {"c4": (4, ()), "c4a": (4, (0, 1)), "c4b": (4, (2, 3)), "c4c": (4, (1,)),
               "c3a": (3, (0, 1)), "c3b": (3, (2,)), "c3": (3, ())}
    amap = {0: "c4", 1: "c4", 2: "c4a", 3: "c4b", 4: "c4b", 5: "c4c", 6: "c3a", 7: "c3b"}
    A(f"""
    s_cmp_eq_u32 s51, 0
    s_cbranch_scc1 {name}_dispA
    s_cmp_eq_u32 s56, 1
    s_cbranch_scc1 {name}_c3
    s_cmp_lt_u32 s58, 2
    s_cbranch_scc1 {name}_c4
    s_branch {name}_c3
    {name}_dispA:
    """)
    for w in range(2, 8):
        A(f"s_cmp_eq_u32 s50, {w}\ns_cbranch_scc1 {name}_{amap[w]}")
    A(f"s_branch {name}_c4")

    def reads(fs, kk, nc, halo):
        out = []
        for j in range(nc):
            b = wfrag(fs, j)
            out.append(f"ds_read_b64_tr_b16 v[{b}:{b+1}], v{VW} offset:{kk*15360 + j*32}")
            out.append(f"ds_read_b64_tr_b16 v[{b+2}:{b+3}], v{VW} offset:{kk*15360 + 3840 + j*32}")
            if j == 0:
                for i in range(4):
                    out.append(f"ds_read_b128 {R(xfrag(fs, i))}, v{VXA+kk} offset:{i*2048}")
        if halo:
            out.append(f"ds_read_b128 {R(xfrag(fs, 4))}, v{VXH+kk}")
        return out

    def mfmas(fs, nc, halo):
        out = []
        for j in range(nc):
            for i in range(4):
                a = ACC + (i * 4 + j) * 4
                out.append(f"v_mfma_f32_16x16x32_bf16 {R(a)}, {R(wfrag(fs, j))}, {R(xfrag(fs, i))}, {R(a)}")
        for hi, j in enumerate(halo):
            a = ACC + (16 + hi) * 4
            out.append(f"v_mfma_f32_16x16x32_bf16 {R(a)}, {R(wfrag(fs, j))}, {R(xfrag(fs, 4))}, {R(a)}")
        return out

    for cname, (nc, halo) in classes.items():
        A(f"{name}_{cname}:")
        for l in reads(F0, 0, nc, halo): A(l)
        for loop in ("a", "b"):
            lab = f"{name}_{cname}_{loop}"
            A(f"{lab}:")
            r1 = reads(F1, 1, nc, halo)
            for l in r1: A(l)
            A(f"s_waitcnt lgkmcnt({len(r1)})")
            for l in mfmas(F0, nc, halo): A(l)
            A(f"""
            s_cmp_eq_u32 s77, 2
            s_cselect_b32 s78, {(-2*STAGE) & 0xffffffff}, s49
            s_mul_i32 s79, s77, {STAGE}
            s_add_u32 s79, s79, s71
            s_add_u32 s77, s77, 1
            s_cmp_eq_u32 s77, 3
            s_cselect_b32 s77, 0, s77
            """)
            A(f"s_waitcnt vmcnt({6 if loop == 'a' else 0}) lgkmcnt(0)")
            A("s_barrier")
            A(f"v_add_u32 v{VW}, s78, v{VW}")
            A(f"v_add_u32 v{VXA}, s78, v{VXA}")
            A(f"v_add_u32 v{VXA+1}, s78, v{VXA+1}")
            if halo:
                A(f"v_add_u32 v{VXH}, s78, v{VXH}")
                A(f"v_add_u32 v{VXH+1}, s78, v{VXH+1}")
            for l in reads(F0, 0, nc, halo): A(l)
            mf = mfmas(F1, nc, halo)
            if loop == "a":
                dm = dma_stage("s79", 0)
                di = 0
                for mi, m in enumerate(mf):
                    A(m)
                    if mi % 2 == 0 and di < 6:
                        A(dm[di][0])
                    if mi % 2 == 1 and di < 6:
                        A(dm[di][1]); di += 1
                assert di == 6
                A("s_add_u32 s70, s70, s68")
            else:
                for m in mf: A(m)
            A(f"""
            s_add_u32 s76, s76, 1
            s_cmp_lt_u32 s76, {7 if loop == 'a' else 10}
            s_cbranch_scc1 {lab}
            """)
        if stamp:
            A("s_memrealtime s[84:85]")
        if halo or cname == "c4":
            if cname == "c4":
                A(f"s_cmp_eq_u32 s51, 1\ns_cbranch_scc1 {name}_epiB4")
            A(f"""
            s_waitcnt lgkmcnt(0)
            v_and_b32 v{VT}, 15, v{VL}
            v_lshrrev_b32 v{VT+1}, 4, v{VL}
            v_mul_u32_u24 v{VT}, {RSQ}, v{VT}
            v_lshl_add_u32 v{VT}, v{VT+1}, 3, v{VT}
            s_lshl_b32 s60, s59, 5
            v_add_u32 v{VT}, s60, v{VT}
            s_lshl_b32 s60, s57, 2
            s_add_u32 s60, s60, 1
            s_mul_i32 s60, s60, {16*RSQ}
            v_add_u32 v{VT+1}, s60, v{VT}
            """)
            k = 0
            for j in range(nc):
                for i in range(4):
                    a = ACC + (i * 4 + j) * 4
                    t = VT + 4 + 2 * (k % 8); k += 1
                    A(f"v_cvt_pk_bf16_f32 v{t}, v{a}, v{a+1}")
                    A(f"v_cvt_pk_bf16_f32 v{t+1}, v{a+2}, v{a+3}")
                    A(f"ds_write_b64 v{VT+1}, v[{t}:{t+1}] offset:{i*16*RSQ + j*32}")
            for hi, j in enumerate(halo):
                a = ACC + (16 + hi) * 4
                t = VT + 4 + 2 * (k % 8); k += 1
                A(f"v_cvt_pk_bf16_f32 v{t}, v{a}, v{a+1}")
                A(f"v_cvt_pk_bf16_f32 v{t+1}, v{a+2}, v{a+3}")
                A(f"ds_write_b64 v{VT}, v[{t}:{t+1}] offset:{j*32}")
            A(f"s_branch {name}_attn")
        else:
            A(f"s_branch {name}_epiB3")

    A(f"{name}_attn:")
    mi, g = VT, VT + 1
    vQ, vK0, vK1, vV = VT + 2, VT + 3, VT + 4, VT + 5
    vmlo, vmhi, vsh = VT + 6, VT + 7, VT + 8
    A(f"""
    v_and_b32 v{mi}, 15, v{VL}
    v_lshrrev_b32 v{g}, 4, v{VL}
    s_mul_i32 s60, s50, {16*RSQ}
    v_mul_u32_u24 v{vK0}, {RSQ}, v{mi}
    v_lshl_add_u32 v{vK0}, v{g}, 4, v{vK0}
    v_add_u32 v{vK0}, s60, v{vK0}
    v_add_u32 v{vQ}, {16*RSQ}, v{vK0}
    v_add_u32 v{vK0}, 160, v{vK0}
    v_add_u32 v{vK1}, 160, v{vQ}
    v_lshrrev_b32 v{VT+9}, 2, v{mi}
    v_lshl_add_u32 v{VT+9}, v{g}, 2, v{VT+9}
    v_mul_u32_u24 v{vV}, {RSQ}, v{VT+9}
    v_and_b32 v{VT+9}, 3, v{mi}
    v_lshl_add_u32 v{vV}, v{VT+9}, 3, v{vV}
    v_add_u32 v{vV}, s60, v{vV}
    v_add_u32 v{vV}, 320, v{vV}
    v_cmp_gt_u32 vcc, 3, v{g}
    v_cndmask_b32 v{vmlo}, 0, -1, vcc
    v_cmp_gt_u32 vcc, 2, v{g}
    v_cndmask_b32 v{vmhi}, 0, -1, vcc
    v_and_b32 v{VT+9}, 1, v{mi}
    v_lshlrev_b32 v{vsh}, 4, v{VT+9}
    v_cmp_eq_u32 s[60:61], 1, v{VT+9}            ; Mpar
    v_lshrrev_b32 v{VT+9}, 1, v{mi}              ; qe
    v_lshlrev_b32 v{VT+10}, 1, v{g}
    v_cmp_le_u32 s[62:63], v{VT+10}, v{VT+9}
    v_add_u32 v{VT+10}, 1, v{VT+10}
    v_cmp_le_u32 s[64:65], v{VT+10}, v{VT+9}
    v_cmp_le_u32 s[70:71], 1, v{g}               ; Mg1
    v_cmp_le_u32 s[72:73], 2, v{g}               ; Mg2
    v_cmp_le_u32 s[74:75], 3, v{g}               ; Mg3
    s_add_u32 s76, s52, s50
    s_not_b64 s[66:67], s[62:63]
    s_not_b64 s[68:69], s[64:65]
    s_cmp_eq_u32 s76, 0
    s_cselect_b64 s[66:67], s[66:67], 0          ; Minv0
    s_cselect_b64 s[68:69], s[68:69], 0          ; Minv1
    s_waitcnt lgkmcnt(0)
    s_barrier
    """)
    Q = lambda h: 0 + 4 * h
    K0 = lambda h: 16 + 4 * h
    K1 = lambda h: 32 + 4 * h
    V = lambda b: 48 + 4 * b
    S0 = lambda h: 68 + 4 * h
    S1 = lambda h: 84 + 4 * h
    L = lambda h, t: 100 + 2 * h + t
    M = lambda h: 108 + h
    T = lambda h: 112 + h
    P = lambda h: 116 + 4 * h
    O = lambda n: 0 + 4 * n
    PK = 132
    for h in range(4):
        A(f"ds_read2_b64 {R(Q(h))}, v{vQ} offset0:{h*5} offset1:{h*5+1}")
        A(f"ds_read2_b64 {R(K0(h))}, v{vK0} offset0:{h*5} offset1:{h*5+1}")
        A(f"ds_read2_b64 {R(K1(h))}, v{vK1} offset0:{h*5} offset1:{h*5+1}")
    for h in range(4):
        A(f"s_waitcnt lgkmcnt({9 - 3*h})")
        q = Q(h)
        A(f"""
        v_and_b32 v{q}, v{q}, v{vmlo}
        v_and_b32 v{q+1}, v{q+1}, v{vmlo}
        v_and_b32 v{q+2}, v{q+2}, v{vmhi}
        v_and_b32 v{q+3}, v{q+3}, v{vmhi}
        v_mfma_f32_16x16x32_bf16 {R(S0(h))}, {R(K0(h))}, {R(q)}, 0
        v_mfma_f32_16x16x32_bf16 {R(S1(h))}, {R(K1(h))}, {R(q)}, 0
        """)
    for b in range(5):
        A(f"ds_read_b64_tr_b16 v[{V(b)}:{V(b)+1}], v{vV} offset:{b*32}")
        A(f"ds_read_b64_tr_b16 v[{V(b)+2}:{V(b)+3}], v{vV} offset:{b*32 + 16*RSQ}")
    A(f"s_mov_b32 s77, 0xffff0000")
    A(f"s_mov_b32 s78, {SCALE}")
    A(f"s_mov_b32 s79, 0xce6e6b28")
    A(f"v_mov_b32 v{VT+11}, s79")
    Mc = ["s[62:63]", "s[64:65]"]; Minv = ["s[66:67]", "s[68:69]"]
    for h in range(4):
        for t in range(2):
            A(f"v_cndmask_b32 v{S0(h)+2*t}, v{S0(h)+2*t}, v{S0(h)+2*t+1}, s[60:61]")
            A(f"v_cndmask_b32 v{S1(h)+2*t}, v{S1(h)+2*t}, v{S1(h)+2*t+1}, s[60:61]")
    for h in range(4):
        for t in range(2):
            A(f"v_cndmask_b32 v{L(h,t)}, v{S0(h)+2*t}, v{S1(h)+2*t}, {Mc[t]}")
    for h in range(4):
        l0, l1, t_ = L(h, 0), L(h, 1), T(h)
        A(f"""
        v_cvt_pk_bf16_f32 v{t_}, v{l0}, v{l1}
        v_lshlrev_b32 v{l0}, 16, v{t_}
        v_and_b32 v{l1}, s77, v{t_}
        v_mul_f32 v{l0}, s78, v{l0}
        v_mul_f32 v{l1}, s78, v{l1}
        v_cvt_pk_bf16_f32 v{t_}, v{l0}, v{l1}
        v_lshlrev_b32 v{l0}, 16, v{t_}
        v_and_b32 v{l1}, s77, v{t_}
        v_cndmask_b32 v{l0}, v{l0}, v{VT+11}, {Minv[0]}
        v_cndmask_b32 v{l1}, v{l1}, v{VT+11}, {Minv[1]}
        v_max_f32 v{M(h)}, v{l0}, v{l1}
        """)
    for swap in ("v_permlane16_swap_b32", "v_permlane32_swap_b32"):
        for h in range(4):
            A(f"v_mov_b32 v{T(h)}, v{M(h)}")
        for h in range(4):
            A(f"{swap} v{T(h)}, v{M(h)}")
        for h in range(4):
            A(f"v_max_f32 v{M(h)}, v{M(h)}, v{T(h)}")
    A(f"s_mov_b32 s79, {LOG2E}")
    for h in range(4):
        for t in range(2):
            A(f"v_sub_f32 v{L(h,t)}, v{L(h,t)}, v{M(h)}")
    for h in range(4):
        for t in range(2):
            A(f"v_mul_f32 v{L(h,t)}, s79, v{L(h,t)}")
    for h in range(4):
        for t in range(2):
            A(f"v_exp_f32 v{L(h,t)}, v{L(h,t)}")
    for h in range(4):
        A(f"v_add_f32 v{M(h)}, v{L(h,0)}, v{L(h,1)}")
    for swap in ("v_permlane16_swap_b32", "v_permlane32_swap_b32"):
        for h in range(4):
            A(f"v_mov_b32 v{T(h)}, v{M(h)}")
        for h in range(4):
            A(f"{swap} v{T(h)}, v{M(h)}")
        for h in range(4):
            A(f"v_add_f32 v{M(h)}, v{M(h)}, v{T(h)}")
    for h in range(4):
        A(f"v_rcp_f32 v{M(h)}, v{M(h)}")
    for h in range(4):
        for t in range(2):
            A(f"v_mul_f32 v{L(h,t)}, v{L(h,t)}, v{M(h)}")
    for h in range(4):
        for t in range(2):
            A(f"v_cvt_pk_bf16_f32 v{L(h,t)}, v{L(h,t)}, 0")
    for h in range(4):
        for t in range(2):
            A(f"v_lshlrev_b32 v{L(h,t)}, v{vsh}, v{L(h,t)}")
    for h in range(4):
        for t in range(2):
            A(f"v_cndmask_b32 v{P(h)+t}, v{L(h,t)}, 0, {Mc[t]}")
            A(f"v_cndmask_b32 v{P(h)+2+t}, 0, v{L(h,t)}, {Mc[t]}")
    A("s_waitcnt lgkmcnt(0)")
    for h in range(4):
        for e in range(2):
            A(f"v_mfma_f32_16x16x32_bf16 {R(O(2*h+e))}, {R(V(h+e))}, {R(P(h))}, 0")
    Mg = {1: "s[70:71]", 2: "s[72:73]", 3: "s[74:75]"}
    A(f"""
    s_lshr_b32 s60, s50, 2
    s_lshl_b32 s61, s54, 1
    s_add_u32 s60, s60, s61              ; t
    s_mul_i32 s60, s60, 74
    s_mul_i32 s61, s53, 5
    s_lshr_b32 s61, s61, 1
    s_add_u32 s60, s60, s61              ; t*74 + kb0
    s_lshl_b32 s60, s60, 2
    s_and_b32 s61, s50, 3
    s_add_u32 s60, s60, s61
    s_lshl_b32 s60, s60, 10
    s_add_u32 s61, s60, 4096
    s_add_u32 s62, s60, 8192
    """)
    A(f"v_cvt_pk_bf16_f32 v{PK}, v{O(0)}, v{O(0)+1}")
    A(f"v_cvt_pk_bf16_f32 v{PK+1}, v{O(0)+2}, v{O(0)+3}")
    for b in (1, 2, 3):
        lo, hi = O(2 * (b - 1) + 1), O(2 * b)
        for r in range(4):
            A(f"v_cndmask_b32 v{lo+r}, v{lo+r}, v{hi+r}, {Mg[b]}")
        A(f"v_cvt_pk_bf16_f32 v{PK+2*b}, v{lo}, v{lo+1}")
        A(f"v_cvt_pk_bf16_f32 v{PK+2*b+1}, v{lo+2}, v{lo+3}")
    A(f"v_cvt_pk_bf16_f32 v{PK+8}, v{O(7)}, v{O(7)+1}")
    A(f"v_cvt_pk_bf16_f32 v{PK+9}, v{O(7)+2}, v{O(7)+3}")
    A(f"""
    s_and_b32 s63, s53, 1
    s_cmp_eq_u32 s63, 1
    s_cbranch_scc1 {name}_ostodd
    buffer_store_dwordx4 v[{PK}:{PK+3}], v{VLANE16}, s[28:31], s60 offen
    buffer_store_dwordx4 v[{PK+4}:{PK+7}], v{VLANE16}, s[28:31], s61 offen
    buffer_store_dwordx2 v[{PK+8}:{PK+9}], v{VLANE16}, s[28:31], s62 offen
    s_branch {name}_tail
    {name}_ostodd:
    buffer_store_dwordx2 v[{PK}:{PK+1}], v{VLANE16}, s[28:31], s60 offen offset:8
    buffer_store_dwordx4 v[{PK+2}:{PK+5}], v{VLANE16}, s[28:31], s61 offen
    buffer_store_dwordx4 v[{PK+6}:{PK+9}], v{VLANE16}, s[28:31], s62 offen
    s_branch {name}_tail
    """)

    def mish_block(a, bias, dst, tmp):
        t = tmp
        A(f"""
        v_cvt_pk_bf16_f32 v{t}, v{a}, v{a+1}
        v_cvt_pk_bf16_f32 v{t+1}, v{a+2}, v{a+3}
        v_lshlrev_b32 v{a}, 16, v{t}
        v_and_b32 v{a+1}, s77, v{t}
        v_lshlrev_b32 v{a+2}, 16, v{t+1}
        v_and_b32 v{a+3}, s77, v{t+1}
        v_add_f32 v{a}, v{a}, v{bias}
        v_add_f32 v{a+1}, v{a+1}, v{bias+1}
        v_add_f32 v{a+2}, v{a+2}, v{bias+2}
        v_add_f32 v{a+3}, v{a+3}, v{bias+3}
        v_cvt_pk_bf16_f32 v{t}, v{a}, v{a+1}
        v_cvt_pk_bf16_f32 v{t+1}, v{a+2}, v{a+3}
        v_lshlrev_b32 v{a}, 16, v{t}
        v_and_b32 v{a+1}, s77, v{t}
        v_lshlrev_b32 v{a+2}, 16, v{t+1}
        v_and_b32 v{a+3}, s77, v{t+1}
        """)
        for r in range(4):
            A(f"v_mul_f32 v{t+r}, s78, v{a+r}")
        for r in range(4):
            A(f"v_min_f32 v{t+r}, s79, v{t+r}")
        for r in range(4):
            A(f"v_exp_f32 v{t+r}, v{t+r}")
        for r in range(4):
            A(f"v_add_f32 v{t+4+r}, 2.0, v{t+r}")
        for r in range(4):
            A(f"v_mul_f32 v{t+r}, v{t+r}, v{t+4+r}")
        for r in range(4):
            A(f"v_add_f32 v{t+4+r}, 2.0, v{t+r}")
        for r in range(4):
            A(f"v_rcp_f32 v{t+4+r}, v{t+4+r}")
        for r in range(4):
            A(f"v_mul_f32 v{t+r}, v{t+r}, v{a+r}")
        for r in range(4):
            A(f"v_mul_f32 v{t+r}, v{t+r}, v{t+4+r}")
        A(f"v_cvt_pk_bf16_f32 v{dst}, v{t}, v{t+1}")
        A(f"v_cvt_pk_bf16_f32 v{dst+1}, v{t+2}, v{t+3}")

    def epiB_common():
        A(f"""
        s_waitcnt lgkmcnt(0)
        s_mov_b32 s77, 0xffff0000
        s_mov_b32 s78, {LOG2E}
        s_mov_b32 s79, 0x42200000
        s_add_u32 s60, s55, s59            ; fb0
        s_lshl_b32 s61, s54, 1
        s_add_u32 s61, s61, s57            ; t
        s_mul_i32 s61, s61, 74
        s_lshr_b32 s62, s60, 1
        s_add_u32 s61, s61, s62
        s_add_u32 s61, s61, 20
        s_lshl_b32 s61, s61, 12
        s_add_u32 s62, s61, 4096
        """)
        for j in range(4):
            A(f"v_lshlrev_b32 v{VBIAS+4*j}, 16, v{VBRAW+2*j}")
            A(f"v_and_b32 v{VBIAS+4*j+1}, s77, v{VBRAW+2*j}")
            A(f"v_lshlrev_b32 v{VBIAS+4*j+2}, 16, v{VBRAW+2*j+1}")
            A(f"v_and_b32 v{VBIAS+4*j+3}, s77, v{VBRAW+2*j+1}")

    def blk(i, j):
        return ACC + (i * 4 + j) * 4
    A(f"{name}_epiB4:")
    epiB_common()
    k = 0
    for p in range(2):
        for i in range(4):
            d = F0 + 4 * (k % 4); tm = VT + 8 * (k % 4); k += 1
            mish_block(blk(i, 2 * p), VBIAS + 8 * p, d, tm)
            mish_block(blk(i, 2 * p + 1), VBIAS + 8 * p + 4, d + 2, tm)
            A(f"buffer_store_dwordx4 v[{d}:{d+3}], v{VLANE16}, s[28:31], s{61+p} offen offset:{i*1024}")
    A(f"s_branch {name}_tail")
    A(f"{name}_epiB3:")
    epiB_common()
    A(f"""
    s_and_b32 s63, s60, 1
    s_cmp_eq_u32 s63, 1
    s_cbranch_scc1 {name}_epiB3odd
    """)
    for i in range(4):
        d = F0 + 8 * (i % 4); tm = VT + 8 * (i % 4)
        mish_block(blk(i, 0), VBIAS, d, tm)
        mish_block(blk(i, 1), VBIAS + 4, d + 2, tm)
        A(f"buffer_store_dwordx4 v[{d}:{d+3}], v{VLANE16}, s[28:31], s61 offen offset:{i*1024}")
        mish_block(blk(i, 2), VBIAS + 8, d + 4, tm)
        A(f"buffer_store_dwordx2 v[{d+4}:{d+5}], v{VLANE16}, s[28:31], s62 offen offset:{i*1024}")
    A(f"s_branch {name}_tail")
    A(f"{name}_epiB3odd:")
    for i in range(4):
        d = F0 + 8 * (i % 4); tm = VT + 8 * (i % 4)
        mish_block(blk(i, 0), VBIAS, d + 4, tm)
        A(f"buffer_store_dwordx2 v[{d+4}:{d+5}], v{VLANE16}, s[28:31], s61 offen offset:{i*1024+8}")
        mish_block(blk(i, 1), VBIAS + 4, d, tm)
        mish_block(blk(i, 2), VBIAS + 8, d + 2, tm)
        A(f"buffer_store_dwordx4 v[{d}:{d+3}], v{VLANE16}, s[28:31], s62 offen offset:{i*1024}")

    A(f"{name}_tail:")
    if stamp:
        A("s_memrealtime s[86:87]")
    A(f"""
    s_lshl_b32 s60, s2, 3
    s_add_u32 s60, s60, s50
    s_lshl_b32 s60, s60, 2
    s_add_u32 s60, s60, {WS_G}
    v_cmp_eq_u32 vcc, 0, v{VL}
    v_mov_b32 v{VT}, 0
    v_mov_b32 v{VT+1}, 0x80000000
    v_cndmask_b32 v{VT}, v{VT+1}, v{VT}, vcc
    buffer_store_dword v{VG}, v{VT}, s[28:31], s60 offen
    s_lshl_b32 s72, s50, 8
    s_add_u32 s72, s72, s2
    s_cmp_ge_u32 s72, 592
    s_cbranch_scc1 {name}_done
    s_cmp_ge_u32 s50, 3
    s_cbranch_scc1 {name}_done
    s_lshr_b32 s74, s72, 3
    s_and_b32 s75, s72, 7
    s_mul_i32 s60, s75, 74
    s_add_u32 s60, s60, s74
    s_mul_i32 s60, s60, 5120
    s_add_u32 s60, s60, {WS_WF}
    s_add_u32 s61, s60, 4096
    s_mul_i32 s62, s50, 5120
    s_add_u32 s62, s62, {RL_BASE}
    v_lshrrev_b32 v{VT}, 2, v{VL}              ; 4g + rr  (l>>2)
    v_mul_u32_u24 v{VT}, 160, v{VT}
    v_and_b32 v{VT+1}, 3, v{VL}
    v_lshl_add_u32 v{VT}, v{VT+1}, 3, v{VT}
    v_add_u32 v{VT}, s62, v{VT}
    """)
    for j in range(5):
        b = VT + 4 + 4 * j
        A(f"ds_read_b64_tr_b16 v[{b}:{b+1}], v{VT} offset:{j*32}")
        A(f"ds_read_b64_tr_b16 v[{b+2}:{b+3}], v{VT} offset:{j*32 + 2560}")
    for j in range(5):
        b = VT + 4 + 4 * j
        A(f"s_waitcnt lgkmcnt({8 - 2*j})")
        if j < 4:
            A(f"buffer_store_dwordx4 v[{b}:{b+3}], v{VLANE16}, s[28:31], s60 offen offset:{j*1024}")
        else:
            A(f"buffer_store_dwordx4 v[{b}:{b+3}], v{VLANE16}, s[28:31], s61 offen")
    A(f"{name}_done:")
    if stamp:
        A(f"""
        s_waitcnt vmcnt(0)
        s_memrealtime s[88:89]
        s_memtime s[94:95]
        s_waitcnt lgkmcnt(0)
        s_sub_u32 s94, s94, s92
        v_mov_b32 v16, s80
        v_mov_b32 v17, s88
        v_mov_b32 v18, s82
        v_mov_b32 v19, s84
        v_mov_b32 v20, s86
        v_mov_b32 v21, 0
        v_mov_b32 v22, 0
        v_mov_b32 v23, s94
        s_lshl_b32 s60, s2, 3
        s_add_u32 s60, s60, s50
        s_lshl_b32 s60, s60, 5
        s_add_u32 s60, s60, {WS_STAMP}
        v_mov_b32 v14, 0
        buffer_store_dwordx4 v[16:19], v14, s[28:31], s60 offen
        buffer_store_dwordx4 v[20:23], v14, s[28:31], s60 offen offset:16
        """)
    A(f"{name}_exit:")
    A("s_endpgm")


P1_DESC = """
.section .rodata,"a"
.p2align 6
.amdhsa_kernel p1_kernel
  .amdhsa_next_free_vgpr 256
  .amdhsa_next_free_sgpr 96
  .amdhsa_accum_offset 256
  .amdhsa_group_segment_fixed_size 0
  .amdhsa_kernarg_size 88
  .amdhsa_user_sgpr_count 2
  .amdhsa_user_sgpr_kernarg_segment_ptr 1
  .amdhsa_system_sgpr_workgroup_id_x 1
.end_amdhsa_kernel
"""
P1_LAUNCH = f"; @launch kernel=p1_kernel grid=(256,1,1) block=(512,1,1) lds={P1_LDS}"
```

```python
from asmlib import Asm

WS_ACT, WS_WF, WS_G = 0, 0xA00000, 0xE00000
WS_SIZE = 0x1000000
WS_STAMP = 0xF00000
OUT_BYTES = 2048 * 640 * 2

P2_LDS = 160 * 1024
P2_D = 3
P2_NBUF = P2_D + 1
P2_NW = 8


def buf_regs(b):
    base = 16 + 36 * b
    return ["v[%d:%d]" % (base + 4 * i, base + 4 * i + 3) for i in range(9)]


def gen_p2(A, name="p2_kernel", stamp=False):
    A(f"""
.text
.globl {name}
.p2align 8
.type {name},@function
{name}:
    s_cmp_ge_u32 s2, 256
    s_cbranch_scc1 {name}_exit
    """)
    if stamp:
        A("s_memrealtime s[32:33]")
        A("s_memtime s[44:45]")
    A(f"""
    s_load_dwordx2 s[4:5], s[0:1], 64
    s_load_dwordx2 s[6:7], s[0:1], 80
    v_lshrrev_b32 v1, 6, v0
    v_and_b32 v0, 63, v0
    v_readfirstlane_b32 s20, v1
    v_lshlrev_b32 v2, 4, v0
    v_add_u32 v3, 0x1000, v2
    s_and_b32 s21, s2, 7
    s_lshr_b32 s22, s2, 3
    s_lshr_b32 s23, s21, 1
    s_lshl_b32 s23, s23, 3
    s_lshr_b32 s24, s22, 2
    s_add_u32 s23, s23, s24
    s_and_b32 s24, s21, 1
    s_lshl_b32 s24, s24, 2
    s_and_b32 s25, s22, 3
    s_add_u32 s24, s24, s25
    """)
    A(f"""
    s_mul_i32 s25, s20, 9
    s_add_u32 s25, s25, 2
    s_mul_i32 s26, s20, 10
    s_cmp_lt_u32 s20, 2
    s_cselect_b32 s25, s26, s25
    s_mul_i32 s26, s23, 74
    s_add_u32 s26, s26, s25
    s_lshl_b32 s26, s26, 12
    s_mul_i32 s27, s24, 74
    s_add_u32 s27, s27, s25
    s_mul_i32 s27, s27, 5120
    s_add_u32 s27, s27, {WS_WF}
    s_waitcnt lgkmcnt(0)
    s_mov_b32 s8, s6
    s_and_b32 s9, s7, 0xffff
    s_mov_b32 s10, {WS_SIZE}
    s_mov_b32 s11, 0x20000
    s_mov_b32 s12, s4
    s_and_b32 s13, s5, 0xffff
    s_mov_b32 s14, {OUT_BYTES}
    s_mov_b32 s15, 0x20000
    """)
    A(f"""
    s_lshl_b32 s28, s23, 6
    s_lshr_b32 s29, s20, 1
    s_lshl_b32 s29, s29, 4
    s_add_u32 s28, s28, s29
    v_and_b32 v4, 15, v0
    v_add_u32 v5, s28, v4
    v_lshlrev_b32 v6, 2, v5
    s_mov_b32 s29, {WS_G}
    buffer_load_dword v7, v6, s[8:11], s29 offen
    """)

    def loads(b):
        r = buf_regs(b)
        out = []
        for i in range(4):
            out.append(f"buffer_load_dwordx4 {r[i]}, v2, s[8:11], s26 offen offset:{i*1024}")
        for j in range(4):
            out.append(f"buffer_load_dwordx4 {r[4+j]}, v2, s[8:11], s27 offen offset:{j*1024}")
        out.append(f"buffer_load_dwordx4 {r[8]}, v3, s[8:11], s27 offen")
        return out

    def advance():
        return ["s_add_u32 s26, s26, 4096", "s_add_u32 s27, s27, 5120"]

    def body(n, tag):
        for kb in range(P2_D):
            for l in loads(kb % P2_NBUF): A(l)
            for l in advance(): A(l)
        for kb in range(n):
            issued_after = min(n, kb + P2_D) - (kb + 1)
            A(f"s_waitcnt vmcnt({9*issued_after})")
            if stamp and kb == 0:
                A("s_memrealtime s[34:35]")
            r = buf_regs(kb % P2_NBUF)
            mf = []
            for j in range(5):
                for i in range(4):
                    acc = "a[%d:%d]" % ((i * 5 + j) * 4, (i * 5 + j) * 4 + 3)
                    mf.append(f"v_mfma_f32_16x16x32_bf16 {acc}, {r[4+j]}, {r[i]}, {acc if kb else 0}")
            ld = []
            if kb + P2_D < n:
                ld = loads((kb + P2_D) % P2_NBUF) + advance()
            li = 0
            for mi, m in enumerate(mf):
                A(m)
                if mi % 2 == 1 and li < len(ld):
                    A(ld[li]); li += 1
            while li < len(ld):
                A(ld[li]); li += 1

    A(f"""
    s_cmp_lt_u32 s20, 2
    s_cbranch_scc0 {name}_b9
    """)
    body(10, "a")
    A(f"s_branch {name}_epi")
    A(f"{name}_b9:")
    body(9, "b")
    A(f"{name}_epi:")
    if stamp:
        A("s_memrealtime s[36:37]")
    A("s_nop 7")
    A(f"""
    s_lshl_b32 s30, s20, 10
    v_add_u32 v8, s30, v2
    v_add_u32 v9, 0x10000, v8
    v_add_u32 v10, 0x20000, v8
    """)
    for i in range(4):
        for j in range(5):
            acc = "a[%d:%d]" % ((i * 5 + j) * 4, (i * 5 + j) * 4 + 3)
            off = (i * 5 + j) * 8192
            A(f"ds_write_b128 v{8 + off//65536}, {acc} offset:{off % 65536}")
    A(f"""
    s_lshr_b32 s30, s20, 1
    s_mul_i32 s30, s30, 5
    s_and_b32 s31, s20, 1
    s_mul_i32 s29, s31, 3
    s_add_u32 s30, s30, s29
    s_lshl_b32 s30, s30, 13
    v_add_u32 v8, s30, v2
    s_waitcnt lgkmcnt(0)
    s_barrier
    """)
    if stamp:
        A("s_memrealtime s[38:39]")
    for jj in range(3):
        if jj == 2:
            A(f"s_cmp_eq_u32 s31, 1\ns_cbranch_scc1 {name}_rd_done")
        for w in range(8):
            b = 16 + (jj * 8 + w) * 4
            A(f"ds_read_b128 v[{b}:{b+3}], v8 offset:{jj*8192 + w*1024}")
    A(f"{name}_rd_done:")
    A(f"""
    s_waitcnt vmcnt(0)
    v_sub_f32 v9, 1.0, v7
    v_cvt_pk_bf16_f32 v9, v9, v9
    v_lshlrev_b32 v9, 16, v9
    v_lshrrev_b32 v10, 4, v0
    v_mul_u32_u24 v11, 1280, v5
    v_lshl_add_u32 v11, v10, 3, v11
    s_mul_i32 s30, s24, 160
    s_mul_i32 s29, s31, 96
    s_add_u32 s30, s30, s29
    s_mov_b32 s29, 0xffff0000
    """)
    A("s_waitcnt lgkmcnt(0)")
    for jj in range(3):
        if jj == 2:
            A(f"s_cmp_eq_u32 s31, 1\ns_cbranch_scc1 {name}_fin")
        base = 16 + jj * 32
        a0, a1 = base, base + 4
        b1 = base + 8
        for r in range(4):
            A(f"v_add_f32 v{a0+r}, v{a0+r}, v{a1+r}")
        for r in range(4):
            A(f"v_add_f32 v{b1+r}, v{b1+r}, v{b1+4+r}")
            A(f"v_add_f32 v{b1+8+r}, v{b1+8+r}, v{b1+12+r}")
            A(f"v_add_f32 v{b1+16+r}, v{b1+16+r}, v{b1+20+r}")
        for r in range(4):
            A(f"v_add_f32 v{b1+r}, v{b1+r}, v{b1+8+r}")
        for r in range(4):
            A(f"v_add_f32 v{b1+r}, v{b1+r}, v{b1+16+r}")
        for p in range(2):
            ra, rb = a0 + 2 * p, b1 + 2 * p
            t0, t1 = b1 + 8 + 2 * p, b1 + 12 + 2 * p
            A(f"""
            v_cvt_pk_bf16_f32 v{t0}, v{ra}, v{ra+1}
            v_cvt_pk_bf16_f32 v{t1}, v{rb}, v{rb+1}
            v_lshlrev_b32 v{ra}, 16, v{t0}
            v_and_b32 v{ra+1}, s29, v{t0}
            v_lshlrev_b32 v{rb}, 16, v{t1}
            v_and_b32 v{rb+1}, s29, v{t1}
            v_mul_f32 v{ra}, v7, v{ra}
            v_mul_f32 v{ra+1}, v7, v{ra+1}
            v_mul_f32 v{rb}, v9, v{rb}
            v_mul_f32 v{rb+1}, v9, v{rb+1}
            v_cvt_pk_bf16_f32 v{t0}, v{ra}, v{ra+1}
            v_cvt_pk_bf16_f32 v{t1}, v{rb}, v{rb+1}
            v_lshlrev_b32 v{ra}, 16, v{t0}
            v_and_b32 v{ra+1}, s29, v{t0}
            v_lshlrev_b32 v{rb}, 16, v{t1}
            v_and_b32 v{rb+1}, s29, v{t1}
            v_add_f32 v{ra}, v{ra}, v{rb}
            v_add_f32 v{ra+1}, v{ra+1}, v{rb+1}
            v_cvt_pk_bf16_f32 v{12+p}, v{ra}, v{ra+1}
            """)
        A(f"buffer_store_dwordx2 v[12:13], v11, s[12:15], s30 offen offset:{jj*32}")
        A("s_nop 1")
    A(f"{name}_fin:")
    if stamp:
        A(f"""
        s_waitcnt vmcnt(0)
        s_memrealtime s[40:41]
        s_memtime s[46:47]
        s_waitcnt lgkmcnt(0)
        s_sub_u32 s46, s46, s44
        v_mov_b32 v16, s32
        v_mov_b32 v17, s40
        v_mov_b32 v18, s34
        v_mov_b32 v19, s36
        v_mov_b32 v20, s38
        v_mov_b32 v21, 0
        v_mov_b32 v22, 0
        v_mov_b32 v23, s46
        s_lshl_b32 s42, s2, 3
        s_add_u32 s42, s42, s20
        s_lshl_b32 s42, s42, 5
        s_add_u32 s42, s42, {WS_STAMP + 0x10000}
        v_mov_b32 v14, 0
        buffer_store_dwordx4 v[16:19], v14, s[8:11], s42 offen
        buffer_store_dwordx4 v[20:23], v14, s[8:11], s42 offen offset:16
        """)
    A(f"{name}_exit:")
    A("s_endpgm")


P2_DESC = """
.section .rodata,"a"
.p2align 6
.amdhsa_kernel p2_kernel
  .amdhsa_next_free_vgpr 240
  .amdhsa_next_free_sgpr 48
  .amdhsa_accum_offset 160
  .amdhsa_group_segment_fixed_size 0
  .amdhsa_kernarg_size 88
  .amdhsa_user_sgpr_count 2
  .amdhsa_user_sgpr_kernarg_segment_ptr 1
  .amdhsa_system_sgpr_workgroup_id_x 1
.end_amdhsa_kernel
"""
P2_LAUNCH = f"; @launch kernel=p2_kernel grid=(256,1,1) block=({P2_NW*64},1,1) lds={P2_LDS}"

if __name__ == "__main__":
    A = Asm()
    A.raw(P2_LAUNCH)
    A.raw('.amdgcn_target "amdgcn-amd-amdhsa--gfx950"')
    import sys
    gen_p2(A, stamp=len(sys.argv) > 1)
    open("p2test.s", "w").write(A.finish() + P2_DESC)
```

```python
import sys
from asmlib import Asm
import gen_p1, gen_p2
stamp = "stamp" in sys.argv
out = "gated_mix__sliding_local_dilated__dense_activation_mish__prompt.s"
pol = ""
for a in sys.argv[1:]:
    if a.endswith(".s"): out = a
    if a.startswith("st="): pol = " " + a[3:].replace("+", " ")
A = Asm()
A.raw(gen_p1.P1_LAUNCH)
A.raw(gen_p2.P2_LAUNCH)
A.raw('.amdgcn_target "amdgcn-amd-amdhsa--gfx950"')
gen_p1.gen_p1(A, stamp=stamp, st_policy=pol, prefetch=("nopf" not in sys.argv))
gen_p2.gen_p2(A, stamp=stamp)
open(out, "w").write(A.finish() + gen_p1.P1_DESC + gen_p2.P2_DESC)
print("wrote", out)
```

```python
from asmlib import Asm
from gen_p2 import WS_ACT, WS_WF, WS_G, WS_SIZE, WS_STAMP

P1_LDS = 160 * 1024
STAGE = 49152
XREG = 18432
RL_BASE = 3 * STAGE
RSQ = 488
LOG2E = 0x3fb8aa3b
SCALE = 0x3e64f92e

ACC = 0
F0 = 72
F1 = 108
VW = 144
VXA = 148
VXH = 150
VLANE16 = 152
VL = 153
VBRAW = 154
VPF = 162
VC2 = 164
VT = 72
VTA = 154
VBIAS = 72
VTB = 88
VDB = 120
VDMA = 4
HT = 8
NWAVE = 12


def xfrag(fs, i):
    return fs + 4 * i
def wfrag(fs, j):
    return fs + 20 + 4 * j
def R(b, n=4):
    return "v[%d:%d]" % (b, b + n - 1)


def interleave(A, mf, fillers):
    n = len(mf)
    for mi, m in enumerate(mf):
        A(m)
        if mi < len(fillers):
            for l in fillers[mi]: A(l)
    for g in fillers[n:]:
        for l in g: A(l)


def gen_p1(A, name="p1_kernel", stamp=False, st_policy="", prefetch=True):
    ST = st_policy
    A(f"""
.text
.globl {name}
.p2align 8
.type {name},@function
{name}:
    s_cmp_ge_u32 s2, 256
    s_cbranch_scc1 {name}_exit
    """)
    if stamp:
        A("s_memrealtime s[80:81]")
        A("s_memtime s[92:93]")
    A(f"""
    s_load_dwordx4 s[4:7], s[0:1], 0
    s_load_dwordx2 s[8:9], s[0:1], 16
    s_load_dwordx2 s[10:11], s[0:1], 80
    s_load_dwordx4 s[12:15], s[0:1], 32
    s_load_dwordx4 s[16:19], s[0:1], 48
    v_lshrrev_b32 v1, 6, v0
    v_and_b32 v{VL}, 63, v0
    v_readfirstlane_b32 s50, v1
    v_lshlrev_b32 v{VLANE16}, 4, v{VL}
    s_and_b32 s60, s2, 7
    s_lshr_b32 s61, s2, 3
    s_and_b32 s62, s60, 1
    s_lshl_b32 s62, s62, 3
    s_and_b32 s63, s61, 7
    s_add_u32 s54, s62, s63            ; s54 = mt (0..15)
    s_lshl_b32 s52, s54, 7             ; s52 = m0
    s_lshr_b32 s62, s60, 1             ; cq
    s_lshr_b32 s63, s61, 3             ; cl
    s_lshr_b32 s51, s63, 1             ; s51 = type (0=A,1=B)
    s_and_b32 s63, s63, 1
    s_lshl_b32 s62, s62, 1
    s_add_u32 s53, s62, s63
    s_mul_i32 s55, s53, 14
    s_lshr_b32 s62, s53, 2
    s_lshl_b32 s62, s62, 1
    s_sub_u32 s55, s55, s62
    s_and_b32 s62, s53, 3
    s_cmp_eq_u32 s62, 3
    s_cselect_b32 s56, 1, 0
    s_and_b32 s57, s50, 1              ; s57 = mh
    s_lshr_b32 s58, s50, 1             ; s58 = ng
    s_mov_b32 s64, 3456
    s_cmp_eq_u32 s51, 0
    s_cselect_b32 s64, 3840, s64
    s_cselect_b32 s65, 1152, 0
    s_mul_i32 s62, s53, 160
    s_mul_i32 s63, s55, 32
    s_cselect_b32 s66, s62, s63
    s_lshl_b32 s62, s56, 1
    s_sub_u32 s62, 14, s62
    s_cmp_eq_u32 s51, 0
    s_cselect_b32 s67, 64, s62
    s_lshl_b32 s68, s64, 6
    s_cmp_ge_u32 s50, 8
    s_cbranch_scc0 {name}_compute
    s_sub_u32 s50, s50, 8              ; h
    s_lshl_b32 s60, s50, 4
    s_mul_i32 s72, s60, s64
    s_lshl_b32 s61, s64, 1
    s_add_u32 s73, s72, s61            ; +2
    s_lshl_b32 s62, s64, 3
    s_add_u32 s74, s72, s62            ; +8
    s_add_u32 s75, s74, s61            ; +10
    s_lshl_b32 s63, s64, 2
    s_add_u32 s76, s72, s63            ; +4
    s_add_u32 s77, s76, s61            ; +6
    s_add_u32 s78, s74, s63            ; +12
    s_add_u32 s79, s78, s61            ; +14
    s_lshl_b32 s60, s50, 5
    s_add_u32 s60, s60, s52
    s_mul_i32 s20, s60, 1280
    s_sub_u32 s60, s52, 16
    s_lshl_b32 s61, s50, 3
    s_add_u32 s60, s60, s61
    s_mul_i32 s22, s60, 1280
    s_cmp_eq_u32 s52, 0
    s_cselect_b32 s22, 0x80000000, s22
    s_mov_b32 s90, -1
    s_mov_b32 s91, 0x0fffffff
    s_mul_i32 s71, s50, 7680
    s_add_u32 s71, s71, {XREG}
    s_lshl_b32 s23, s50, 12
    s_add_u32 s23, s23, 2048
    s_lshl_b32 s48, s50, 10
    s_lshl_b32 s60, s51, 1
    s_add_u32 s60, s60, s50
    s_cmp_lt_u32 s60, 2
    s_cselect_b32 s70, 1, 0
    s_cmp_eq_u32 s51, 0
    s_cselect_b32 s62, 12, 14
    s_and_b32 s63, s53, 1
    s_cselect_b32 s63, s63, 0
    s_cmp_eq_u32 s51, 0
    s_cselect_b32 s63, s63, 0
    s_lshl_b32 s60, s62, 1
    v_lshrrev_b32 v{HT}, 1, v{VL}                    ; pos
    v_cmp_le_u32 vcc, s62, v{HT}
    v_subrev_u32 v{HT+1}, s62, v{HT}
    v_xor_b32 v{HT+1}, 1, v{HT+1}
    v_cndmask_b32 v{HT+1}, v{HT}, v{HT+1}, vcc
    v_cndmask_b32 v{HT+2}, 0, 1, vcc                 ; parity
    v_lshrrev_b32 v{HT+3}, 2, v{HT+1}
    v_mul_u32_u24 v{HT+3}, s65, v{HT+3}
    v_lshl_add_u32 v{HT+3}, v{HT+1}, 5, v{HT+3}
    s_lshl_b32 s61, s63, 5
    v_add_u32 v{HT+3}, s61, v{HT+3}
    ; singles (type A): q = pos-24 (0..5): parity = q>=3, grp = q%3, e = hgpar?0:4
    v_subrev_u32 v{HT+4}, 24, v{HT}
    v_cmp_le_u32 vcc, 3, v{HT+4}
    v_subrev_u32 v{HT+5}, 3, v{HT+4}
    v_cndmask_b32 v{HT+4}, v{HT+4}, v{HT+5}, vcc
    v_cndmask_b32 v{HT+5}, 0, 1, vcc
    v_mul_u32_u24 v{HT+4}, 1280, v{HT+4}
    s_lshl_b32 s61, s63, 7
    s_sub_u32 s61, 128, s61
    v_add_u32 v{HT+4}, s61, v{HT+4}
    v_cmp_le_u32 vcc, s60, v{HT}
    v_cndmask_b32 v{HT+3}, v{HT+3}, v{HT+4}, vcc
    v_cndmask_b32 v{HT+2}, v{HT+2}, v{HT+5}, vcc
    v_mul_u32_u24 v{HT+2}, s64, v{HT+2}
    v_and_b32 v{HT+4}, 1, v{VL}
    v_lshl_add_u32 v{HT+3}, v{HT+4}, 4, v{HT+3}
    v_add3_u32 v{HT+1}, v{HT+2}, v{HT+3}, s66        ; offset
    s_cmp_eq_u32 s51, 0
    s_cselect_b32 s60, 64, s60
    v_cmp_le_u32 vcc, s60, v{HT}
    v_mov_b32 v{HT+2}, 0x80000000
    v_cndmask_b32 v{HT+1}, v{HT+1}, v{HT+2}, vcc
    v_cmp_le_u32 vcc, s62, v{HT}
    v_subrev_u32 v{HT+4}, s62, v{HT}
    v_cndmask_b32 v{HT+4}, v{HT}, v{HT+4}, vcc
    v_cmp_le_u32 vcc, s67, v{HT+4}
    v_lshrrev_b32 v{HT+3}, 3, v{VL}
    v_cndmask_b32 v{VDMA}, v{HT+1}, v{HT+2}, vcc
    v_mul_u32_u24 v{HT+3}, 1280, v{HT+3}
    v_and_b32 v{HT+1}, 7, v{VL}
    v_lshrrev_b32 v{HT+2}, 4, v{VL}
    v_xor_b32 v{HT+1}, v{HT+1}, v{HT+2}
    v_lshl_add_u32 v{VDMA+1}, v{HT+1}, 4, v{HT+3}
    v_xor_b32 v{VDMA+2}, 64, v{VDMA+1}
    v_mov_b32 v{VDMA+3}, v{VDMA+1}
    s_cmp_eq_u32 s50, 1
    s_cbranch_scc0 {name}_h0
    v_mov_b32 v{VDMA+3}, v{VDMA+2}
    {name}_h0:
    s_waitcnt lgkmcnt(0)
    s_mov_b32 s36, s4
    s_and_b32 s37, s5, 0xffff
    s_mov_b32 s38, 2621440
    s_mov_b32 s39, 0x20000
    s_mov_b32 s26, 2211840
    s_cmp_eq_u32 s51, 0
    s_cselect_b32 s24, s6, s12
    s_cselect_b32 s25, s7, s13
    s_cselect_b32 s26, 2457600, s26
    s_and_b32 s25, s25, 0xffff
    s_mov_b32 s27, 0x20000
    s_mov_b32 s28, s10
    s_and_b32 s29, s11, 0xffff
    s_mov_b32 s30, {WS_SIZE}
    s_mov_b32 s31, 0x20000
    s_mov_b32 s40, s18
    s_and_b32 s41, s19, 0xffff
    s_mov_b32 s42, 1280
    s_mov_b32 s43, 0x20000
    s_mov_b32 s21, 0
    s_mov_b32 s49, 0
    s_cmp_eq_u32 s70, 1
    s_cbranch_scc1 {name}_hB
    """)

    def dma_stage(halo):
        A("s_add_u32 s68, s23, s21")
        for i in range(4):
            A(f"""
            s_add_u32 s69, s20, {i*10240}
            s_add_u32 m0, s68, {i*1024}
            buffer_load_dwordx4 v{VDMA+1+(i&1)}, s[36:39], s69 offen lds
            """)
        if halo:
            A(f"""
            s_add_u32 m0, s48, s21
            buffer_load_dwordx4 v{VDMA+3}, s[36:39], s22 offen lds
            s_add_u32 s22, s22, 128
            """)
        A("s_add_u32 s68, s71, s21")
        A("s_mov_b64 exec, s[90:91]")
        for i in range(8):
            A(f"""
            s_add_u32 m0, s68, {i*960}
            buffer_load_dwordx4 v{VDMA}, s[24:27], s{72+i} offen lds
            s_add_u32 s{72+i}, s{72+i}, s67
            """)
        A("s_mov_b64 exec, -1")
        A(f"""
        s_add_u32 s20, s20, 128
        s_add_u32 s21, s21, {STAGE}
        s_cmp_eq_u32 s21, {3*STAGE}
        s_cselect_b32 s21, 0, s21
        """)

    for var, halo in (("hA", False), ("hB", True)):
        nd = 13 if halo else 12
        A(f"{name}_{var}:")
        A("s_lshl_b32 s67, s64, 6")
        A(f"{name}_{var}_pro:")
        dma_stage(halo)
        A(f"""
        s_add_u32 s49, s49, 1
        s_cmp_lt_u32 s49, 3
        s_cbranch_scc1 {name}_{var}_pro
        s_waitcnt vmcnt({2*nd})
        s_barrier
        {name}_{var}_loop:
        s_waitcnt vmcnt({nd})
        s_barrier
        """)
        dma_stage(halo)
        A(f"""
        s_add_u32 s49, s49, 1
        s_cmp_lt_u32 s49, 10
        s_cbranch_scc1 {name}_{var}_loop
        s_waitcnt vmcnt({nd})
        s_barrier
        s_branch {name}_haux
        """)
    GX = HT + 8
    A(f"""
    {name}_haux:
    s_lshl_b32 s60, s2, 3
    s_lshl_b32 s61, s50, 1
    s_add_u32 s60, s60, s61
    s_mul_i32 s61, s60, 1280
    v_lshlrev_b32 v{HT}, 2, v{VL}
    buffer_load_dwordx4 v[{GX}:{GX+3}], v{VLANE16}, s[36:39], s61 offen
    buffer_load_dword v{GX+12}, v{HT}, s[36:39], s61 offen offset:1024
    buffer_load_dwordx4 v[{GX+4}:{GX+7}], v{VLANE16}, s[36:39], s61 offen offset:1280
    buffer_load_dword v{GX+13}, v{HT}, s[36:39], s61 offen offset:2304
    buffer_load_dwordx4 v[{GX+8}:{GX+11}], v{VLANE16}, s[40:43], 0 offen
    buffer_load_dword v{GX+14}, v{HT}, s[40:43], 0 offen offset:1024
    s_lshl_b32 s62, s50, 8
    s_add_u32 s62, s62, s2
    s_lshr_b32 s63, s62, 3                 ; kb
    s_and_b32 s69, s62, 7                  ; u
    s_mov_b32 s34, 2211840
    s_cmp_lt_u32 s63, 20
    s_cselect_b32 s32, s8, s16
    s_cselect_b32 s33, s9, s17
    s_cselect_b32 s34, 819200, s34
    s_cselect_b32 s60, 0, 20
    s_and_b32 s33, s33, 0xffff
    s_mov_b32 s35, 0x20000
    s_sub_u32 s60, s63, s60
    s_mul_i32 s60, s60, 40960
    s_mul_i32 s61, s69, 160
    s_add_u32 s60, s60, s61
    s_cmp_lt_u32 s62, 592
    s_cselect_b32 s70, 1, 0
    s_cmp_lt_u32 s50, 3
    s_cselect_b32 s70, s70, 0
    s_mul_i32 s61, s50, 5120
    s_add_u32 s61, s61, {RL_BASE}
    s_cmp_eq_u32 s70, 0
    s_cbranch_scc1 {name}_norl
    """)
    for i in range(5):
        A(f"""
        v_add_u32 v{HT+1}, {64*i}, v{VL}
        v_mul_u32_u24 v{HT+2}, 205, v{HT+1}
        v_lshrrev_b32 v{HT+2}, 11, v{HT+2}
        v_mul_u32_u24 v{HT+3}, 10, v{HT+2}
        v_sub_u32 v{HT+3}, v{HT+1}, v{HT+3}
        v_mul_u32_u24 v{HT+2}, 1280, v{HT+2}
        v_lshl_add_u32 v{HT+2}, v{HT+3}, 4, v{HT+2}
        s_add_u32 m0, s61, {i*1024}
        buffer_load_dwordx4 v{HT+2}, s[32:35], s60 offen lds
        """)
    A(f"""
    {name}_norl:
    s_waitcnt vmcnt(6)
    s_barrier
    s_waitcnt vmcnt(0)
    s_mov_b32 s68, 0xffff0000
    """)
    G = [HT + 24, HT + 25]
    T2 = HT + 28
    for r in range(2):
        for i in range(5):
            x = GX + 4 * r + i if i < 4 else GX + 12 + r
            gw = GX + 8 + i if i < 4 else GX + 14
            t = T2 + 4 * i
            A(f"""
            v_lshlrev_b32 v{t}, 16, v{x}
            v_and_b32 v{t+1}, s68, v{x}
            v_lshlrev_b32 v{t+2}, 16, v{gw}
            v_and_b32 v{t+3}, s68, v{gw}
            v_pk_mul_f32 v[{t}:{t+1}], v[{t}:{t+1}], v[{t+2}:{t+3}]
            v_cvt_pk_bf16_f32 v{t}, v{t}, v{t+1}
            v_and_b32 v{t+1}, s68, v{t}
            v_lshlrev_b32 v{t}, 16, v{t}
            """)
        A(f"""
        v_pk_add_f32 v[{T2}:{T2+1}], v[{T2}:{T2+1}], v[{T2+4}:{T2+5}]
        v_pk_add_f32 v[{T2+8}:{T2+9}], v[{T2+8}:{T2+9}], v[{T2+12}:{T2+13}]
        v_pk_add_f32 v[{T2}:{T2+1}], v[{T2}:{T2+1}], v[{T2+16}:{T2+17}]
        v_pk_add_f32 v[{T2}:{T2+1}], v[{T2}:{T2+1}], v[{T2+8}:{T2+9}]
        v_add_f32 v{G[r]}, v{T2}, v{T2+1}
        """)
    for sh in (1, 2, 4, 8):
        for r in range(2):
            A(f"v_add_f32_dpp v{G[r]}, v{G[r]}, v{G[r]} row_ror:{sh} row_mask:0xf bank_mask:0xf")
    for swap in ("v_permlane16_swap_b32", "v_permlane32_swap_b32"):
        for r in range(2):
            A(f"v_mov_b32 v{T2+r}, v{G[r]}")
        for r in range(2):
            A(f"{swap} v{T2+r}, v{G[r]}")
        for r in range(2):
            A(f"v_add_f32 v{G[r]}, v{G[r]}, v{T2+r}")
    for r in range(2):
        A(f"""
        v_cvt_pk_bf16_f32 v{G[r]}, v{G[r]}, v{G[r]}
        v_lshlrev_b32 v{G[r]}, 16, v{G[r]}
        v_mul_f32 v{G[r]}, 0xbfb8aa3b, v{G[r]}
        v_exp_f32 v{G[r]}, v{G[r]}
        v_add_f32 v{G[r]}, 1.0, v{G[r]}
        v_rcp_f32 v{G[r]}, v{G[r]}
        v_cvt_pk_bf16_f32 v{G[r]}, v{G[r]}, v{G[r]}
        v_lshlrev_b32 v{G[r]}, 16, v{G[r]}
        """)
    A(f"""
    s_lshl_b32 s60, s2, 3
    s_lshl_b32 s62, s50, 1
    s_add_u32 s60, s60, s62
    s_lshl_b32 s60, s60, 2
    s_add_u32 s60, s60, {WS_G}
    v_cmp_eq_u32 vcc, 0, v{VL}
    v_mov_b32 v{HT}, 0
    v_mov_b32 v{HT+1}, 0x80000000
    v_cndmask_b32 v{HT}, v{HT+1}, v{HT}, vcc
    buffer_store_dwordx2 v[{G[0]}:{G[1]}], v{HT}, s[28:31], s60 offen{ST}
    s_cmp_eq_u32 s70, 0
    s_cbranch_scc1 {name}_exit
    s_mul_i32 s60, s69, 74
    s_add_u32 s60, s60, s63
    s_mul_i32 s60, s60, 5120
    s_add_u32 s60, s60, {WS_WF}
    s_add_u32 s62, s60, 4096
    v_lshrrev_b32 v{HT}, 2, v{VL}              ; 4g + rr  (l>>2)
    v_mul_u32_u24 v{HT}, 160, v{HT}
    v_and_b32 v{HT+1}, 3, v{VL}
    v_lshl_add_u32 v{HT}, v{HT+1}, 3, v{HT}
    v_add_u32 v{HT}, s61, v{HT}
    """)
    for j in range(5):
        b = T2 + 4 * j
        A(f"ds_read_b64_tr_b16 v[{b}:{b+1}], v{HT} offset:{j*32}")
        A(f"ds_read_b64_tr_b16 v[{b+2}:{b+3}], v{HT} offset:{j*32 + 2560}")
    for j in range(5):
        b = T2 + 4 * j
        A(f"s_waitcnt lgkmcnt({8 - 2*j})")
        if j < 4:
            A(f"buffer_store_dwordx4 v[{b}:{b+3}], v{VLANE16}, s[28:31], s60 offen offset:{j*1024}{ST}")
        else:
            A(f"buffer_store_dwordx4 v[{b}:{b+3}], v{VLANE16}, s[28:31], s62 offen{ST}")
    A("s_endpgm")

    A(f"""
    {name}_compute:
    s_lshl_b32 s60, s58, 2
    s_cmp_eq_u32 s58, 3
    s_cselect_b32 s60, 11, s60
    s_mul_i32 s61, s58, 3
    s_cmp_eq_u32 s56, 1
    s_cselect_b32 s60, s61, s60
    s_and_b32 s61, s58, 1
    s_lshl_b32 s61, s61, 3
    s_lshr_b32 s62, s58, 1
    s_lshl_b32 s62, s62, 2
    s_add_u32 s61, s61, s62
    s_cmp_eq_u32 s51, 0
    s_cselect_b32 s59, s61, s60
    """)
    A(f"""
    v_and_b32 v{VT}, 15, v{VL}                 ; mi
    v_lshrrev_b32 v{VT+1}, 4, v{VL}            ; g
    v_lshrrev_b32 v{VT+2}, 1, v{VT}            ; mi>>1
    v_xor_b32 v{VT+3}, v{VT+1}, v{VT+2}
    v_lshlrev_b32 v{VT+3}, 4, v{VT+3}
    v_lshl_add_u32 v{VXH}, v{VT}, 7, v{VT+3}
    v_xor_b32 v{VXH+1}, 64, v{VXH}
    s_lshl_b32 s60, s57, 13
    s_add_u32 s60, s60, 2048
    v_add_u32 v{VXA}, s60, v{VXH}
    v_add_u32 v{VXA+1}, s60, v{VXH+1}
    v_lshrrev_b32 v{VT+2}, 1, v{VT+1}          ; g1
    v_and_b32 v{VT+3}, 1, v{VT+1}              ; g0
    v_lshrrev_b32 v{VT+4}, 3, v{VT}            ; rr>>1
    v_lshl_add_u32 v{VT+4}, v{VT+3}, 1, v{VT+4}
    v_lshl_add_u32 v{VT+4}, v{VT+2}, 3, v{VT+4}    ; slot>>1
    v_mul_u32_u24 v{VT+4}, 960, v{VT+4}
    v_and_b32 v{VT+5}, 3, v{VT}
    v_lshl_add_u32 v{VT+4}, v{VT+5}, 3, v{VT+4}
    v_add_u32 v{VT+4}, {XREG}, v{VT+4}
    v_bfe_u32 v{VT+5}, v{VT}, 2, 1
    v_cmp_eq_u32 vcc, 1, v{VT+5}
    s_cmp_eq_u32 s51, 0
    s_cselect_b32 s62, 12, 14
    s_and_b32 s63, s53, 1
    s_cmp_eq_u32 s51, 0
    s_cselect_b32 s63, s63, 0
    """)
    for j in range(4):
        A(f"""
        s_add_u32 s69, s59, {j}
        s_mul_i32 s60, s69, 13
        s_lshr_b32 s60, s60, 6
        s_mul_i32 s61, s60, 5
        s_sub_u32 s61, s69, s61                ; e
        s_sub_u32 s61, s61, s63
        s_lshl_b32 s78, s60, 2
        s_add_u32 s78, s78, s61
        s_cmp_eq_u32 s51, 0
        s_cselect_b32 s78, s78, s69
        s_cselect_b32 s79, s61, 0
        s_xor_b32 s77, s78, 1
        s_add_u32 s77, s77, s62
        s_add_u32 s76, s60, 24
        s_add_u32 s69, s60, 27
        s_cmp_gt_u32 s79, 3
        s_cselect_b32 s78, s76, s78
        s_cselect_b32 s77, s69, s77
        s_lshl_b32 s78, s78, 5
        s_lshl_b32 s77, s77, 5
        v_mov_b32 v{VT+6}, s78
        v_mov_b32 v{VT+7}, s77
        v_cndmask_b32 v{VT+6}, v{VT+6}, v{VT+7}, vcc
        v_add_u32 v{VW+j}, v{VT+6}, v{VT+4}
        """)
    for i in range(72):
        A(f"v_mov_b32 v{ACC+i}, 0")
    A(f"""
    s_waitcnt lgkmcnt(0)
    s_mov_b32 s28, s10
    s_and_b32 s29, s11, 0xffff
    s_mov_b32 s30, {WS_SIZE}
    s_mov_b32 s31, 0x20000
    s_mov_b32 s44, s14
    s_and_b32 s45, s15, 0xffff
    s_mov_b32 s46, 3456
    s_mov_b32 s47, 0x20000
    """)
    if prefetch:
        A(f"""
        s_and_b32 s60, s2, 7
        s_lshr_b32 s61, s2, 3                  ; idx
        s_lshr_b32 s62, s60, 1                 ; cq
        s_and_b32 s60, s60, 1                  ; M half
        v_mul_u32_u24 v{VT}, 57, v{VL}
        v_lshrrev_b32 v{VT}, 9, v{VT}          ; st = l/9
        v_mul_u32_u24 v{VT+1}, 9, v{VT}
        v_sub_u32 v{VT+1}, v{VL}, v{VT+1}      ; l9
        v_add_u32 v{VT}, 3, v{VT}              ; stage
        s_cmp_lt_u32 s50, 4
        s_cbranch_scc0 {name}_pfW
        s_lshl_b32 s63, s61, 2
        s_add_u32 s63, s63, s50
        s_mul_i32 s63, s63, 9
        s_lshl_b32 s60, s60, 10
        s_add_u32 s63, s63, s60
        s_sub_u32 s63, s63, 16
        v_add_u32 v{VT+2}, s63, v{VT+1}
        v_max_i32 v{VT+2}, 0, v{VT+2}
        v_mul_u32_u24 v{VT+2}, 1280, v{VT+2}
        v_lshl_add_u32 v{VT+2}, v{VT}, 7, v{VT+2}
        s_mov_b32 s40, s4
        s_and_b32 s41, s5, 0xffff
        s_mov_b32 s42, 2621440
        s_branch {name}_pfgo
        {name}_pfW:
        s_lshl_b32 s63, s61, 1
        s_and_b32 s60, s50, 1
        s_add_u32 s63, s63, s60
        v_lshlrev_b32 v{VT}, 6, v{VT}
        v_add_u32 v{VT}, s63, v{VT}            ; k row
        s_cmp_lt_u32 s50, 6
        s_cbranch_scc0 {name}_pfW1
        v_mul_u32_u24 v{VT+2}, 11, v{VT+1}
        v_lshrrev_b32 v{VT+2}, 5, v{VT+2}      ; grp = l9/3
        v_mul_u32_u24 v{VT+3}, 896, v{VT+2}    ; grp*(1280-384)
        v_lshl_add_u32 v{VT+3}, v{VT+1}, 7, v{VT+3}
        v_mul_u32_u24 v{VT+2}, 3840, v{VT}
        s_mul_i32 s60, s62, 320
        s_and_b32 s60, s60, 0xffffff80
        v_add3_u32 v{VT+2}, v{VT+2}, v{VT+3}, s60
        s_mov_b32 s40, s6
        s_and_b32 s41, s7, 0xffff
        s_mov_b32 s42, 2457600
        s_branch {name}_pfgo
        {name}_pfW1:
        s_mul_i32 s60, s62, 28
        s_lshr_b32 s63, s62, 1
        s_lshl_b32 s63, s63, 1
        s_sub_u32 s60, s60, s63
        s_lshl_b32 s60, s60, 5
        s_and_b32 s60, s60, 0xffffff80
        v_min_u32 v{VT+1}, 7, v{VT+1}
        v_mul_u32_u24 v{VT+2}, 3456, v{VT}
        v_lshl_add_u32 v{VT+2}, v{VT+1}, 7, v{VT+2}
        v_add_u32 v{VT+2}, s60, v{VT+2}
        s_mov_b32 s40, s12
        s_and_b32 s41, s13, 0xffff
        s_mov_b32 s42, 2211840
        {name}_pfgo:
        s_mov_b32 s43, 0x20000
        v_cmp_gt_u32 vcc, 63, v{VL}
        v_mov_b32 v{VT+3}, 0x80000000
        v_cndmask_b32 v{VT+2}, v{VT+3}, v{VT+2}, vcc
        buffer_load_dword v{VPF}, v{VT+2}, s[40:43], 0 offen
        """)
    A(f"""
    s_add_u32 s60, s55, s59
    s_lshl_b32 s60, s60, 5
    v_lshrrev_b32 v{VT}, 4, v{VL}
    v_lshlrev_b32 v{VT}, 3, v{VT}
    """)
    for j in range(4):
        A(f"buffer_load_dwordx2 v[{VBRAW+2*j}:{VBRAW+2*j+1}], v{VT}, s[44:47], s60 offen offset:{j*32}")
    A(f"""
    s_mov_b32 s76, 0
    s_mov_b32 s77, 0
    s_mov_b32 s49, {STAGE}
    """)
    classes = {"c4": (4, ()), "c4a": (4, (0, 1)), "c4b": (4, (2, 3)), "c4c": (4, (1,)),
               "c3a": (3, (0, 1)), "c3b": (3, (2,)), "c3": (3, ())}
    amap = {0: "c4", 1: "c4", 2: "c4a", 3: "c4b", 4: "c4b", 5: "c4c", 6: "c3a", 7: "c3b"}
    A(f"""
    s_cmp_eq_u32 s51, 0
    s_cbranch_scc1 {name}_dispA
    s_cmp_eq_u32 s56, 1
    s_cbranch_scc1 {name}_c3
    s_cmp_lt_u32 s58, 2
    s_cbranch_scc1 {name}_c4
    s_branch {name}_c3
    {name}_dispA:
    """)
    for w in range(2, 8):
        A(f"s_cmp_eq_u32 s50, {w}\ns_cbranch_scc1 {name}_{amap[w]}")
    A(f"s_branch {name}_c4")

    def reads(fs, kk, nc, halo):
        out = []
        for j in range(nc):
            b = wfrag(fs, j)
            out.append(f"ds_read_b64_tr_b16 v[{b}:{b+1}], v{VW+j} offset:{kk*15360}")
            out.append(f"ds_read_b64_tr_b16 v[{b+2}:{b+3}], v{VW+j} offset:{kk*15360 + 3840}")
            if j == 0:
                for i in range(4):
                    out.append(f"ds_read_b128 {R(xfrag(fs, i))}, v{VXA+kk} offset:{i*2048}")
        if halo:
            out.append(f"ds_read_b128 {R(xfrag(fs, 4))}, v{VXH+kk}")
        return out

    def mfmas(fs, nc, halo):
        out = []
        for j in range(nc):
            for i in range(4):
                a = ACC + (i * 4 + j) * 4
                out.append(f"v_mfma_f32_16x16x32_bf16 {R(a)}, {R(wfrag(fs, j))}, {R(xfrag(fs, i))}, {R(a)}")
        for hi, j in enumerate(halo):
            a = ACC + (16 + hi) * 4
            out.append(f"v_mfma_f32_16x16x32_bf16 {R(a)}, {R(wfrag(fs, j))}, {R(xfrag(fs, 4))}, {R(a)}")
        return out

    for cname, (nc, halo) in classes.items():
        A(f"{name}_{cname}:")
        A("s_barrier")
        if stamp:
            A("s_memrealtime s[82:83]")
        for l in reads(F0, 0, nc, halo): A(l)
        lab = f"{name}_{cname}_loop"
        A(f"{lab}:")
        A("s_waitcnt lgkmcnt(0)")
        interleave(A, mfmas(F0, nc, halo), [[l] for l in reads(F1, 1, nc, halo)])
        A(f"""
        s_cmp_eq_u32 s77, {2*STAGE}
        s_cselect_b32 s78, {(-2*STAGE) & 0xffffffff}, s49
        s_add_u32 s77, s77, s78
        s_waitcnt lgkmcnt(0)
        s_barrier
        """)
        fill = [[f"v_add_u32 v{VW}, s78, v{VW}", f"v_add_u32 v{VXA}, s78, v{VXA}"]]
        f2 = [f"v_add_u32 v{VXA+1}, s78, v{VXA+1}"]
        if halo:
            f2.append(f"v_add_u32 v{VXH+1}, s78, v{VXH+1}")
        seq = []
        for l in reads(F0, 0, nc, halo):
            for j in range(1, nc):
                if f"v{VW+j} offset:0" in l and l.endswith("offset:0"):
                    seq.append(f"v_add_u32 v{VW+j}, s78, v{VW+j}")
            if halo and l.endswith(f"v{VXH}"):
                seq.append(f"v_add_u32 v{VXH}, s78, v{VXH}")
            seq.append(l)
        for k in range(0, len(seq), 2):
            fill.append(seq[k:k + 2])
        fill.append(f2)
        interleave(A, mfmas(F1, nc, halo), fill)
        A(f"""
        s_add_u32 s76, s76, 1
        s_cmp_lt_u32 s76, 10
        s_cbranch_scc1 {lab}
        """)
        if stamp:
            A("s_memrealtime s[84:85]")
        if halo or cname == "c4":
            if cname == "c4":
                A(f"s_cmp_eq_u32 s51, 1\ns_cbranch_scc1 {name}_epiB4")
            A(f"""
            s_waitcnt vmcnt(0) lgkmcnt(0)
            v_and_b32 v{VTA}, 15, v{VL}
            v_lshrrev_b32 v{VTA+1}, 4, v{VL}
            v_mul_u32_u24 v{VTA}, {RSQ}, v{VTA}
            v_lshl_add_u32 v{VTA}, v{VTA+1}, 3, v{VTA}
            s_lshl_b32 s60, s59, 5
            v_add_u32 v{VTA}, s60, v{VTA}
            s_lshl_b32 s60, s57, 2
            s_add_u32 s60, s60, 1
            s_mul_i32 s60, s60, {16*RSQ}
            v_add_u32 v{VTA+1}, s60, v{VTA}
            """)
            k = 0
            for j in range(nc):
                for i in range(4):
                    a = ACC + (i * 4 + j) * 4
                    t = F0 + 2 * k; k += 1
                    A(f"v_cvt_pk_bf16_f32 v{t}, v{a}, v{a+1}")
                    A(f"v_cvt_pk_bf16_f32 v{t+1}, v{a+2}, v{a+3}")
                    A(f"ds_write_b64 v{VTA+1}, v[{t}:{t+1}] offset:{i*16*RSQ + j*32}")
            for hi, j in enumerate(halo):
                a = ACC + (16 + hi) * 4
                t = F0 + 2 * k; k += 1
                A(f"v_cvt_pk_bf16_f32 v{t}, v{a}, v{a+1}")
                A(f"v_cvt_pk_bf16_f32 v{t+1}, v{a+2}, v{a+3}")
                A(f"ds_write_b64 v{VTA}, v[{t}:{t+1}] offset:{j*32}")
            A(f"s_branch {name}_attn")
        else:
            A(f"s_branch {name}_epiB3")

    A(f"{name}_attn:")
    mi, g = VTA, VTA + 1
    vQ, vK0, vK1, vV = VTA + 2, VTA + 3, VTA + 4, VTA + 5
    vmlo, vmhi, vsh = VTA + 6, VTA + 7, VTA + 8
    A(f"""
    v_and_b32 v{mi}, 15, v{VL}
    v_lshrrev_b32 v{g}, 4, v{VL}
    s_mul_i32 s60, s50, {16*RSQ}
    v_mul_u32_u24 v{vK0}, {RSQ}, v{mi}
    v_lshl_add_u32 v{vK0}, v{g}, 4, v{vK0}
    v_add_u32 v{vK0}, s60, v{vK0}
    v_add_u32 v{vQ}, {16*RSQ}, v{vK0}
    v_add_u32 v{vK0}, 160, v{vK0}
    v_add_u32 v{vK1}, 160, v{vQ}
    v_lshrrev_b32 v{VTA+9}, 2, v{mi}
    v_lshl_add_u32 v{VTA+9}, v{g}, 2, v{VTA+9}
    v_mul_u32_u24 v{vV}, {RSQ}, v{VTA+9}
    v_and_b32 v{VTA+9}, 3, v{mi}
    v_lshl_add_u32 v{vV}, v{VTA+9}, 3, v{vV}
    v_add_u32 v{vV}, s60, v{vV}
    v_add_u32 v{vV}, 320, v{vV}
    v_cmp_gt_u32 vcc, 3, v{g}
    v_cndmask_b32 v{vmlo}, 0, -1, vcc
    v_cmp_gt_u32 vcc, 2, v{g}
    v_cndmask_b32 v{vmhi}, 0, -1, vcc
    v_and_b32 v{VTA+9}, 1, v{mi}
    v_lshlrev_b32 v{vsh}, 4, v{VTA+9}
    v_cmp_eq_u32 s[60:61], 1, v{VTA+9}            ; Mpar
    v_lshrrev_b32 v{VTA+9}, 1, v{mi}              ; qe
    v_lshlrev_b32 v{VTA+10}, 1, v{g}
    v_cmp_le_u32 s[62:63], v{VTA+10}, v{VTA+9}
    v_add_u32 v{VTA+10}, 1, v{VTA+10}
    v_cmp_le_u32 s[64:65], v{VTA+10}, v{VTA+9}
    v_cmp_le_u32 s[70:71], 1, v{g}               ; Mg1
    v_cmp_le_u32 s[72:73], 2, v{g}               ; Mg2
    v_cmp_le_u32 s[74:75], 3, v{g}               ; Mg3
    s_add_u32 s76, s52, s50
    s_not_b64 s[66:67], s[62:63]
    s_not_b64 s[68:69], s[64:65]
    s_cmp_eq_u32 s76, 0
    s_cselect_b64 s[66:67], s[66:67], 0          ; Minv0
    s_cselect_b64 s[68:69], s[68:69], 0          ; Minv1
    s_waitcnt lgkmcnt(0)
    s_barrier
    """)
    Q = lambda h: 0 + 4 * h
    K0 = lambda h: 16 + 4 * h
    K1 = lambda h: 32 + 4 * h
    V = lambda b: 48 + 4 * b
    S0 = lambda h: 68 + 4 * h
    S1 = lambda h: 84 + 4 * h
    L = lambda h, t: 100 + 2 * h + t
    M = lambda h: 108 + h
    T = lambda h: 112 + h
    P = lambda h: 116 + 4 * h
    O = lambda n: 0 + 4 * n
    PK = 132
    for h in range(4):
        A(f"ds_read2_b64 {R(Q(h))}, v{vQ} offset0:{h*5} offset1:{h*5+1}")
        A(f"ds_read2_b64 {R(K0(h))}, v{vK0} offset0:{h*5} offset1:{h*5+1}")
        A(f"ds_read2_b64 {R(K1(h))}, v{vK1} offset0:{h*5} offset1:{h*5+1}")
    for h in range(4):
        A(f"s_waitcnt lgkmcnt({9 - 3*h})")
        q = Q(h)
        A(f"""
        v_and_b32 v{q}, v{q}, v{vmlo}
        v_and_b32 v{q+1}, v{q+1}, v{vmlo}
        v_and_b32 v{q+2}, v{q+2}, v{vmhi}
        v_and_b32 v{q+3}, v{q+3}, v{vmhi}
        v_mfma_f32_16x16x32_bf16 {R(S0(h))}, {R(K0(h))}, {R(q)}, 0
        v_mfma_f32_16x16x32_bf16 {R(S1(h))}, {R(K1(h))}, {R(q)}, 0
        """)
    for b in range(5):
        A(f"ds_read_b64_tr_b16 v[{V(b)}:{V(b)+1}], v{vV} offset:{b*32}")
        A(f"ds_read_b64_tr_b16 v[{V(b)+2}:{V(b)+3}], v{vV} offset:{b*32 + 16*RSQ}")
    A(f"s_mov_b32 s77, 0xffff0000")
    A(f"s_mov_b32 s78, {SCALE}")
    A(f"s_mov_b32 s79, 0xce6e6b28")
    A(f"v_mov_b32 v{VTA+11}, s79")
    Mc = ["s[62:63]", "s[64:65]"]; Minv = ["s[66:67]", "s[68:69]"]
    for h in range(4):
        for t in range(2):
            A(f"v_cndmask_b32 v{S0(h)+2*t}, v{S0(h)+2*t}, v{S0(h)+2*t+1}, s[60:61]")
            A(f"v_cndmask_b32 v{S1(h)+2*t}, v{S1(h)+2*t}, v{S1(h)+2*t+1}, s[60:61]")
    for h in range(4):
        for t in range(2):
            A(f"v_cndmask_b32 v{L(h,t)}, v{S0(h)+2*t}, v{S1(h)+2*t}, {Mc[t]}")
    for h in range(4):
        l0, l1, t_ = L(h, 0), L(h, 1), T(h)
        A(f"""
        v_cvt_pk_bf16_f32 v{t_}, v{l0}, v{l1}
        v_lshlrev_b32 v{l0}, 16, v{t_}
        v_and_b32 v{l1}, s77, v{t_}
        v_mul_f32 v{l0}, s78, v{l0}
        v_mul_f32 v{l1}, s78, v{l1}
        v_cvt_pk_bf16_f32 v{t_}, v{l0}, v{l1}
        v_lshlrev_b32 v{l0}, 16, v{t_}
        v_and_b32 v{l1}, s77, v{t_}
        v_cndmask_b32 v{l0}, v{l0}, v{VTA+11}, {Minv[0]}
        v_cndmask_b32 v{l1}, v{l1}, v{VTA+11}, {Minv[1]}
        v_max_f32 v{M(h)}, v{l0}, v{l1}
        """)
    for swap in ("v_permlane16_swap_b32", "v_permlane32_swap_b32"):
        for h in range(4):
            A(f"v_mov_b32 v{T(h)}, v{M(h)}")
        for h in range(4):
            A(f"{swap} v{T(h)}, v{M(h)}")
        for h in range(4):
            A(f"v_max_f32 v{M(h)}, v{M(h)}, v{T(h)}")
    A(f"s_mov_b32 s79, {LOG2E}")
    for h in range(4):
        for t in range(2):
            A(f"v_sub_f32 v{L(h,t)}, v{L(h,t)}, v{M(h)}")
    for h in range(4):
        for t in range(2):
            A(f"v_mul_f32 v{L(h,t)}, s79, v{L(h,t)}")
    for h in range(4):
        for t in range(2):
            A(f"v_exp_f32 v{L(h,t)}, v{L(h,t)}")
    for h in range(4):
        A(f"v_add_f32 v{M(h)}, v{L(h,0)}, v{L(h,1)}")
    for swap in ("v_permlane16_swap_b32", "v_permlane32_swap_b32"):
        for h in range(4):
            A(f"v_mov_b32 v{T(h)}, v{M(h)}")
        for h in range(4):
            A(f"{swap} v{T(h)}, v{M(h)}")
        for h in range(4):
            A(f"v_add_f32 v{M(h)}, v{M(h)}, v{T(h)}")
    for h in range(4):
        A(f"v_rcp_f32 v{M(h)}, v{M(h)}")
    for h in range(4):
        for t in range(2):
            A(f"v_mul_f32 v{L(h,t)}, v{L(h,t)}, v{M(h)}")
    for h in range(4):
        for t in range(2):
            A(f"v_cvt_pk_bf16_f32 v{L(h,t)}, v{L(h,t)}, 0")
    for h in range(4):
        for t in range(2):
            A(f"v_lshlrev_b32 v{L(h,t)}, v{vsh}, v{L(h,t)}")
    for h in range(4):
        for t in range(2):
            A(f"v_cndmask_b32 v{P(h)+t}, v{L(h,t)}, 0, {Mc[t]}")
            A(f"v_cndmask_b32 v{P(h)+2+t}, 0, v{L(h,t)}, {Mc[t]}")
    A("s_waitcnt lgkmcnt(0)")
    for h in range(4):
        for e in range(2):
            A(f"v_mfma_f32_16x16x32_bf16 {R(O(2*h+e))}, {R(V(h+e))}, {R(P(h))}, 0")
    Mg = {1: "s[70:71]", 2: "s[72:73]", 3: "s[74:75]"}
    A(f"""
    s_lshr_b32 s60, s50, 2
    s_lshl_b32 s61, s54, 1
    s_add_u32 s60, s60, s61              ; t
    s_mul_i32 s60, s60, 74
    s_mul_i32 s61, s53, 5
    s_lshr_b32 s61, s61, 1
    s_add_u32 s60, s60, s61              ; t*74 + kb0
    s_lshl_b32 s60, s60, 2
    s_and_b32 s61, s50, 3
    s_add_u32 s60, s60, s61
    s_lshl_b32 s60, s60, 10
    s_add_u32 s61, s60, 4096
    s_add_u32 s62, s60, 8192
    """)
    A(f"v_cvt_pk_bf16_f32 v{PK}, v{O(0)}, v{O(0)+1}")
    A(f"v_cvt_pk_bf16_f32 v{PK+1}, v{O(0)+2}, v{O(0)+3}")
    for b in (1, 2, 3):
        lo, hi = O(2 * (b - 1) + 1), O(2 * b)
        for r in range(4):
            A(f"v_cndmask_b32 v{lo+r}, v{lo+r}, v{hi+r}, {Mg[b]}")
        A(f"v_cvt_pk_bf16_f32 v{PK+2*b}, v{lo}, v{lo+1}")
        A(f"v_cvt_pk_bf16_f32 v{PK+2*b+1}, v{lo+2}, v{lo+3}")
    A(f"v_cvt_pk_bf16_f32 v{PK+8}, v{O(7)}, v{O(7)+1}")
    A(f"v_cvt_pk_bf16_f32 v{PK+9}, v{O(7)+2}, v{O(7)+3}")
    A(f"""
    s_and_b32 s63, s53, 1
    s_cmp_eq_u32 s63, 1
    s_cbranch_scc1 {name}_ostodd
    buffer_store_dwordx4 v[{PK}:{PK+3}], v{VLANE16}, s[28:31], s60 offen{ST}
    buffer_store_dwordx4 v[{PK+4}:{PK+7}], v{VLANE16}, s[28:31], s61 offen{ST}
    buffer_store_dwordx2 v[{PK+8}:{PK+9}], v{VLANE16}, s[28:31], s62 offen{ST}
    s_branch {name}_done
    {name}_ostodd:
    buffer_store_dwordx2 v[{PK}:{PK+1}], v{VLANE16}, s[28:31], s60 offen offset:8{ST}
    buffer_store_dwordx4 v[{PK+2}:{PK+5}], v{VLANE16}, s[28:31], s61 offen{ST}
    buffer_store_dwordx4 v[{PK+6}:{PK+9}], v{VLANE16}, s[28:31], s62 offen{ST}
    s_branch {name}_done
    """)

    def mish_blocks(blks):
        def each(f):
            for (a, bias, dst, t) in blks:
                A(f(a, bias, dst, t))
        each(lambda a, b, d, t: f"v_cvt_pk_bf16_f32 v{t}, v{a}, v{a+1}\nv_cvt_pk_bf16_f32 v{t+1}, v{a+2}, v{a+3}")
        each(lambda a, b, d, t: f"v_lshlrev_b32 v{a}, 16, v{t}\nv_and_b32 v{a+1}, s77, v{t}\n"
                                f"v_lshlrev_b32 v{a+2}, 16, v{t+1}\nv_and_b32 v{a+3}, s77, v{t+1}")
        each(lambda a, b, d, t: f"v_pk_add_f32 v[{a}:{a+1}], v[{a}:{a+1}], v[{b}:{b+1}]\n"
                                f"v_pk_add_f32 v[{a+2}:{a+3}], v[{a+2}:{a+3}], v[{b+2}:{b+3}]")
        each(lambda a, b, d, t: f"v_cvt_pk_bf16_f32 v{t}, v{a}, v{a+1}\nv_cvt_pk_bf16_f32 v{t+1}, v{a+2}, v{a+3}")
        each(lambda a, b, d, t: f"v_lshlrev_b32 v{a}, 16, v{t}\nv_and_b32 v{a+1}, s77, v{t}\n"
                                f"v_lshlrev_b32 v{a+2}, 16, v{t+1}\nv_and_b32 v{a+3}, s77, v{t+1}")
        each(lambda a, b, d, t: f"v_pk_mul_f32 v[{t}:{t+1}], v[{a}:{a+1}], s[78:79]\n"
                                f"v_pk_mul_f32 v[{t+2}:{t+3}], v[{a+2}:{a+3}], s[78:79]")
        each(lambda a, b, d, t: "\n".join(f"v_exp_f32 v{t+r}, v{t+r}" for r in range(4)))
        each(lambda a, b, d, t: f"v_pk_add_f32 v[{t}:{t+1}], v[{t}:{t+1}], s[66:67]\n"
                                f"v_pk_add_f32 v[{t+2}:{t+3}], v[{t+2}:{t+3}], s[66:67]")
        each(lambda a, b, d, t: f"v_pk_fma_f32 v[{t}:{t+1}], v[{t}:{t+1}], v[{t}:{t+1}], s[66:67]\n"
                                f"v_pk_fma_f32 v[{t+2}:{t+3}], v[{t+2}:{t+3}], v[{t+2}:{t+3}], s[66:67]")
        each(lambda a, b, d, t: "\n".join(f"v_rcp_f32 v{t+r}, v{t+r}" for r in range(4)))
        each(lambda a, b, d, t: f"v_pk_fma_f32 v[{t}:{t+1}], v[{t}:{t+1}], v[{VC2}:{VC2+1}], s[66:67]\n"
                                f"v_pk_fma_f32 v[{t+2}:{t+3}], v[{t+2}:{t+3}], v[{VC2}:{VC2+1}], s[66:67]")
        each(lambda a, b, d, t: f"v_pk_mul_f32 v[{t}:{t+1}], v[{t}:{t+1}], v[{a}:{a+1}]\n"
                                f"v_pk_mul_f32 v[{t+2}:{t+3}], v[{t+2}:{t+3}], v[{a+2}:{a+3}]")
        each(lambda a, b, d, t: f"v_cvt_pk_bf16_f32 v{d}, v{t}, v{t+1}\nv_cvt_pk_bf16_f32 v{d+1}, v{t+2}, v{t+3}")

    def epiB_common():
        A(f"""
        s_waitcnt vmcnt(0) lgkmcnt(0)
        s_mov_b32 s77, 0xffff0000
        s_mov_b32 s78, {LOG2E}
        s_mov_b32 s79, {LOG2E}
        s_mov_b32 s66, 1.0
        s_mov_b32 s67, 1.0
        v_mov_b32 v{VC2}, -2.0
        v_mov_b32 v{VC2+1}, -2.0
        s_add_u32 s60, s55, s59            ; fb0
        s_lshl_b32 s61, s54, 1
        s_add_u32 s61, s61, s57            ; t
        s_mul_i32 s61, s61, 74
        s_lshr_b32 s62, s60, 1
        s_add_u32 s61, s61, s62
        s_add_u32 s61, s61, 20
        s_lshl_b32 s61, s61, 12
        s_add_u32 s62, s61, 4096
        """)
        for j in range(4):
            A(f"v_lshlrev_b32 v{VBIAS+4*j}, 16, v{VBRAW+2*j}")
            A(f"v_and_b32 v{VBIAS+4*j+1}, s77, v{VBRAW+2*j}")
            A(f"v_lshlrev_b32 v{VBIAS+4*j+2}, 16, v{VBRAW+2*j+1}")
            A(f"v_and_b32 v{VBIAS+4*j+3}, s77, v{VBRAW+2*j+1}")

    def blk(i, j):
        return ACC + (i * 4 + j) * 4
    A(f"{name}_epiB4:")
    epiB_common()
    for i in range(4):
        d = VDB + 8 * i
        mish_blocks([(blk(i, j), VBIAS + 4 * j, d + 2 * j, VTB + 4 * j + 16 * (i % 2)) for j in range(4)])
        A(f"buffer_store_dwordx4 v[{d}:{d+3}], v{VLANE16}, s[28:31], s61 offen offset:{i*1024}{ST}")
        A(f"buffer_store_dwordx4 v[{d+4}:{d+7}], v{VLANE16}, s[28:31], s62 offen offset:{i*1024}{ST}")
    A(f"s_branch {name}_done")
    A(f"{name}_epiB3:")
    epiB_common()
    A(f"""
    s_and_b32 s63, s60, 1
    s_cmp_eq_u32 s63, 1
    s_cbranch_scc1 {name}_epiB3odd
    """)
    for i in range(4):
        d = VDB + 8 * i
        mish_blocks([(blk(i, j), VBIAS + 4 * j, d + 2 * j, VTB + 4 * j + 16 * (i % 2)) for j in range(3)])
        A(f"buffer_store_dwordx4 v[{d}:{d+3}], v{VLANE16}, s[28:31], s61 offen offset:{i*1024}{ST}")
        A(f"buffer_store_dwordx2 v[{d+4}:{d+5}], v{VLANE16}, s[28:31], s62 offen offset:{i*1024}{ST}")
    A(f"s_branch {name}_done")
    A(f"{name}_epiB3odd:")
    for i in range(4):
        d = VDB + 8 * i
        mish_blocks([(blk(i, j), VBIAS + 4 * j, d + 2 + 2 * j, VTB + 4 * j + 16 * (i % 2)) for j in range(3)])
        A(f"buffer_store_dwordx2 v[{d+2}:{d+3}], v{VLANE16}, s[28:31], s61 offen offset:{i*1024+8}{ST}")
        A(f"buffer_store_dwordx4 v[{d+4}:{d+7}], v{VLANE16}, s[28:31], s62 offen offset:{i*1024}{ST}")

    A(f"{name}_done:")
    if stamp:
        A(f"""
        s_memrealtime s[86:87]
        s_waitcnt vmcnt(0)
        s_memrealtime s[88:89]
        s_memtime s[94:95]
        s_waitcnt lgkmcnt(0)
        s_sub_u32 s94, s94, s92
        v_mov_b32 v16, s80
        v_mov_b32 v17, s88
        v_mov_b32 v18, s82
        v_mov_b32 v19, s84
        v_mov_b32 v20, s86
        v_mov_b32 v21, 0
        v_mov_b32 v22, 0
        v_mov_b32 v23, s94
        s_lshl_b32 s60, s2, 3
        s_add_u32 s60, s60, s50
        s_lshl_b32 s60, s60, 5
        s_add_u32 s60, s60, {WS_STAMP}
        v_mov_b32 v14, 0
        buffer_store_dwordx4 v[16:19], v14, s[28:31], s60 offen
        buffer_store_dwordx4 v[20:23], v14, s[28:31], s60 offen offset:16
        """)
    A(f"{name}_exit:")
    A("s_endpgm")


P1_DESC = """
.section .rodata,"a"
.p2align 6
.amdhsa_kernel p1_kernel
  .amdhsa_next_free_vgpr 168
  .amdhsa_next_free_sgpr 96
  .amdhsa_accum_offset 168
  .amdhsa_group_segment_fixed_size 0
  .amdhsa_kernarg_size 88
  .amdhsa_user_sgpr_count 2
  .amdhsa_user_sgpr_kernarg_segment_ptr 1
  .amdhsa_system_sgpr_workgroup_id_x 1
.end_amdhsa_kernel
"""
P1_LAUNCH = f"; @launch kernel=p1_kernel grid=(256,1,1) block=({NWAVE*64},1,1) lds={P1_LDS}"
```

```python
from asmlib import Asm

WS_ACT, WS_WF, WS_G = 0, 0xA00000, 0xE00000
WS_SIZE = 0x1000000
WS_STAMP = 0xF00000
OUT_BYTES = 2048 * 640 * 2
P1_LDS = 160 * 1024
STAGE = 49152
XREG = 18432
RL_BASE = 3 * STAGE
RSQ = 488
LOG2E = 0x3fb8aa3b
SCALE = 0x3e64f92e

ACC = 0
F0 = 72
F1 = 108
VW = 144
VXA = 148
VXH = 150
VLANE16 = 152
VL = 153
VBRAW = 154
VPF = 162
VC2 = 164
VT = 72
VTA = 154
VBIAS = 72
VTB = 88
VDB = 120
VDMA = 4
HT = 8
NWAVE = 12


def xfrag(fs, i):
    return fs + 4 * i
def wfrag(fs, j):
    return fs + 20 + 4 * j
def R(b, n=4):
    return "v[%d:%d]" % (b, b + n - 1)


def interleave(A, mf, fillers):
    n = len(mf)
    for mi, m in enumerate(mf):
        A(m)
        if mi < len(fillers):
            for l in fillers[mi]: A(l)
    for g in fillers[n:]:
        for l in g: A(l)


class VQ:
    def __init__(self): self.q = []
    def add(self, tag, n): self.q += [tag] * n
    def wait_for(self, tag):
        last = max(i for i, t in enumerate(self.q) if t == tag)
        n = len(self.q) - 1 - last
        self.q = self.q[last + 1:]
        return n


def gen_fused(A, name, stamp=False, prefetch=False):
    ST = " sc1"
    LD = " sc1"
    A(f"""
.text
.globl {name}
.p2align 8
.type {name},@function
{name}:
    s_cmp_ge_u32 s2, 256
    s_cbranch_scc1 {name}_exit
    """)
    if stamp:
        A("s_memrealtime s[80:81]")
        A("s_memtime s[92:93]")
    A(f"""
    s_load_dwordx4 s[96:99], s[0:1], 64
    s_load_dwordx4 s[4:7], s[0:1], 0
    s_load_dwordx2 s[8:9], s[0:1], 16
    s_load_dwordx2 s[10:11], s[0:1], 80
    s_load_dwordx4 s[12:15], s[0:1], 32
    s_load_dwordx4 s[16:19], s[0:1], 48
    v_lshrrev_b32 v1, 6, v0
    v_and_b32 v{VL}, 63, v0
    v_readfirstlane_b32 s50, v1
    v_lshlrev_b32 v{VLANE16}, 4, v{VL}
    s_and_b32 s60, s2, 7
    s_lshr_b32 s61, s2, 3
    s_and_b32 s62, s60, 1
    s_lshl_b32 s62, s62, 3
    s_and_b32 s63, s61, 7
    s_add_u32 s54, s62, s63            ; s54 = mt (0..15)
    s_lshl_b32 s52, s54, 7             ; s52 = m0
    s_lshr_b32 s62, s60, 1             ; cq
    s_lshr_b32 s63, s61, 3             ; cl
    s_lshr_b32 s51, s63, 1             ; s51 = type (0=A,1=B)
    s_and_b32 s63, s63, 1
    s_lshl_b32 s62, s62, 1
    s_add_u32 s53, s62, s63
    s_mul_i32 s55, s53, 14
    s_lshr_b32 s62, s53, 2
    s_lshl_b32 s62, s62, 1
    s_sub_u32 s55, s55, s62
    s_and_b32 s62, s53, 3
    s_cmp_eq_u32 s62, 3
    s_cselect_b32 s56, 1, 0
    s_and_b32 s57, s50, 1              ; s57 = mh
    s_lshr_b32 s58, s50, 1             ; s58 = ng
    s_mov_b32 s64, 3456
    s_cmp_eq_u32 s51, 0
    s_cselect_b32 s64, 3840, s64
    s_cselect_b32 s65, 1152, 0
    s_mul_i32 s62, s53, 160
    s_mul_i32 s63, s55, 32
    s_cselect_b32 s66, s62, s63
    s_lshl_b32 s62, s56, 1
    s_sub_u32 s62, 14, s62
    s_cmp_eq_u32 s51, 0
    s_cselect_b32 s67, 64, s62
    s_lshl_b32 s68, s64, 6
    s_lshl_b32 s3, s54, 4
    s_lshl_b32 s60, s51, 3
    s_add_u32 s3, s3, s60
    s_add_u32 s3, s3, s53
    s_cmp_ge_u32 s50, 8
    s_cbranch_scc0 {name}_compute
    s_sub_u32 s50, s50, 8              ; h
    s_lshl_b32 s60, s50, 4
    s_mul_i32 s72, s60, s64
    s_lshl_b32 s61, s64, 1
    s_add_u32 s73, s72, s61            ; +2
    s_lshl_b32 s62, s64, 3
    s_add_u32 s74, s72, s62            ; +8
    s_add_u32 s75, s74, s61            ; +10
    s_lshl_b32 s63, s64, 2
    s_add_u32 s76, s72, s63            ; +4
    s_add_u32 s77, s76, s61            ; +6
    s_add_u32 s78, s74, s63            ; +12
    s_add_u32 s79, s78, s61            ; +14
    s_lshl_b32 s60, s50, 5
    s_add_u32 s60, s60, s52
    s_mul_i32 s20, s60, 1280
    s_sub_u32 s60, s52, 16
    s_lshl_b32 s61, s50, 3
    s_add_u32 s60, s60, s61
    s_mul_i32 s22, s60, 1280
    s_cmp_eq_u32 s52, 0
    s_cselect_b32 s22, 0x80000000, s22
    s_mov_b32 s90, -1
    s_mov_b32 s91, 0x0fffffff
    s_mul_i32 s71, s50, 7680
    s_add_u32 s71, s71, {XREG}
    s_lshl_b32 s23, s50, 12
    s_add_u32 s23, s23, 2048
    s_lshl_b32 s48, s50, 10
    s_lshl_b32 s60, s51, 1
    s_add_u32 s60, s60, s50
    s_cmp_lt_u32 s60, 2
    s_cselect_b32 s70, 1, 0
    s_cmp_eq_u32 s51, 0
    s_cselect_b32 s62, 12, 14
    s_and_b32 s63, s53, 1
    s_cselect_b32 s63, s63, 0
    s_cmp_eq_u32 s51, 0
    s_cselect_b32 s63, s63, 0
    s_lshl_b32 s60, s62, 1
    v_lshrrev_b32 v{HT}, 1, v{VL}                    ; pos
    v_cmp_le_u32 vcc, s62, v{HT}
    v_subrev_u32 v{HT+1}, s62, v{HT}
    v_xor_b32 v{HT+1}, 1, v{HT+1}
    v_cndmask_b32 v{HT+1}, v{HT}, v{HT+1}, vcc
    v_cndmask_b32 v{HT+2}, 0, 1, vcc                 ; parity
    v_lshrrev_b32 v{HT+3}, 2, v{HT+1}
    v_mul_u32_u24 v{HT+3}, s65, v{HT+3}
    v_lshl_add_u32 v{HT+3}, v{HT+1}, 5, v{HT+3}
    s_lshl_b32 s61, s63, 5
    v_add_u32 v{HT+3}, s61, v{HT+3}
    ; singles (type A): q = pos-24 (0..5): parity = q>=3, grp = q%3, e = hgpar?0:4
    v_subrev_u32 v{HT+4}, 24, v{HT}
    v_cmp_le_u32 vcc, 3, v{HT+4}
    v_subrev_u32 v{HT+5}, 3, v{HT+4}
    v_cndmask_b32 v{HT+4}, v{HT+4}, v{HT+5}, vcc
    v_cndmask_b32 v{HT+5}, 0, 1, vcc
    v_mul_u32_u24 v{HT+4}, 1280, v{HT+4}
    s_lshl_b32 s61, s63, 7
    s_sub_u32 s61, 128, s61
    v_add_u32 v{HT+4}, s61, v{HT+4}
    v_cmp_le_u32 vcc, s60, v{HT}
    v_cndmask_b32 v{HT+3}, v{HT+3}, v{HT+4}, vcc
    v_cndmask_b32 v{HT+2}, v{HT+2}, v{HT+5}, vcc
    v_mul_u32_u24 v{HT+2}, s64, v{HT+2}
    v_and_b32 v{HT+4}, 1, v{VL}
    v_lshl_add_u32 v{HT+3}, v{HT+4}, 4, v{HT+3}
    v_add3_u32 v{HT+1}, v{HT+2}, v{HT+3}, s66        ; offset
    s_cmp_eq_u32 s51, 0
    s_cselect_b32 s60, 64, s60
    v_cmp_le_u32 vcc, s60, v{HT}
    v_mov_b32 v{HT+2}, 0x80000000
    v_cndmask_b32 v{HT+1}, v{HT+1}, v{HT+2}, vcc
    v_cmp_le_u32 vcc, s62, v{HT}
    v_subrev_u32 v{HT+4}, s62, v{HT}
    v_cndmask_b32 v{HT+4}, v{HT}, v{HT+4}, vcc
    v_cmp_le_u32 vcc, s67, v{HT+4}
    v_lshrrev_b32 v{HT+3}, 3, v{VL}
    v_cndmask_b32 v{VDMA}, v{HT+1}, v{HT+2}, vcc
    v_mul_u32_u24 v{HT+3}, 1280, v{HT+3}
    v_and_b32 v{HT+1}, 7, v{VL}
    v_lshrrev_b32 v{HT+2}, 4, v{VL}
    v_xor_b32 v{HT+1}, v{HT+1}, v{HT+2}
    v_lshl_add_u32 v{VDMA+1}, v{HT+1}, 4, v{HT+3}
    v_xor_b32 v{VDMA+2}, 64, v{VDMA+1}
    v_mov_b32 v{VDMA+3}, v{VDMA+1}
    s_cmp_eq_u32 s50, 1
    s_cbranch_scc0 {name}_h0
    v_mov_b32 v{VDMA+3}, v{VDMA+2}
    {name}_h0:
    s_waitcnt lgkmcnt(0)
    s_mov_b32 s36, s4
    s_and_b32 s37, s5, 0xffff
    s_mov_b32 s38, 2621440
    s_mov_b32 s39, 0x20000
    s_mov_b32 s26, 2211840
    s_cmp_eq_u32 s51, 0
    s_cselect_b32 s24, s6, s12
    s_cselect_b32 s25, s7, s13
    s_cselect_b32 s26, 2457600, s26
    s_and_b32 s25, s25, 0xffff
    s_mov_b32 s27, 0x20000
    s_mov_b32 s28, s10
    s_and_b32 s29, s11, 0xffff
    s_mov_b32 s30, {WS_SIZE}
    s_mov_b32 s31, 0x20000
    s_mov_b32 s40, s18
    s_and_b32 s41, s19, 0xffff
    s_mov_b32 s42, 1280
    s_mov_b32 s43, 0x20000
    s_mov_b32 s21, 0
    s_lshl_b32 s67, s64, 6
    s_lshr_b32 s69, s3, 5
    s_and_b32 s63, s3, 31
    s_lshl_b32 s60, s50, 5
    s_add_u32 s63, s63, s60                ; kb
    s_mov_b32 s34, 2211840
    s_cmp_lt_u32 s63, 20
    s_cselect_b32 s32, s8, s16
    s_cselect_b32 s33, s9, s17
    s_cselect_b32 s34, 819200, s34
    s_cselect_b32 s60, 0, 20
    s_and_b32 s33, s33, 0xffff
    s_mov_b32 s35, 0x20000
    s_sub_u32 s60, s63, s60
    s_mul_i32 s60, s60, 40960
    s_mul_i32 s61, s69, 160
    s_add_u32 s44, s60, s61
    s_mul_i32 s60, s69, 74
    s_add_u32 s60, s60, s63
    s_mul_i32 s60, s60, 5120
    s_add_u32 s45, s60, {WS_WF}
    s_cmp_lt_u32 s63, 74
    s_cselect_b32 s44, s44, 0x80000000
    s_cselect_b32 s45, s45, 0x80000000
    s_add_u32 s46, s45, 4096
    s_mul_i32 s47, s50, 5120
    s_add_u32 s47, s47, {RL_BASE}
    s_and_b32 s60, s3, 15
    s_lshl_b32 s60, s60, 3
    s_add_u32 s60, s60, s52
    s_lshl_b32 s61, s50, 1
    s_add_u32 s49, s60, s61
    s_cmp_eq_u32 s70, 1
    s_cbranch_scc1 {name}_hA
    s_cmp_eq_u32 s50, 3
    s_cbranch_scc1 {name}_hC
    s_branch {name}_hB
    """)

    def dma_sub(halo):
        A(f"{name}_dma{int(halo)}:")
        A("s_add_u32 s68, s23, s21")
        for i in range(4):
            A(f"""
            s_add_u32 s69, s20, {i*10240}
            s_add_u32 m0, s68, {i*1024}
            buffer_load_dwordx4 v{VDMA+1+(i&1)}, s[36:39], s69 offen lds
            """)
        if halo:
            A(f"""
            s_add_u32 m0, s48, s21
            buffer_load_dwordx4 v{VDMA+3}, s[36:39], s22 offen lds
            s_add_u32 s22, s22, 128
            """)
        A("s_add_u32 s68, s71, s21")
        A("s_mov_b64 exec, s[90:91]")
        for i in range(8):
            A(f"""
            s_add_u32 m0, s68, {i*960}
            buffer_load_dwordx4 v{VDMA}, s[24:27], s{72+i} offen lds
            s_add_u32 s{72+i}, s{72+i}, s67
            """)
        A("s_mov_b64 exec, -1")
        A(f"""
        s_add_u32 s20, s20, 128
        s_add_u32 s21, s21, {STAGE}
        s_cmp_eq_u32 s21, {3*STAGE}
        s_cselect_b32 s21, 0, s21
        s_setpc_b64 s[88:89]
        """)
    dma_sub(False)
    dma_sub(True)

    GX = HT + 8
    G = [HT + 24, HT + 25]
    T2 = HT + 28

    def aux_loads(rl):
        A(f"""
        s_mul_i32 s61, s49, 1280
        v_lshlrev_b32 v{HT}, 2, v{VL}
        buffer_load_dwordx4 v[{GX}:{GX+3}], v{VLANE16}, s[36:39], s61 offen
        buffer_load_dword v{GX+12}, v{HT}, s[36:39], s61 offen offset:1024
        buffer_load_dwordx4 v[{GX+4}:{GX+7}], v{VLANE16}, s[36:39], s61 offen offset:1280
        buffer_load_dword v{GX+13}, v{HT}, s[36:39], s61 offen offset:2304
        buffer_load_dwordx4 v[{GX+8}:{GX+11}], v{VLANE16}, s[40:43], 0 offen
        buffer_load_dword v{GX+14}, v{HT}, s[40:43], 0 offen offset:1024
        """)
        if rl:
            for i in range(5):
                A(f"""
                v_add_u32 v{HT+1}, {64*i}, v{VL}
                v_mul_u32_u24 v{HT+2}, 205, v{HT+1}
                v_lshrrev_b32 v{HT+2}, 11, v{HT+2}
                v_mul_u32_u24 v{HT+3}, 10, v{HT+2}
                v_sub_u32 v{HT+3}, v{HT+1}, v{HT+3}
                v_mul_u32_u24 v{HT+2}, 1280, v{HT+2}
                v_lshl_add_u32 v{HT+2}, v{HT+3}, 4, v{HT+2}
                s_add_u32 m0, s47, {i*1024}
                buffer_load_dwordx4 v{HT+2}, s[32:35], s44 offen lds
                """)
        return 11 if rl else 6

    def aux_proc(rl):
        n = 0
        if rl:
            A(f"""
            v_lshrrev_b32 v{HT}, 2, v{VL}              ; 4g + rr  (l>>2)
            v_mul_u32_u24 v{HT}, 160, v{HT}
            v_and_b32 v{HT+1}, 3, v{VL}
            v_lshl_add_u32 v{HT}, v{HT+1}, 3, v{HT}
            v_add_u32 v{HT}, s47, v{HT}
            """)
            for j in range(5):
                b = T2 + 24 + 4 * j
                A(f"ds_read_b64_tr_b16 v[{b}:{b+1}], v{HT} offset:{j*32}")
                A(f"ds_read_b64_tr_b16 v[{b+2}:{b+3}], v{HT} offset:{j*32 + 2560}")
            for j in range(5):
                b = T2 + 24 + 4 * j
                A(f"s_waitcnt lgkmcnt({8 - 2*j})")
                if j < 4:
                    A(f"buffer_store_dwordx4 v[{b}:{b+3}], v{VLANE16}, s[28:31], s45 offen offset:{j*1024}{ST}")
                else:
                    A(f"buffer_store_dwordx4 v[{b}:{b+3}], v{VLANE16}, s[28:31], s46 offen{ST}")
            n += 5
        A("s_mov_b32 s68, 0xffff0000")
        for r in range(2):
            for i in range(5):
                x = GX + 4 * r + i if i < 4 else GX + 12 + r
                gw = GX + 8 + i if i < 4 else GX + 14
                t = T2 + 4 * i
                A(f"""
                v_lshlrev_b32 v{t}, 16, v{x}
                v_and_b32 v{t+1}, s68, v{x}
                v_lshlrev_b32 v{t+2}, 16, v{gw}
                v_and_b32 v{t+3}, s68, v{gw}
                v_pk_mul_f32 v[{t}:{t+1}], v[{t}:{t+1}], v[{t+2}:{t+3}]
                v_cvt_pk_bf16_f32 v{t}, v{t}, v{t+1}
                v_and_b32 v{t+1}, s68, v{t}
                v_lshlrev_b32 v{t}, 16, v{t}
                """)
            A(f"""
            v_pk_add_f32 v[{T2}:{T2+1}], v[{T2}:{T2+1}], v[{T2+4}:{T2+5}]
            v_pk_add_f32 v[{T2+8}:{T2+9}], v[{T2+8}:{T2+9}], v[{T2+12}:{T2+13}]
            v_pk_add_f32 v[{T2}:{T2+1}], v[{T2}:{T2+1}], v[{T2+16}:{T2+17}]
            v_pk_add_f32 v[{T2}:{T2+1}], v[{T2}:{T2+1}], v[{T2+8}:{T2+9}]
            v_add_f32 v{G[r]}, v{T2}, v{T2+1}
            """)
        for sh in (1, 2, 4, 8):
            for r in range(2):
                A(f"v_add_f32_dpp v{G[r]}, v{G[r]}, v{G[r]} row_ror:{sh} row_mask:0xf bank_mask:0xf")
        for swap in ("v_permlane16_swap_b32", "v_permlane32_swap_b32"):
            for r in range(2):
                A(f"v_mov_b32 v{T2+r}, v{G[r]}")
            for r in range(2):
                A(f"{swap} v{T2+r}, v{G[r]}")
            for r in range(2):
                A(f"v_add_f32 v{G[r]}, v{G[r]}, v{T2+r}")
        for r in range(2):
            A(f"""
            v_cvt_pk_bf16_f32 v{G[r]}, v{G[r]}, v{G[r]}
            v_lshlrev_b32 v{G[r]}, 16, v{G[r]}
            v_mul_f32 v{G[r]}, 0xbfb8aa3b, v{G[r]}
            v_exp_f32 v{G[r]}, v{G[r]}
            v_add_f32 v{G[r]}, 1.0, v{G[r]}
            v_rcp_f32 v{G[r]}, v{G[r]}
            v_cvt_pk_bf16_f32 v{G[r]}, v{G[r]}, v{G[r]}
            v_lshlrev_b32 v{G[r]}, 16, v{G[r]}
            """)
        A(f"""
        s_lshl_b32 s60, s49, 2
        s_add_u32 s60, s60, {WS_G}
        v_cmp_eq_u32 vcc, 0, v{VL}
        v_mov_b32 v{HT}, 0
        v_mov_b32 v{HT+1}, 0x80000000
        v_cndmask_b32 v{HT}, v{HT+1}, v{HT}, vcc
        buffer_store_dwordx2 v[{G[0]}:{G[1]}], v{HT}, s[28:31], s60 offen{ST}
        """)
        return n + 1

    for var, halo, rl in (("hA", True, True), ("hB", False, True), ("hC", False, False)):
        nd = 13 if halo else 12
        q = VQ()
        A(f"{name}_{var}:")
        def D(k):
            A(f"s_call_b64 s[88:89], {name}_dma{int(halo)}")
            q.add(f"D{k}", nd)
        def B(k):
            A(f"s_waitcnt vmcnt({q.wait_for(f'D{k}')})")
            A("s_barrier")
        D(0); D(1); B(0)
        D(2); q.add("aux", aux_loads(rl)); B(1)
        D(3); B(2)
        D(4); B(3)
        D(5); q.add("st", aux_proc(rl)); B(4)
        D(6); B(5)
        D(7); B(6)
        D(8); B(7)
        D(9); B(8)
        B(9)
        A("s_endpgm")

    A(f"""
    {name}_compute:
    s_lshl_b32 s60, s58, 2
    s_cmp_eq_u32 s58, 3
    s_cselect_b32 s60, 11, s60
    s_mul_i32 s61, s58, 3
    s_cmp_eq_u32 s56, 1
    s_cselect_b32 s60, s61, s60
    s_and_b32 s61, s58, 1
    s_lshl_b32 s61, s61, 3
    s_lshr_b32 s62, s58, 1
    s_lshl_b32 s62, s62, 2
    s_add_u32 s61, s61, s62
    s_cmp_eq_u32 s51, 0
    s_cselect_b32 s59, s61, s60
    """)
    A(f"""
    v_and_b32 v{VT}, 15, v{VL}                 ; mi
    v_lshrrev_b32 v{VT+1}, 4, v{VL}            ; g
    v_lshrrev_b32 v{VT+2}, 1, v{VT}            ; mi>>1
    v_xor_b32 v{VT+3}, v{VT+1}, v{VT+2}
    v_lshlrev_b32 v{VT+3}, 4, v{VT+3}
    v_lshl_add_u32 v{VXH}, v{VT}, 7, v{VT+3}
    v_xor_b32 v{VXH+1}, 64, v{VXH}
    s_lshl_b32 s60, s57, 13
    s_add_u32 s60, s60, 2048
    v_add_u32 v{VXA}, s60, v{VXH}
    v_add_u32 v{VXA+1}, s60, v{VXH+1}
    v_lshrrev_b32 v{VT+2}, 1, v{VT+1}          ; g1
    v_and_b32 v{VT+3}, 1, v{VT+1}              ; g0
    v_lshrrev_b32 v{VT+4}, 3, v{VT}            ; rr>>1
    v_lshl_add_u32 v{VT+4}, v{VT+3}, 1, v{VT+4}
    v_lshl_add_u32 v{VT+4}, v{VT+2}, 3, v{VT+4}    ; slot>>1
    v_mul_u32_u24 v{VT+4}, 960, v{VT+4}
    v_and_b32 v{VT+5}, 3, v{VT}
    v_lshl_add_u32 v{VT+4}, v{VT+5}, 3, v{VT+4}
    v_add_u32 v{VT+4}, {XREG}, v{VT+4}
    v_bfe_u32 v{VT+5}, v{VT}, 2, 1
    v_cmp_eq_u32 vcc, 1, v{VT+5}
    s_cmp_eq_u32 s51, 0
    s_cselect_b32 s62, 12, 14
    s_and_b32 s63, s53, 1
    s_cmp_eq_u32 s51, 0
    s_cselect_b32 s63, s63, 0
    """)
    for j in range(4):
        A(f"""
        s_add_u32 s69, s59, {j}
        s_mul_i32 s60, s69, 13
        s_lshr_b32 s60, s60, 6
        s_mul_i32 s61, s60, 5
        s_sub_u32 s61, s69, s61                ; e
        s_sub_u32 s61, s61, s63
        s_lshl_b32 s78, s60, 2
        s_add_u32 s78, s78, s61
        s_cmp_eq_u32 s51, 0
        s_cselect_b32 s78, s78, s69
        s_cselect_b32 s79, s61, 0
        s_xor_b32 s77, s78, 1
        s_add_u32 s77, s77, s62
        s_add_u32 s76, s60, 24
        s_add_u32 s69, s60, 27
        s_cmp_gt_u32 s79, 3
        s_cselect_b32 s78, s76, s78
        s_cselect_b32 s77, s69, s77
        s_lshl_b32 s78, s78, 5
        s_lshl_b32 s77, s77, 5
        v_mov_b32 v{VT+6}, s78
        v_mov_b32 v{VT+7}, s77
        v_cndmask_b32 v{VT+6}, v{VT+6}, v{VT+7}, vcc
        v_add_u32 v{VW+j}, v{VT+6}, v{VT+4}
        """)
    for i in range(72):
        A(f"v_mov_b32 v{ACC+i}, 0")
    A(f"""
    s_waitcnt lgkmcnt(0)
    s_mov_b32 s28, s10
    s_and_b32 s29, s11, 0xffff
    s_mov_b32 s30, {WS_SIZE}
    s_mov_b32 s31, 0x20000
    s_mov_b32 s44, s14
    s_and_b32 s45, s15, 0xffff
    s_mov_b32 s46, 3456
    s_mov_b32 s47, 0x20000
    """)
    if prefetch:
        A(f"""
        s_and_b32 s60, s2, 7
        s_lshr_b32 s61, s2, 3                  ; idx
        s_lshr_b32 s62, s60, 1                 ; cq
        s_and_b32 s60, s60, 1                  ; M half
        v_mul_u32_u24 v{VT}, 57, v{VL}
        v_lshrrev_b32 v{VT}, 9, v{VT}          ; st = l/9
        v_mul_u32_u24 v{VT+1}, 9, v{VT}
        v_sub_u32 v{VT+1}, v{VL}, v{VT+1}      ; l9
        v_add_u32 v{VT}, 3, v{VT}              ; stage
        s_cmp_lt_u32 s50, 4
        s_cbranch_scc0 {name}_pfW
        s_lshl_b32 s63, s61, 2
        s_add_u32 s63, s63, s50
        s_mul_i32 s63, s63, 9
        s_lshl_b32 s60, s60, 10
        s_add_u32 s63, s63, s60
        s_sub_u32 s63, s63, 16
        v_add_u32 v{VT+2}, s63, v{VT+1}
        v_max_i32 v{VT+2}, 0, v{VT+2}
        v_mul_u32_u24 v{VT+2}, 1280, v{VT+2}
        v_lshl_add_u32 v{VT+2}, v{VT}, 7, v{VT+2}
        s_mov_b32 s40, s4
        s_and_b32 s41, s5, 0xffff
        s_mov_b32 s42, 2621440
        s_branch {name}_pfgo
        {name}_pfW:
        s_lshl_b32 s63, s61, 1
        s_and_b32 s60, s50, 1
        s_add_u32 s63, s63, s60
        v_lshlrev_b32 v{VT}, 6, v{VT}
        v_add_u32 v{VT}, s63, v{VT}            ; k row
        s_cmp_lt_u32 s50, 6
        s_cbranch_scc0 {name}_pfW1
        v_mul_u32_u24 v{VT+2}, 11, v{VT+1}
        v_lshrrev_b32 v{VT+2}, 5, v{VT+2}      ; grp = l9/3
        v_mul_u32_u24 v{VT+3}, 896, v{VT+2}    ; grp*(1280-384)
        v_lshl_add_u32 v{VT+3}, v{VT+1}, 7, v{VT+3}
        v_mul_u32_u24 v{VT+2}, 3840, v{VT}
        s_mul_i32 s60, s62, 320
        s_and_b32 s60, s60, 0xffffff80
        v_add3_u32 v{VT+2}, v{VT+2}, v{VT+3}, s60
        s_mov_b32 s40, s6
        s_and_b32 s41, s7, 0xffff
        s_mov_b32 s42, 2457600
        s_branch {name}_pfgo
        {name}_pfW1:
        s_mul_i32 s60, s62, 28
        s_lshr_b32 s63, s62, 1
        s_lshl_b32 s63, s63, 1
        s_sub_u32 s60, s60, s63
        s_lshl_b32 s60, s60, 5
        s_and_b32 s60, s60, 0xffffff80
        v_min_u32 v{VT+1}, 7, v{VT+1}
        v_mul_u32_u24 v{VT+2}, 3456, v{VT}
        v_lshl_add_u32 v{VT+2}, v{VT+1}, 7, v{VT+2}
        v_add_u32 v{VT+2}, s60, v{VT+2}
        s_mov_b32 s40, s12
        s_and_b32 s41, s13, 0xffff
        s_mov_b32 s42, 2211840
        {name}_pfgo:
        s_mov_b32 s43, 0x20000
        v_cmp_gt_u32 vcc, 63, v{VL}
        v_mov_b32 v{VT+3}, 0x80000000
        v_cndmask_b32 v{VT+2}, v{VT+3}, v{VT+2}, vcc
        buffer_load_dword v{VPF}, v{VT+2}, s[40:43], 0 offen
        """)
    A(f"""
    s_add_u32 s60, s55, s59
    s_lshl_b32 s60, s60, 5
    v_lshrrev_b32 v{VT}, 4, v{VL}
    v_lshlrev_b32 v{VT}, 3, v{VT}
    """)
    for j in range(4):
        A(f"buffer_load_dwordx2 v[{VBRAW+2*j}:{VBRAW+2*j+1}], v{VT}, s[44:47], s60 offen offset:{j*32}")
    A(f"""
    s_mov_b32 s32, s98
    s_and_b32 s33, s99, 0xffff
    s_mov_b32 s34, 256
    s_mov_b32 s35, 0x20000
    s_mov_b32 s36, s96
    s_and_b32 s37, s97, 0xffff
    s_mov_b32 s38, {OUT_BYTES}
    s_mov_b32 s39, 0x20000
    s_and_b32 s60, s2, 7
    s_lshr_b32 s61, s2, 3
    s_lshr_b32 s20, s60, 1
    s_lshl_b32 s20, s20, 3
    s_lshr_b32 s62, s61, 2
    s_add_u32 s20, s20, s62                ; t2
    s_and_b32 s21, s60, 1
    s_lshl_b32 s21, s21, 2
    s_and_b32 s62, s61, 3
    s_add_u32 s21, s21, s62                ; u2
    s_mul_i32 s60, s50, 9
    s_add_u32 s60, s60, 2
    s_mul_i32 s61, s50, 10
    s_cmp_lt_u32 s50, 2
    s_cselect_b32 s60, s61, s60            ; kb0
    s_mul_i32 s22, s20, 74
    s_add_u32 s22, s22, s60
    s_lshl_b32 s22, s22, 12
    s_mul_i32 s23, s21, 74
    s_add_u32 s23, s23, s60
    s_mul_i32 s23, s23, 5120
    s_add_u32 s23, s23, {WS_WF}
    s_mul_i32 s24, s50, 5120
    s_cmp_eq_u32 s50, 0
    s_cselect_b32 s25, 6, 99
    s_mov_b32 s76, 0
    s_mov_b32 s77, 0
    s_mov_b32 s49, {STAGE}
    """)
    classes = {"c4": (4, ()), "c4a": (4, (0, 1)), "c4b": (4, (2, 3)), "c4c": (4, (1,)),
               "c3a": (3, (0, 1)), "c3b": (3, (2,)), "c3": (3, ())}
    amap = {0: "c4", 1: "c4", 2: "c4a", 3: "c4b", 4: "c4b", 5: "c4c", 6: "c3a", 7: "c3b"}
    A(f"""
    s_cmp_eq_u32 s51, 0
    s_cbranch_scc1 {name}_dispA
    s_cmp_eq_u32 s56, 1
    s_cbranch_scc1 {name}_c3
    s_cmp_lt_u32 s58, 2
    s_cbranch_scc1 {name}_c4
    s_branch {name}_c3
    {name}_dispA:
    """)
    for w in range(2, 8):
        A(f"s_cmp_eq_u32 s50, {w}\ns_cbranch_scc1 {name}_{amap[w]}")
    A(f"s_branch {name}_c4")

    def reads(fs, kk, nc, halo):
        out = []
        for j in range(nc):
            b = wfrag(fs, j)
            out.append(f"ds_read_b64_tr_b16 v[{b}:{b+1}], v{VW+j} offset:{kk*15360}")
            out.append(f"ds_read_b64_tr_b16 v[{b+2}:{b+3}], v{VW+j} offset:{kk*15360 + 3840}")
            if j == 0:
                for i in range(4):
                    out.append(f"ds_read_b128 {R(xfrag(fs, i))}, v{VXA+kk} offset:{i*2048}")
        if halo:
            out.append(f"ds_read_b128 {R(xfrag(fs, 4))}, v{VXH+kk}")
        return out

    def mfmas(fs, nc, halo):
        out = []
        for j in range(nc):
            for i in range(4):
                a = ACC + (i * 4 + j) * 4
                out.append(f"v_mfma_f32_16x16x32_bf16 {R(a)}, {R(wfrag(fs, j))}, {R(xfrag(fs, i))}, {R(a)}")
        for hi, j in enumerate(halo):
            a = ACC + (16 + hi) * 4
            out.append(f"v_mfma_f32_16x16x32_bf16 {R(a)}, {R(wfrag(fs, j))}, {R(xfrag(fs, 4))}, {R(a)}")
        return out

    def wdma(slot):
        return [f"s_add_u32 m0, s24, {slot*40960}"] + \
               [f"buffer_load_dwordx4 v{VLANE16}, s[28:31], s23 offen offset:{j*1024}{LD} lds" for j in range(4)] + \
               [f"s_add_u32 m0, s24, {slot*40960 + 4096}", "s_add_u32 s26, s23, 4096",
                f"buffer_load_dwordx4 v{VLANE16}, s[28:31], s26 offen{LD} lds", "s_add_u32 s23, s23, 5120"]

    A(f"""
    {name}_wfcheck:
    s_mov_b32 s26, 0x01010101
    s_mov_b32 s27, 0
    {name}_wfloop:
    s_waitcnt vmcnt(0) lgkmcnt(0)
    v_and_b32 v{VPF}, s26, v{VPF}
    v_cmp_ne_u32 vcc, s26, v{VPF}
    s_cbranch_vccz {name}_wfok
    s_add_u32 s27, s27, 1
    s_cmp_gt_u32 s27, 0x40000
    s_cbranch_scc1 {name}_wfok
    s_sleep 2
    v_and_b32 v{VPF+1}, 7, v{VL}
    v_lshlrev_b32 v{VPF+1}, 2, v{VPF+1}
    s_lshl_b32 s60, s21, 5
    buffer_load_dword v{VPF}, v{VPF+1}, s[32:35], s60 offen sc0 sc1
    s_branch {name}_wfloop
    {name}_wfok:
    """)
    for l in wdma(2) + wdma(3): A(l)
    A("s_setpc_b64 s[88:89]")

    for cname, (nc, halo) in classes.items():
        A(f"{name}_{cname}:")
        A("s_barrier")
        if stamp:
            A("s_memrealtime s[82:83]")
        for l in reads(F0, 0, nc, halo): A(l)
        lab = f"{name}_{cname}_loop"
        A(f"{lab}:")
        A("s_waitcnt lgkmcnt(0)")
        interleave(A, mfmas(F0, nc, halo), [[l] for l in reads(F1, 1, nc, halo)])
        A(f"""
        s_cmp_eq_u32 s77, {2*STAGE}
        s_cselect_b32 s78, {(-2*STAGE) & 0xffffffff}, s49
        s_add_u32 s77, s77, s78
        s_waitcnt lgkmcnt(0)
        s_barrier
        """)
        fill = [[f"v_add_u32 v{VW}, s78, v{VW}", f"v_add_u32 v{VXA}, s78, v{VXA}"]]
        f2 = [f"v_add_u32 v{VXA+1}, s78, v{VXA+1}"]
        if halo:
            f2.append(f"v_add_u32 v{VXH+1}, s78, v{VXH+1}")
        seq = []
        for l in reads(F0, 0, nc, halo):
            for j in range(1, nc):
                if f"v{VW+j} offset:0" in l and l.endswith("offset:0"):
                    seq.append(f"v_add_u32 v{VW+j}, s78, v{VW+j}")
            if halo and l.endswith(f"v{VXH}"):
                seq.append(f"v_add_u32 v{VXH}, s78, v{VXH}")
            seq.append(l)
        for k in range(0, len(seq), 2):
            fill.append(seq[k:k + 2])
        fill.append(f2)
        interleave(A, mfmas(F1, nc, halo), fill)
        A("s_add_u32 s76, s76, 1")
        if cname in ("c4", "c3"):
            A(f"""
            s_cmp_eq_u32 s76, s25
            s_cbranch_scc0 {lab}_nf
            v_mov_b32 v{VPF+1}, 1
            v_mov_b32 v{VPF}, 0
            s_mov_b64 exec, 1
            buffer_store_byte v{VPF+1}, v{VPF}, s[32:35], s3 offen sc0 sc1
            s_mov_b64 exec, -1
            {lab}_nf:
            """)
        A(f"""
        s_cmp_eq_u32 s76, 9
        s_cbranch_scc0 {lab}_nw
        v_and_b32 v{VPF+1}, 7, v{VL}
        v_lshlrev_b32 v{VPF+1}, 2, v{VPF+1}
        s_lshl_b32 s60, s21, 5
        buffer_load_dword v{VPF}, v{VPF+1}, s[32:35], s60 offen sc0 sc1
        {lab}_nw:
        s_cmp_lt_u32 s76, 10
        s_cbranch_scc1 {lab}
        """)
        if stamp:
            A("s_memrealtime s[84:85]")
        A(f"s_call_b64 s[88:89], {name}_wfcheck")
        if halo or cname == "c4":
            if cname == "c4":
                A(f"s_cmp_eq_u32 s51, 1\ns_cbranch_scc1 {name}_epiB4")
            A(f"""
            v_and_b32 v{VTA}, 15, v{VL}
            v_lshrrev_b32 v{VTA+1}, 4, v{VL}
            v_mul_u32_u24 v{VTA}, {RSQ}, v{VTA}
            v_lshl_add_u32 v{VTA}, v{VTA+1}, 3, v{VTA}
            s_lshl_b32 s60, s59, 5
            v_add_u32 v{VTA}, s60, v{VTA}
            s_lshl_b32 s60, s57, 2
            s_add_u32 s60, s60, 1
            s_mul_i32 s60, s60, {16*RSQ}
            v_add_u32 v{VTA+1}, s60, v{VTA}
            """)
            k = 0
            for j in range(nc):
                for i in range(4):
                    a = ACC + (i * 4 + j) * 4
                    t = F0 + 2 * k; k += 1
                    A(f"v_cvt_pk_bf16_f32 v{t}, v{a}, v{a+1}")
                    A(f"v_cvt_pk_bf16_f32 v{t+1}, v{a+2}, v{a+3}")
                    A(f"ds_write_b64 v{VTA+1}, v[{t}:{t+1}] offset:{i*16*RSQ + j*32}")
            for hi, j in enumerate(halo):
                a = ACC + (16 + hi) * 4
                t = F0 + 2 * k; k += 1
                A(f"v_cvt_pk_bf16_f32 v{t}, v{a}, v{a+1}")
                A(f"v_cvt_pk_bf16_f32 v{t+1}, v{a+2}, v{a+3}")
                A(f"ds_write_b64 v{VTA}, v[{t}:{t+1}] offset:{j*32}")
            A(f"s_branch {name}_attn")
        else:
            A(f"s_branch {name}_epiB3")

    A(f"{name}_attn:")
    mi, g = VTA, VTA + 1
    vQ, vK0, vK1, vV = VTA + 2, VTA + 3, VTA + 4, VTA + 5
    vmlo, vmhi, vsh = VTA + 6, VTA + 7, VTA + 8
    A(f"""
    v_and_b32 v{mi}, 15, v{VL}
    v_lshrrev_b32 v{g}, 4, v{VL}
    s_mul_i32 s60, s50, {16*RSQ}
    v_mul_u32_u24 v{vK0}, {RSQ}, v{mi}
    v_lshl_add_u32 v{vK0}, v{g}, 4, v{vK0}
    v_add_u32 v{vK0}, s60, v{vK0}
    v_add_u32 v{vQ}, {16*RSQ}, v{vK0}
    v_add_u32 v{vK0}, 160, v{vK0}
    v_add_u32 v{vK1}, 160, v{vQ}
    v_lshrrev_b32 v{VTA+9}, 2, v{mi}
    v_lshl_add_u32 v{VTA+9}, v{g}, 2, v{VTA+9}
    v_mul_u32_u24 v{vV}, {RSQ}, v{VTA+9}
    v_and_b32 v{VTA+9}, 3, v{mi}
    v_lshl_add_u32 v{vV}, v{VTA+9}, 3, v{vV}
    v_add_u32 v{vV}, s60, v{vV}
    v_add_u32 v{vV}, 320, v{vV}
    v_cmp_gt_u32 vcc, 3, v{g}
    v_cndmask_b32 v{vmlo}, 0, -1, vcc
    v_cmp_gt_u32 vcc, 2, v{g}
    v_cndmask_b32 v{vmhi}, 0, -1, vcc
    v_and_b32 v{VTA+9}, 1, v{mi}
    v_lshlrev_b32 v{vsh}, 4, v{VTA+9}
    v_cmp_eq_u32 s[60:61], 1, v{VTA+9}            ; Mpar
    v_lshrrev_b32 v{VTA+9}, 1, v{mi}              ; qe
    v_lshlrev_b32 v{VTA+10}, 1, v{g}
    v_cmp_le_u32 s[62:63], v{VTA+10}, v{VTA+9}
    v_add_u32 v{VTA+10}, 1, v{VTA+10}
    v_cmp_le_u32 s[64:65], v{VTA+10}, v{VTA+9}
    v_cmp_le_u32 s[70:71], 1, v{g}               ; Mg1
    v_cmp_le_u32 s[72:73], 2, v{g}               ; Mg2
    v_cmp_le_u32 s[74:75], 3, v{g}               ; Mg3
    s_add_u32 s76, s52, s50
    s_not_b64 s[66:67], s[62:63]
    s_not_b64 s[68:69], s[64:65]
    s_cmp_eq_u32 s76, 0
    s_cselect_b64 s[66:67], s[66:67], 0          ; Minv0
    s_cselect_b64 s[68:69], s[68:69], 0          ; Minv1
    s_waitcnt lgkmcnt(0)
    s_barrier
    """)
    Q = lambda h: 0 + 4 * h
    K0 = lambda h: 16 + 4 * h
    K1 = lambda h: 32 + 4 * h
    V = lambda b: 48 + 4 * b
    S0 = lambda h: 68 + 4 * h
    S1 = lambda h: 84 + 4 * h
    L = lambda h, t: 100 + 2 * h + t
    M = lambda h: 108 + h
    T = lambda h: 112 + h
    P = lambda h: 116 + 4 * h
    O = lambda n: 0 + 4 * n
    PK = 132
    for h in range(4):
        A(f"ds_read2_b64 {R(Q(h))}, v{vQ} offset0:{h*5} offset1:{h*5+1}")
        A(f"ds_read2_b64 {R(K0(h))}, v{vK0} offset0:{h*5} offset1:{h*5+1}")
        A(f"ds_read2_b64 {R(K1(h))}, v{vK1} offset0:{h*5} offset1:{h*5+1}")
    for h in range(4):
        A(f"s_waitcnt lgkmcnt({9 - 3*h})")
        q = Q(h)
        A(f"""
        v_and_b32 v{q}, v{q}, v{vmlo}
        v_and_b32 v{q+1}, v{q+1}, v{vmlo}
        v_and_b32 v{q+2}, v{q+2}, v{vmhi}
        v_and_b32 v{q+3}, v{q+3}, v{vmhi}
        v_mfma_f32_16x16x32_bf16 {R(S0(h))}, {R(K0(h))}, {R(q)}, 0
        v_mfma_f32_16x16x32_bf16 {R(S1(h))}, {R(K1(h))}, {R(q)}, 0
        """)
    for b in range(5):
        A(f"ds_read_b64_tr_b16 v[{V(b)}:{V(b)+1}], v{vV} offset:{b*32}")
        A(f"ds_read_b64_tr_b16 v[{V(b)+2}:{V(b)+3}], v{vV} offset:{b*32 + 16*RSQ}")
    A(f"s_mov_b32 s77, 0xffff0000")
    A(f"s_mov_b32 s78, {SCALE}")
    A(f"s_mov_b32 s79, 0xce6e6b28")
    A(f"v_mov_b32 v{VTA+11}, s79")
    Mc = ["s[62:63]", "s[64:65]"]; Minv = ["s[66:67]", "s[68:69]"]
    for h in range(4):
        for t in range(2):
            A(f"v_cndmask_b32 v{S0(h)+2*t}, v{S0(h)+2*t}, v{S0(h)+2*t+1}, s[60:61]")
            A(f"v_cndmask_b32 v{S1(h)+2*t}, v{S1(h)+2*t}, v{S1(h)+2*t+1}, s[60:61]")
    for h in range(4):
        for t in range(2):
            A(f"v_cndmask_b32 v{L(h,t)}, v{S0(h)+2*t}, v{S1(h)+2*t}, {Mc[t]}")
    for h in range(4):
        l0, l1, t_ = L(h, 0), L(h, 1), T(h)
        A(f"""
        v_cvt_pk_bf16_f32 v{t_}, v{l0}, v{l1}
        v_lshlrev_b32 v{l0}, 16, v{t_}
        v_and_b32 v{l1}, s77, v{t_}
        v_mul_f32 v{l0}, s78, v{l0}
        v_mul_f32 v{l1}, s78, v{l1}
        v_cvt_pk_bf16_f32 v{t_}, v{l0}, v{l1}
        v_lshlrev_b32 v{l0}, 16, v{t_}
        v_and_b32 v{l1}, s77, v{t_}
        v_cndmask_b32 v{l0}, v{l0}, v{VTA+11}, {Minv[0]}
        v_cndmask_b32 v{l1}, v{l1}, v{VTA+11}, {Minv[1]}
        v_max_f32 v{M(h)}, v{l0}, v{l1}
        """)
    for swap in ("v_permlane16_swap_b32", "v_permlane32_swap_b32"):
        for h in range(4):
            A(f"v_mov_b32 v{T(h)}, v{M(h)}")
        for h in range(4):
            A(f"{swap} v{T(h)}, v{M(h)}")
        for h in range(4):
            A(f"v_max_f32 v{M(h)}, v{M(h)}, v{T(h)}")
    A(f"s_mov_b32 s79, {LOG2E}")
    for h in range(4):
        for t in range(2):
            A(f"v_sub_f32 v{L(h,t)}, v{L(h,t)}, v{M(h)}")
    for h in range(4):
        for t in range(2):
            A(f"v_mul_f32 v{L(h,t)}, s79, v{L(h,t)}")
    for h in range(4):
        for t in range(2):
            A(f"v_exp_f32 v{L(h,t)}, v{L(h,t)}")
    for h in range(4):
        A(f"v_add_f32 v{M(h)}, v{L(h,0)}, v{L(h,1)}")
    for swap in ("v_permlane16_swap_b32", "v_permlane32_swap_b32"):
        for h in range(4):
            A(f"v_mov_b32 v{T(h)}, v{M(h)}")
        for h in range(4):
            A(f"{swap} v{T(h)}, v{M(h)}")
        for h in range(4):
            A(f"v_add_f32 v{M(h)}, v{M(h)}, v{T(h)}")
    for h in range(4):
        A(f"v_rcp_f32 v{M(h)}, v{M(h)}")
    for h in range(4):
        for t in range(2):
            A(f"v_mul_f32 v{L(h,t)}, v{L(h,t)}, v{M(h)}")
    for h in range(4):
        for t in range(2):
            A(f"v_cvt_pk_bf16_f32 v{L(h,t)}, v{L(h,t)}, 0")
    for h in range(4):
        for t in range(2):
            A(f"v_lshlrev_b32 v{L(h,t)}, v{vsh}, v{L(h,t)}")
    for h in range(4):
        for t in range(2):
            A(f"v_cndmask_b32 v{P(h)+t}, v{L(h,t)}, 0, {Mc[t]}")
            A(f"v_cndmask_b32 v{P(h)+2+t}, 0, v{L(h,t)}, {Mc[t]}")
    A("s_waitcnt lgkmcnt(0)")
    for h in range(4):
        for e in range(2):
            A(f"v_mfma_f32_16x16x32_bf16 {R(O(2*h+e))}, {R(V(h+e))}, {R(P(h))}, 0")
    Mg = {1: "s[70:71]", 2: "s[72:73]", 3: "s[74:75]"}
    A(f"""
    s_lshr_b32 s60, s50, 2
    s_lshl_b32 s61, s54, 1
    s_add_u32 s60, s60, s61              ; t
    s_mul_i32 s60, s60, 74
    s_mul_i32 s61, s53, 5
    s_lshr_b32 s61, s61, 1
    s_add_u32 s60, s60, s61              ; t*74 + kb0
    s_lshl_b32 s60, s60, 2
    s_and_b32 s61, s50, 3
    s_add_u32 s60, s60, s61
    s_lshl_b32 s60, s60, 10
    s_add_u32 s61, s60, 4096
    s_add_u32 s62, s60, 8192
    """)
    A(f"v_cvt_pk_bf16_f32 v{PK}, v{O(0)}, v{O(0)+1}")
    A(f"v_cvt_pk_bf16_f32 v{PK+1}, v{O(0)+2}, v{O(0)+3}")
    for b in (1, 2, 3):
        lo, hi = O(2 * (b - 1) + 1), O(2 * b)
        for r in range(4):
            A(f"v_cndmask_b32 v{lo+r}, v{lo+r}, v{hi+r}, {Mg[b]}")
        A(f"v_cvt_pk_bf16_f32 v{PK+2*b}, v{lo}, v{lo+1}")
        A(f"v_cvt_pk_bf16_f32 v{PK+2*b+1}, v{lo+2}, v{lo+3}")
    A(f"v_cvt_pk_bf16_f32 v{PK+8}, v{O(7)}, v{O(7)+1}")
    A(f"v_cvt_pk_bf16_f32 v{PK+9}, v{O(7)+2}, v{O(7)+3}")
    A(f"""
    s_and_b32 s63, s53, 1
    s_cmp_eq_u32 s63, 1
    s_cbranch_scc1 {name}_ostodd
    buffer_store_dwordx4 v[{PK}:{PK+3}], v{VLANE16}, s[28:31], s60 offen{ST}
    buffer_store_dwordx4 v[{PK+4}:{PK+7}], v{VLANE16}, s[28:31], s61 offen{ST}
    buffer_store_dwordx2 v[{PK+8}:{PK+9}], v{VLANE16}, s[28:31], s62 offen{ST}
    s_branch {name}_done
    {name}_ostodd:
    buffer_store_dwordx2 v[{PK}:{PK+1}], v{VLANE16}, s[28:31], s60 offen offset:8{ST}
    buffer_store_dwordx4 v[{PK+2}:{PK+5}], v{VLANE16}, s[28:31], s61 offen{ST}
    buffer_store_dwordx4 v[{PK+6}:{PK+9}], v{VLANE16}, s[28:31], s62 offen{ST}
    s_branch {name}_done
    """)

    def mish_blocks(blks):
        def each(f):
            for (a, bias, dst, t) in blks:
                A(f(a, bias, dst, t))
        each(lambda a, b, d, t: f"v_cvt_pk_bf16_f32 v{t}, v{a}, v{a+1}\nv_cvt_pk_bf16_f32 v{t+1}, v{a+2}, v{a+3}")
        each(lambda a, b, d, t: f"v_lshlrev_b32 v{a}, 16, v{t}\nv_and_b32 v{a+1}, s77, v{t}\n"
                                f"v_lshlrev_b32 v{a+2}, 16, v{t+1}\nv_and_b32 v{a+3}, s77, v{t+1}")
        each(lambda a, b, d, t: f"v_pk_add_f32 v[{a}:{a+1}], v[{a}:{a+1}], v[{b}:{b+1}]\n"
                                f"v_pk_add_f32 v[{a+2}:{a+3}], v[{a+2}:{a+3}], v[{b+2}:{b+3}]")
        each(lambda a, b, d, t: f"v_cvt_pk_bf16_f32 v{t}, v{a}, v{a+1}\nv_cvt_pk_bf16_f32 v{t+1}, v{a+2}, v{a+3}")
        each(lambda a, b, d, t: f"v_lshlrev_b32 v{a}, 16, v{t}\nv_and_b32 v{a+1}, s77, v{t}\n"
                                f"v_lshlrev_b32 v{a+2}, 16, v{t+1}\nv_and_b32 v{a+3}, s77, v{t+1}")
        each(lambda a, b, d, t: f"v_pk_mul_f32 v[{t}:{t+1}], v[{a}:{a+1}], s[78:79]\n"
                                f"v_pk_mul_f32 v[{t+2}:{t+3}], v[{a+2}:{a+3}], s[78:79]")
        each(lambda a, b, d, t: "\n".join(f"v_exp_f32 v{t+r}, v{t+r}" for r in range(4)))
        each(lambda a, b, d, t: f"v_pk_add_f32 v[{t}:{t+1}], v[{t}:{t+1}], s[66:67]\n"
                                f"v_pk_add_f32 v[{t+2}:{t+3}], v[{t+2}:{t+3}], s[66:67]")
        each(lambda a, b, d, t: f"v_pk_fma_f32 v[{t}:{t+1}], v[{t}:{t+1}], v[{t}:{t+1}], s[66:67]\n"
                                f"v_pk_fma_f32 v[{t+2}:{t+3}], v[{t+2}:{t+3}], v[{t+2}:{t+3}], s[66:67]")
        each(lambda a, b, d, t: "\n".join(f"v_rcp_f32 v{t+r}, v{t+r}" for r in range(4)))
        each(lambda a, b, d, t: f"v_pk_fma_f32 v[{t}:{t+1}], v[{t}:{t+1}], v[{VC2}:{VC2+1}], s[66:67]\n"
                                f"v_pk_fma_f32 v[{t+2}:{t+3}], v[{t+2}:{t+3}], v[{VC2}:{VC2+1}], s[66:67]")
        each(lambda a, b, d, t: f"v_pk_mul_f32 v[{t}:{t+1}], v[{t}:{t+1}], v[{a}:{a+1}]\n"
                                f"v_pk_mul_f32 v[{t+2}:{t+3}], v[{t+2}:{t+3}], v[{a+2}:{a+3}]")
        each(lambda a, b, d, t: f"v_cvt_pk_bf16_f32 v{d}, v{t}, v{t+1}\nv_cvt_pk_bf16_f32 v{d+1}, v{t+2}, v{t+3}")

    def epiB_common():
        A(f"""
        s_mov_b32 s77, 0xffff0000
        s_mov_b32 s78, {LOG2E}
        s_mov_b32 s79, {LOG2E}
        s_mov_b32 s66, 1.0
        s_mov_b32 s67, 1.0
        v_mov_b32 v{VC2}, -2.0
        v_mov_b32 v{VC2+1}, -2.0
        s_add_u32 s60, s55, s59            ; fb0
        s_lshl_b32 s61, s54, 1
        s_add_u32 s61, s61, s57            ; t
        s_mul_i32 s61, s61, 74
        s_lshr_b32 s62, s60, 1
        s_add_u32 s61, s61, s62
        s_add_u32 s61, s61, 20
        s_lshl_b32 s61, s61, 12
        s_add_u32 s62, s61, 4096
        """)
        for j in range(4):
            A(f"v_lshlrev_b32 v{VBIAS+4*j}, 16, v{VBRAW+2*j}")
            A(f"v_and_b32 v{VBIAS+4*j+1}, s77, v{VBRAW+2*j}")
            A(f"v_lshlrev_b32 v{VBIAS+4*j+2}, 16, v{VBRAW+2*j+1}")
            A(f"v_and_b32 v{VBIAS+4*j+3}, s77, v{VBRAW+2*j+1}")

    def blk(i, j):
        return ACC + (i * 4 + j) * 4
    A(f"{name}_epiB4:")
    epiB_common()
    for i in range(4):
        d = VDB + 8 * i
        mish_blocks([(blk(i, j), VBIAS + 4 * j, d + 2 * j, VTB + 4 * j + 16 * (i % 2)) for j in range(4)])
        A(f"buffer_store_dwordx4 v[{d}:{d+3}], v{VLANE16}, s[28:31], s61 offen offset:{i*1024}{ST}")
        A(f"buffer_store_dwordx4 v[{d+4}:{d+7}], v{VLANE16}, s[28:31], s62 offen offset:{i*1024}{ST}")
    A(f"s_branch {name}_done")
    A(f"{name}_epiB3:")
    epiB_common()
    A(f"""
    s_and_b32 s63, s60, 1
    s_cmp_eq_u32 s63, 1
    s_cbranch_scc1 {name}_epiB3odd
    """)
    for i in range(4):
        d = VDB + 8 * i
        mish_blocks([(blk(i, j), VBIAS + 4 * j, d + 2 * j, VTB + 4 * j + 16 * (i % 2)) for j in range(3)])
        A(f"buffer_store_dwordx4 v[{d}:{d+3}], v{VLANE16}, s[28:31], s61 offen offset:{i*1024}{ST}")
        A(f"buffer_store_dwordx2 v[{d+4}:{d+5}], v{VLANE16}, s[28:31], s62 offen offset:{i*1024}{ST}")
    A(f"s_branch {name}_done")
    A(f"{name}_epiB3odd:")
    for i in range(4):
        d = VDB + 8 * i
        mish_blocks([(blk(i, j), VBIAS + 4 * j, d + 2 + 2 * j, VTB + 4 * j + 16 * (i % 2)) for j in range(3)])
        A(f"buffer_store_dwordx2 v[{d+2}:{d+3}], v{VLANE16}, s[28:31], s61 offen offset:{i*1024+8}{ST}")
        A(f"buffer_store_dwordx4 v[{d+4}:{d+7}], v{VLANE16}, s[28:31], s62 offen offset:{i*1024}{ST}")


    A(f"{name}_done:")
    if stamp:
        A("s_memrealtime s[86:87]")
    A(f"""
    s_waitcnt vmcnt(0) lgkmcnt(0)
    s_barrier
    """)
    for l in wdma(0) + wdma(1): A(l)
    A(f"""
    s_cmp_eq_u32 s50, 0
    s_cbranch_scc0 {name}_gate
    v_mov_b32 v1, 3
    v_mov_b32 v0, 0
    s_mov_b64 exec, 1
    buffer_store_byte v1, v0, s[32:35], s3 offen sc0 sc1
    s_mov_b64 exec, -1
    s_lshr_b32 s60, s20, 1
    s_lshl_b32 s60, s60, 4
    v_and_b32 v1, 3, v{VL}
    v_lshlrev_b32 v1, 2, v1
    s_mov_b32 s26, 0x02020202
    s_mov_b32 s27, 0
    {name}_poll:
    buffer_load_dword v2, v1, s[32:35], s60 offen sc0 sc1
    s_waitcnt vmcnt(0)
    v_and_b32 v2, s26, v2
    v_cmp_ne_u32 vcc, s26, v2
    s_cbranch_vccz {name}_gate
    s_add_u32 s27, s27, 1
    s_cmp_gt_u32 s27, 0x40000
    s_cbranch_scc1 {name}_gate
    s_sleep 1
    s_branch {name}_poll
    {name}_gate:
    s_barrier
    """)
    if stamp:
        A("s_memrealtime s[88:89]")
    AB = lambda b, i: 80 + 16 * b + 4 * i
    WB = lambda j: 128 + 4 * j
    V7, V5, VA = 148, 149, 150
    A(f"""
    s_lshl_b32 s60, s20, 6
    s_lshr_b32 s61, s50, 1
    s_lshl_b32 s61, s61, 4
    s_add_u32 s60, s60, s61
    v_and_b32 v{V5}, 15, v{VL}
    v_add_u32 v{V5}, s60, v{V5}
    v_lshlrev_b32 v{VA}, 2, v{V5}
    s_mov_b32 s61, {WS_G}
    buffer_load_dword v{V7}, v{VA}, s[28:31], s61 offen{LD}
    v_add_u32 v{VA}, s24, v{VLANE16}
    v_add_u32 v{VA+1}, 0x14000, v{VA}
    """)

    def aloads(b):
        return [f"buffer_load_dwordx4 {R(AB(b, i))}, v{VLANE16}, s[28:31], s22 offen offset:{i*1024}{LD}" for i in range(4)] + \
               ["s_add_u32 s22, s22, 4096"]

    def body2(n):
        q = VQ()
        q.add("pre", 1)
        for i in range(2):
            for l in aloads(i): A(l)
            q.add(f"A{i}", 4)
        for i in range(n):
            slot = (i + 2) % 4
            tags = [t for t in (f"A{i}", f"W{i}") if t in q.q]
            last = max(tags, key=lambda t: max(k for k, x in enumerate(q.q) if x == t))
            A(f"s_waitcnt vmcnt({q.wait_for(last)})")
            for j in range(5):
                off = (slot % 2) * 40960 + j * 1024
                A(f"ds_read_b128 {R(WB(j))}, v{VA + slot//2} offset:{off}")
            if i + 2 < n:
                for l in aloads((i + 2) % 3): A(l)
                q.add(f"A{i+2}", 4)
            mf = []
            for j in range(5):
                for ii in range(4):
                    acc = R((ii * 5 + j) * 4)
                    mf.append(f"v_mfma_f32_16x16x32_bf16 {acc}, {R(WB(j))}, {R(AB(i % 3, ii))}, {acc if i else 0}")
            A("s_waitcnt lgkmcnt(0)")
            fill = []
            if i + 4 < n:
                w = wdma(slot)
                fill = [w[0:2], w[2:3], w[3:4], w[4:5], w[5:]]
                q.add(f"W{i+4}", 5)
            interleave(A, mf, fill)

    A(f"""
    s_cmp_lt_u32 s50, 2
    s_cbranch_scc0 {name}_b9
    """)
    body2(10)
    A(f"s_branch {name}_epi2")
    A(f"{name}_b9:")
    body2(9)
    A(f"{name}_epi2:")
    if stamp:
        A("s_memrealtime s[90:91]")
    for i in range(4):
        for j in range(5):
            A(f"ds_write_b128 v{VA + i//2}, {R((i*5+j)*4)} offset:{(i%2)*40960 + j*1024}")
    A(f"""
    s_lshr_b32 s60, s50, 1
    s_mul_i32 s60, s60, 40960
    s_and_b32 s61, s50, 1
    s_mul_i32 s62, s61, 3072
    s_add_u32 s60, s60, s62
    v_add_u32 v{VA}, s60, v{VLANE16}
    s_waitcnt lgkmcnt(0)
    s_barrier
    """)
    for jj in range(3):
        if jj == 2:
            A(f"s_cmp_eq_u32 s61, 1\ns_cbranch_scc1 {name}_rd_done")
        for w in range(8):
            b = (jj * 8 + w) * 4
            A(f"ds_read_b128 v[{b}:{b+3}], v{VA} offset:{jj*1024 + w*5120}")
    A(f"{name}_rd_done:")
    V9, V11, VO = 151, 154, 156
    A(f"""
    s_waitcnt vmcnt(0)
    v_sub_f32 v{V9}, 1.0, v{V7}
    v_cvt_pk_bf16_f32 v{V9}, v{V9}, v{V9}
    v_lshlrev_b32 v{V9}, 16, v{V9}
    v_lshrrev_b32 v{VO}, 4, v{VL}
    v_mul_u32_u24 v{V11}, 1280, v{V5}
    v_lshl_add_u32 v{V11}, v{VO}, 3, v{V11}
    s_mul_i32 s60, s21, 160
    s_mul_i32 s62, s61, 96
    s_add_u32 s60, s60, s62
    s_mov_b32 s62, 0xffff0000
    s_waitcnt lgkmcnt(0)
    """)
    for jj in range(3):
        if jj == 2:
            A(f"s_cmp_eq_u32 s61, 1\ns_cbranch_scc1 {name}_fin")
        base = jj * 32
        a0, a1, b1 = base, base + 4, base + 8
        pk = lambda op, d, x, y: A(f"{op} v[{d}:{d+1}], v[{x}:{x+1}], v[{y}:{y+1}]")
        for h in (0, 2):
            pk("v_pk_add_f32", a0 + h, a0 + h, a1 + h)
            pk("v_pk_add_f32", b1 + h, b1 + h, b1 + 4 + h)
            pk("v_pk_add_f32", b1 + 8 + h, b1 + 8 + h, b1 + 12 + h)
            pk("v_pk_add_f32", b1 + 16 + h, b1 + 16 + h, b1 + 20 + h)
        for h in (0, 2):
            pk("v_pk_add_f32", b1 + h, b1 + h, b1 + 8 + h)
        for h in (0, 2):
            pk("v_pk_add_f32", b1 + h, b1 + h, b1 + 16 + h)
        for p in range(2):
            ra, rb = a0 + 2 * p, b1 + 2 * p
            t0, t1 = b1 + 8 + 2 * p, b1 + 12 + 2 * p
            A(f"""
            v_cvt_pk_bf16_f32 v{t0}, v{ra}, v{ra+1}
            v_cvt_pk_bf16_f32 v{t1}, v{rb}, v{rb+1}
            v_lshlrev_b32 v{ra}, 16, v{t0}
            v_and_b32 v{ra+1}, s62, v{t0}
            v_lshlrev_b32 v{rb}, 16, v{t1}
            v_and_b32 v{rb+1}, s62, v{t1}
            v_mul_f32 v{ra}, v{V7}, v{ra}
            v_mul_f32 v{ra+1}, v{V7}, v{ra+1}
            v_mul_f32 v{rb}, v{V9}, v{rb}
            v_mul_f32 v{rb+1}, v{V9}, v{rb+1}
            v_cvt_pk_bf16_f32 v{t0}, v{ra}, v{ra+1}
            v_cvt_pk_bf16_f32 v{t1}, v{rb}, v{rb+1}
            v_lshlrev_b32 v{ra}, 16, v{t0}
            v_and_b32 v{ra+1}, s62, v{t0}
            v_lshlrev_b32 v{rb}, 16, v{t1}
            v_and_b32 v{rb+1}, s62, v{t1}
            v_pk_add_f32 v[{ra}:{ra+1}], v[{ra}:{ra+1}], v[{rb}:{rb+1}]
            v_cvt_pk_bf16_f32 v{VO+2*jj+p}, v{ra}, v{ra+1}
            """)
        A(f"buffer_store_dwordx2 v[{VO+2*jj}:{VO+2*jj+1}], v{V11}, s[36:39], s60 offen offset:{jj*32}")
    A(f"{name}_fin:")
    if stamp:
        A(f"""
        s_waitcnt vmcnt(0)
        s_memrealtime s[94:95]
        s_waitcnt lgkmcnt(0)
        v_mov_b32 v16, s80
        v_mov_b32 v17, s94
        v_mov_b32 v18, s82
        v_mov_b32 v19, s84
        v_mov_b32 v20, s86
        v_mov_b32 v21, s88
        v_mov_b32 v22, s90
        v_mov_b32 v23, 0
        s_lshl_b32 s60, s2, 3
        s_add_u32 s60, s60, s50
        s_lshl_b32 s60, s60, 5
        s_add_u32 s60, s60, {WS_STAMP}
        v_mov_b32 v14, 0
        buffer_store_dwordx4 v[16:19], v14, s[28:31], s60 offen
        buffer_store_dwordx4 v[20:23], v14, s[28:31], s60 offen offset:16
        """)
    A(f"{name}_exit:")
    A("s_endpgm")


def desc(name):
    return f"""
.section .rodata,"a"
.p2align 6
.amdhsa_kernel {name}
  .amdhsa_next_free_vgpr 168
  .amdhsa_next_free_sgpr 102
  .amdhsa_accum_offset 168
  .amdhsa_group_segment_fixed_size 0
  .amdhsa_kernarg_size 88
  .amdhsa_user_sgpr_count 2
  .amdhsa_user_sgpr_kernarg_segment_ptr 1
  .amdhsa_system_sgpr_workgroup_id_x 1
.end_amdhsa_kernel
"""


if __name__ == "__main__":
    import sys
    NAME = "gated_mix__sliding_local_dilated__dense_activation_mish__prompt"
    out = f"cdna_kernels/{NAME}.s"
    for a in sys.argv[1:]:
        if a.endswith(".s"): out = a
    A = Asm()
    A.raw(f"; @launch grid=(256,1,1) block=({NWAVE*64},1,1) lds={P1_LDS}")
    A.raw('.amdgcn_target "amdgcn-amd-amdhsa--gfx950"')
    gen_fused(A, NAME + "_kernel", stamp="stamp" in sys.argv, prefetch="pf" in sys.argv)
    open(out, "w").write(A.finish() + desc(NAME + "_kernel"))
    print("wrote", out)
```

```python
from asmlib import Asm

WS_ACT, WS_WF, WS_G = 0, 0xA00000, 0xE00000
WS_SIZE = 0x1000000
WS_STAMP = 0xF00000
WS_FLAG = 0xE80000
OUT_BYTES = 2048 * 640 * 2
P1_LDS = 160 * 1024
STAGE = 49152
XREG = 18432
RL_BASE = 3 * STAGE
GLDS = RL_BASE + 15360
RSQ = 488
LOG2E = 0x3fb8aa3b
SCALE = 0x3e64f92e

ACC = 0
F0 = 72
F1 = 108
VW = 144
VXA = 148
VXH = 150
VLANE16 = 152
VL = 153
VBRAW = 154
VPF = 162
VC2 = 164
VT = 72
VTA = 154
VBIAS = 72
VTB = 88
VDB = 120
VDMA = 4
HT = 8
NWAVE = 12


def xfrag(fs, i):
    return fs + 4 * i
def wfrag(fs, j):
    return fs + 20 + 4 * j
def R(b, n=4):
    return "v[%d:%d]" % (b, b + n - 1)


def interleave(A, mf, fillers):
    n = len(mf)
    for mi, m in enumerate(mf):
        A(m)
        if mi < len(fillers):
            for l in fillers[mi]: A(l)
    for g in fillers[n:]:
        for l in g: A(l)


class VQ:
    def __init__(self): self.q = []
    def add(self, tag, n): self.q += [tag] * n
    def wait_for(self, tag):
        last = max(i for i, t in enumerate(self.q) if t == tag)
        n = len(self.q) - 1 - last
        self.q = self.q[last + 1:]
        return n


def gen_fused(A, name, stamp=False, prefetch=False):
    ST = " sc1"
    LD = ""
    A(f"""
.text
.globl {name}
.p2align 8
.type {name},@function
{name}:
    s_cmp_ge_u32 s2, 256
    s_cbranch_scc1 {name}_exit
    """)
    if stamp:
        A("s_memrealtime s[80:81]")
        A("s_memtime s[92:93]")
    A(f"""
    s_load_dwordx4 s[96:99], s[0:1], 64
    s_load_dwordx4 s[4:7], s[0:1], 0
    s_load_dwordx2 s[8:9], s[0:1], 16
    s_load_dwordx2 s[10:11], s[0:1], 80
    s_load_dwordx4 s[12:15], s[0:1], 32
    s_load_dwordx4 s[16:19], s[0:1], 48
    v_lshrrev_b32 v1, 6, v0
    v_and_b32 v{VL}, 63, v0
    v_readfirstlane_b32 s50, v1
    v_lshlrev_b32 v{VLANE16}, 4, v{VL}
    s_and_b32 s60, s2, 7
    s_lshr_b32 s61, s2, 3
    s_and_b32 s62, s60, 1
    s_lshl_b32 s62, s62, 3
    s_and_b32 s63, s61, 7
    s_add_u32 s54, s62, s63            ; s54 = mt (0..15)
    s_lshl_b32 s52, s54, 7             ; s52 = m0
    s_lshr_b32 s62, s60, 1             ; cq
    s_lshr_b32 s63, s61, 3             ; cl
    s_lshr_b32 s51, s63, 1             ; s51 = type (0=A,1=B)
    s_and_b32 s63, s63, 1
    s_lshl_b32 s62, s62, 1
    s_add_u32 s53, s62, s63
    s_mul_i32 s55, s53, 14
    s_lshr_b32 s62, s53, 2
    s_lshl_b32 s62, s62, 1
    s_sub_u32 s55, s55, s62
    s_and_b32 s62, s53, 3
    s_cmp_eq_u32 s62, 3
    s_cselect_b32 s56, 1, 0
    s_and_b32 s57, s50, 1              ; s57 = mh
    s_lshr_b32 s58, s50, 1             ; s58 = ng
    s_mov_b32 s64, 3456
    s_cmp_eq_u32 s51, 0
    s_cselect_b32 s64, 3840, s64
    s_cselect_b32 s65, 1152, 0
    s_mul_i32 s62, s53, 160
    s_mul_i32 s63, s55, 32
    s_cselect_b32 s66, s62, s63
    s_lshl_b32 s62, s56, 1
    s_sub_u32 s62, 14, s62
    s_cmp_eq_u32 s51, 0
    s_cselect_b32 s67, 64, s62
    s_lshl_b32 s68, s64, 6
    s_lshl_b32 s3, s54, 4
    s_lshl_b32 s60, s51, 3
    s_add_u32 s3, s3, s60
    s_add_u32 s3, s3, s53
    s_cmp_ge_u32 s50, 8
    s_cbranch_scc0 {name}_compute
    s_sub_u32 s50, s50, 8              ; h
    s_lshl_b32 s60, s50, 4
    s_mul_i32 s72, s60, s64
    s_lshl_b32 s61, s64, 1
    s_add_u32 s73, s72, s61            ; +2
    s_lshl_b32 s62, s64, 3
    s_add_u32 s74, s72, s62            ; +8
    s_add_u32 s75, s74, s61            ; +10
    s_lshl_b32 s63, s64, 2
    s_add_u32 s76, s72, s63            ; +4
    s_add_u32 s77, s76, s61            ; +6
    s_add_u32 s78, s74, s63            ; +12
    s_add_u32 s79, s78, s61            ; +14
    s_lshl_b32 s60, s50, 5
    s_add_u32 s60, s60, s52
    s_mul_i32 s20, s60, 1280
    s_sub_u32 s60, s52, 16
    s_lshl_b32 s61, s50, 3
    s_add_u32 s60, s60, s61
    s_mul_i32 s22, s60, 1280
    s_cmp_eq_u32 s52, 0
    s_cselect_b32 s22, 0x80000000, s22
    s_mov_b32 s90, -1
    s_mov_b32 s91, 0x0fffffff
    s_mul_i32 s71, s50, 7680
    s_add_u32 s71, s71, {XREG}
    s_lshl_b32 s23, s50, 12
    s_add_u32 s23, s23, 2048
    s_lshl_b32 s48, s50, 10
    s_lshl_b32 s60, s51, 1
    s_add_u32 s60, s60, s50
    s_cmp_lt_u32 s60, 2
    s_cselect_b32 s70, 1, 0
    s_cmp_eq_u32 s51, 0
    s_cselect_b32 s62, 12, 14
    s_and_b32 s63, s53, 1
    s_cselect_b32 s63, s63, 0
    s_cmp_eq_u32 s51, 0
    s_cselect_b32 s63, s63, 0
    s_lshl_b32 s60, s62, 1
    v_lshrrev_b32 v{HT}, 1, v{VL}                    ; pos
    v_cmp_le_u32 vcc, s62, v{HT}
    v_subrev_u32 v{HT+1}, s62, v{HT}
    v_xor_b32 v{HT+1}, 1, v{HT+1}
    v_cndmask_b32 v{HT+1}, v{HT}, v{HT+1}, vcc
    v_cndmask_b32 v{HT+2}, 0, 1, vcc                 ; parity
    v_lshrrev_b32 v{HT+3}, 2, v{HT+1}
    v_mul_u32_u24 v{HT+3}, s65, v{HT+3}
    v_lshl_add_u32 v{HT+3}, v{HT+1}, 5, v{HT+3}
    s_lshl_b32 s61, s63, 5
    v_add_u32 v{HT+3}, s61, v{HT+3}
    ; singles (type A): q = pos-24 (0..5): parity = q>=3, grp = q%3, e = hgpar?0:4
    v_subrev_u32 v{HT+4}, 24, v{HT}
    v_cmp_le_u32 vcc, 3, v{HT+4}
    v_subrev_u32 v{HT+5}, 3, v{HT+4}
    v_cndmask_b32 v{HT+4}, v{HT+4}, v{HT+5}, vcc
    v_cndmask_b32 v{HT+5}, 0, 1, vcc
    v_mul_u32_u24 v{HT+4}, 1280, v{HT+4}
    s_lshl_b32 s61, s63, 7
    s_sub_u32 s61, 128, s61
    v_add_u32 v{HT+4}, s61, v{HT+4}
    v_cmp_le_u32 vcc, s60, v{HT}
    v_cndmask_b32 v{HT+3}, v{HT+3}, v{HT+4}, vcc
    v_cndmask_b32 v{HT+2}, v{HT+2}, v{HT+5}, vcc
    v_mul_u32_u24 v{HT+2}, s64, v{HT+2}
    v_and_b32 v{HT+4}, 1, v{VL}
    v_lshl_add_u32 v{HT+3}, v{HT+4}, 4, v{HT+3}
    v_add3_u32 v{HT+1}, v{HT+2}, v{HT+3}, s66        ; offset
    s_cmp_eq_u32 s51, 0
    s_cselect_b32 s60, 64, s60
    v_cmp_le_u32 vcc, s60, v{HT}
    v_mov_b32 v{HT+2}, 0x80000000
    v_cndmask_b32 v{HT+1}, v{HT+1}, v{HT+2}, vcc
    v_cmp_le_u32 vcc, s62, v{HT}
    v_subrev_u32 v{HT+4}, s62, v{HT}
    v_cndmask_b32 v{HT+4}, v{HT}, v{HT+4}, vcc
    v_cmp_le_u32 vcc, s67, v{HT+4}
    v_lshrrev_b32 v{HT+3}, 3, v{VL}
    v_cndmask_b32 v{VDMA}, v{HT+1}, v{HT+2}, vcc
    v_mul_u32_u24 v{HT+3}, 1280, v{HT+3}
    v_and_b32 v{HT+1}, 7, v{VL}
    v_lshrrev_b32 v{HT+2}, 4, v{VL}
    v_xor_b32 v{HT+1}, v{HT+1}, v{HT+2}
    v_lshl_add_u32 v{VDMA+1}, v{HT+1}, 4, v{HT+3}
    v_xor_b32 v{VDMA+2}, 64, v{VDMA+1}
    v_mov_b32 v{VDMA+3}, v{VDMA+1}
    s_cmp_eq_u32 s50, 1
    s_cbranch_scc0 {name}_h0
    v_mov_b32 v{VDMA+3}, v{VDMA+2}
    {name}_h0:
    s_waitcnt lgkmcnt(0)
    s_mov_b32 s36, s4
    s_and_b32 s37, s5, 0xffff
    s_mov_b32 s38, 2621440
    s_mov_b32 s39, 0x20000
    s_mov_b32 s26, 2211840
    s_cmp_eq_u32 s51, 0
    s_cselect_b32 s24, s6, s12
    s_cselect_b32 s25, s7, s13
    s_cselect_b32 s26, 2457600, s26
    s_and_b32 s25, s25, 0xffff
    s_mov_b32 s27, 0x20000
    s_mov_b32 s28, s10
    s_and_b32 s29, s11, 0xffff
    s_mov_b32 s30, {WS_SIZE}
    s_mov_b32 s31, 0x20000
    s_mov_b32 s40, s18
    s_and_b32 s41, s19, 0xffff
    s_mov_b32 s42, 1280
    s_mov_b32 s43, 0x20000
    s_mov_b32 s21, 0
    s_lshl_b32 s67, s64, 6
    s_and_b32 s60, s3, 15
    s_lshl_b32 s60, s60, 3
    s_add_u32 s60, s60, s52
    s_lshl_b32 s61, s50, 1
    s_add_u32 s49, s60, s61
    s_cmp_eq_u32 s70, 1
    s_cbranch_scc1 {name}_hA
    s_branch {name}_hB
    """)

    def dma_sub(halo):
        A(f"{name}_dma{int(halo)}:")
        A("s_add_u32 s68, s23, s21")
        for i in range(4):
            A(f"""
            s_add_u32 s69, s20, {i*10240}
            s_add_u32 m0, s68, {i*1024}
            buffer_load_dwordx4 v{VDMA+1+(i&1)}, s[36:39], s69 offen lds
            """)
        if halo:
            A(f"""
            s_add_u32 m0, s48, s21
            buffer_load_dwordx4 v{VDMA+3}, s[36:39], s22 offen lds
            s_add_u32 s22, s22, 128
            """)
        A("s_add_u32 s68, s71, s21")
        A("s_mov_b64 exec, s[90:91]")
        for i in range(8):
            A(f"""
            s_add_u32 m0, s68, {i*960}
            buffer_load_dwordx4 v{VDMA}, s[24:27], s{72+i} offen lds
            s_add_u32 s{72+i}, s{72+i}, s67
            """)
        A("s_mov_b64 exec, -1")
        A(f"""
        s_add_u32 s20, s20, 128
        s_add_u32 s21, s21, {STAGE}
        s_cmp_eq_u32 s21, {3*STAGE}
        s_cselect_b32 s21, 0, s21
        s_setpc_b64 s[88:89]
        """)
    dma_sub(False)
    dma_sub(True)

    GX = HT + 8
    G = [HT + 24, HT + 25]
    T2 = HT + 28

    def aux_loads(rl):
        A(f"""
        s_mul_i32 s61, s49, 1280
        v_lshlrev_b32 v{HT}, 2, v{VL}
        buffer_load_dwordx4 v[{GX}:{GX+3}], v{VLANE16}, s[36:39], s61 offen
        buffer_load_dword v{GX+12}, v{HT}, s[36:39], s61 offen offset:1024
        buffer_load_dwordx4 v[{GX+4}:{GX+7}], v{VLANE16}, s[36:39], s61 offen offset:1280
        buffer_load_dword v{GX+13}, v{HT}, s[36:39], s61 offen offset:2304
        buffer_load_dwordx4 v[{GX+8}:{GX+11}], v{VLANE16}, s[40:43], 0 offen
        buffer_load_dword v{GX+14}, v{HT}, s[40:43], 0 offen offset:1024
        """)
        return 6

    def aux_proc(rl):
        A("s_mov_b32 s68, 0xffff0000")
        for r in range(2):
            for i in range(5):
                x = GX + 4 * r + i if i < 4 else GX + 12 + r
                gw = GX + 8 + i if i < 4 else GX + 14
                t = T2 + 4 * i
                A(f"""
                v_lshlrev_b32 v{t}, 16, v{x}
                v_and_b32 v{t+1}, s68, v{x}
                v_lshlrev_b32 v{t+2}, 16, v{gw}
                v_and_b32 v{t+3}, s68, v{gw}
                v_pk_mul_f32 v[{t}:{t+1}], v[{t}:{t+1}], v[{t+2}:{t+3}]
                v_cvt_pk_bf16_f32 v{t}, v{t}, v{t+1}
                v_and_b32 v{t+1}, s68, v{t}
                v_lshlrev_b32 v{t}, 16, v{t}
                """)
            A(f"""
            v_pk_add_f32 v[{T2}:{T2+1}], v[{T2}:{T2+1}], v[{T2+4}:{T2+5}]
            v_pk_add_f32 v[{T2+8}:{T2+9}], v[{T2+8}:{T2+9}], v[{T2+12}:{T2+13}]
            v_pk_add_f32 v[{T2}:{T2+1}], v[{T2}:{T2+1}], v[{T2+16}:{T2+17}]
            v_pk_add_f32 v[{T2}:{T2+1}], v[{T2}:{T2+1}], v[{T2+8}:{T2+9}]
            v_add_f32 v{G[r]}, v{T2}, v{T2+1}
            """)
        for sh in (1, 2, 4, 8):
            for r in range(2):
                A(f"v_add_f32_dpp v{G[r]}, v{G[r]}, v{G[r]} row_ror:{sh} row_mask:0xf bank_mask:0xf")
        for swap in ("v_permlane16_swap_b32", "v_permlane32_swap_b32"):
            for r in range(2):
                A(f"v_mov_b32 v{T2+r}, v{G[r]}")
            for r in range(2):
                A(f"{swap} v{T2+r}, v{G[r]}")
            for r in range(2):
                A(f"v_add_f32 v{G[r]}, v{G[r]}, v{T2+r}")
        for r in range(2):
            A(f"""
            v_cvt_pk_bf16_f32 v{G[r]}, v{G[r]}, v{G[r]}
            v_lshlrev_b32 v{G[r]}, 16, v{G[r]}
            v_mul_f32 v{G[r]}, 0xbfb8aa3b, v{G[r]}
            v_exp_f32 v{G[r]}, v{G[r]}
            v_add_f32 v{G[r]}, 1.0, v{G[r]}
            v_rcp_f32 v{G[r]}, v{G[r]}
            v_cvt_pk_bf16_f32 v{G[r]}, v{G[r]}, v{G[r]}
            v_lshlrev_b32 v{G[r]}, 16, v{G[r]}
            """)
        A(f"""
        s_lshl_b32 s60, s50, 3
        s_add_u32 s60, s60, {GLDS}
        v_mov_b32 v{HT}, s60
        s_mov_b64 exec, 1
        ds_write_b64 v{HT}, v[{G[0]}:{G[1]}]
        s_mov_b64 exec, -1
        s_waitcnt lgkmcnt(0)
        """)
        return 0

    for var, halo in (("hA", True), ("hB", False)):
        nd = 13 if halo else 12
        q = VQ()
        A(f"{name}_{var}:")
        def D(k):
            A(f"s_call_b64 s[88:89], {name}_dma{int(halo)}")
            q.add(f"D{k}", nd)
        def B(k):
            A(f"s_waitcnt vmcnt({q.wait_for(f'D{k}')})")
            A("s_barrier")
        D(0); D(1); B(0)
        for k in range(1, 5):
            D(k + 1); B(k)
        D(6); q.add("aux", aux_loads(False)); B(5)
        D(7); B(6)
        D(8)
        A(f"s_waitcnt vmcnt({q.wait_for('D7')})")
        A("s_barrier")
        D(9)
        aux_proc(False)
        B(8)
        A(f"""
        s_cmp_eq_u32 s50, 0
        s_cbranch_scc1 {name}_htail
        s_waitcnt vmcnt(0)
        s_barrier
        s_endpgm
        """)
    def hw(tag, slot0):
        A(f"""
        s_mov_b32 s73, 0
        s_mov_b32 s74, s72
        s_mov_b32 s75, {slot0*40960}
        {name}_hw{tag}:
        """)
        for un in range(2):
            A(f"s_add_u32 m0, s75, {un*40960}")
            A(f"s_add_u32 s69, s74, {un*5120}")
            for j in range(4):
                A(f"buffer_load_dwordx4 v{VLANE16}, s[28:31], s69 offen offset:{j*1024} lds")
            A(f"""
            s_add_u32 m0, s75, {un*40960 + 4096}
            s_add_u32 s69, s69, 4096
            buffer_load_dwordx4 v{VLANE16}, s[28:31], s69 offen lds
            """)
        A(f"""
        s_add_u32 s75, s75, 5120
        s_add_u32 s74, s74, {9*5120}
        s_cmp_lt_u32 s73, 2
        s_cselect_b32 s69, 5120, 0
        s_add_u32 s74, s74, s69
        s_add_u32 s73, s73, 1
        s_cmp_lt_u32 s73, 8
        s_cbranch_scc1 {name}_hw{tag}
        s_add_u32 s72, s72, {2*5120}
        """)
    A(f"""
    {name}_htail:
    s_mov_b32 s32, s98
    s_and_b32 s33, s99, 0xffff
    s_mov_b32 s34, 256
    s_mov_b32 s35, 0x20000
    s_and_b32 s60, s2, 7
    s_lshr_b32 s61, s2, 3
    s_lshr_b32 s20, s60, 1
    s_lshl_b32 s20, s20, 3
    s_lshr_b32 s62, s61, 2
    s_add_u32 s20, s20, s62                ; t2
    s_and_b32 s21, s60, 1
    s_lshl_b32 s21, s21, 2
    s_and_b32 s62, s61, 3
    s_add_u32 s21, s21, s62                ; u2
    s_lshr_b32 s22, s20, 1
    s_lshl_b32 s60, s22, 4
    s_lshl_b32 s61, s21, 5
    s_sub_u32 s61, s61, 16
    v_min_u32 v{HT+2}, 11, v{VL}
    v_lshlrev_b32 v{HT}, 2, v{HT+2}
    v_cmp_gt_u32 vcc, 4, v{HT+2}
    v_mov_b32 v{HT+3}, s61
    v_mov_b32 v{HT+4}, s60
    v_cndmask_b32 v{HT+3}, v{HT+3}, v{HT+4}, vcc
    v_add_u32 v{HT}, v{HT}, v{HT+3}
    buffer_load_dword v{HT+1}, v{HT}, s[32:35], 0 offen sc1
    s_mul_i32 s72, s21, {74*5120}
    s_add_u32 s72, s72, {WS_WF}
    s_mov_b32 s26, 0x01010101
    s_waitcnt vmcnt(1)
    s_barrier                              ; B9
    s_barrier                              ; B10
    s_cmp_eq_u32 s51, 0
    s_cbranch_scc0 {name}_hnoattn
    s_barrier
    {name}_hnoattn:
    s_mov_b32 s48, 1
    s_waitcnt vmcnt(0)
    v_and_b32 v{HT+1}, s26, v{HT+1}
    v_cmp_ne_u32 vcc, s26, v{HT+1}
    s_cbranch_vccnz {name}_hskip
    s_mov_b32 s48, 0
    """)
    hw("a", 2)
    A(f"""
    {name}_hskip:
    s_barrier
    v_mov_b32 v{HT+3}, 1
    v_mov_b32 v{HT+2}, 0
    s_lshr_b32 s60, s3, 4
    s_lshl_b32 s60, s60, 8
    s_and_b32 s61, s3, 15
    s_lshl_b32 s61, s61, 2
    s_add_u32 s60, s60, s61
    s_add_u32 s60, s60, {WS_FLAG}
    s_mov_b64 exec, 1
    buffer_store_dword v{HT+3}, v{HT+2}, s[28:31], s60 offen sc1
    s_mov_b64 exec, -1
    s_cmp_eq_u32 s48, 0
    s_cbranch_scc1 {name}_hready
    s_mov_b32 s27, 0
    {name}_hwf:
    buffer_load_dword v{HT+1}, v{HT}, s[32:35], 0 offen sc1
    s_waitcnt vmcnt(0)
    v_and_b32 v{HT+1}, s26, v{HT+1}
    v_cmp_ne_u32 vcc, s26, v{HT+1}
    s_cbranch_vccz {name}_hwfok
    s_add_u32 s27, s27, 1
    s_cmp_gt_u32 s27, 0x40000
    s_cbranch_scc1 {name}_hwfok
    s_sleep 8
    s_branch {name}_hwf
    {name}_hwfok:
    """)
    hw("b", 2)
    A(f"{name}_hready:")
    hw("c", 0)
    A(f"""
    s_lshl_b32 s60, s22, 8
    s_add_u32 s60, s60, {WS_FLAG}
    v_and_b32 v{HT}, 15, v{VL}
    v_lshlrev_b32 v{HT}, 2, v{HT}
    s_mov_b32 s27, 0
    {name}_poll:
    buffer_load_dword v{HT+1}, v{HT}, s[28:31], s60 offen sc1
    s_waitcnt vmcnt(0)
    v_cmp_ne_u32 vcc, 1, v{HT+1}
    s_cbranch_vccz {name}_hgate
    s_add_u32 s27, s27, 1
    s_cmp_gt_u32 s27, 0x40000
    s_cbranch_scc1 {name}_hgate
    s_sleep 2
    s_branch {name}_poll
    {name}_hgate:
    s_barrier
    s_endpgm
    """)

    A(f"""
    {name}_compute:
    s_lshl_b32 s60, s58, 2
    s_cmp_eq_u32 s58, 3
    s_cselect_b32 s60, 11, s60
    s_mul_i32 s61, s58, 3
    s_cmp_eq_u32 s56, 1
    s_cselect_b32 s60, s61, s60
    s_and_b32 s61, s58, 1
    s_lshl_b32 s61, s61, 3
    s_lshr_b32 s62, s58, 1
    s_lshl_b32 s62, s62, 2
    s_add_u32 s61, s61, s62
    s_cmp_eq_u32 s51, 0
    s_cselect_b32 s59, s61, s60
    """)
    A(f"""
    v_and_b32 v{VT}, 15, v{VL}                 ; mi
    v_lshrrev_b32 v{VT+1}, 4, v{VL}            ; g
    v_lshrrev_b32 v{VT+2}, 1, v{VT}            ; mi>>1
    v_xor_b32 v{VT+3}, v{VT+1}, v{VT+2}
    v_lshlrev_b32 v{VT+3}, 4, v{VT+3}
    v_lshl_add_u32 v{VXH}, v{VT}, 7, v{VT+3}
    v_xor_b32 v{VXH+1}, 64, v{VXH}
    s_lshl_b32 s60, s57, 13
    s_add_u32 s60, s60, 2048
    v_add_u32 v{VXA}, s60, v{VXH}
    v_add_u32 v{VXA+1}, s60, v{VXH+1}
    v_lshrrev_b32 v{VT+2}, 1, v{VT+1}          ; g1
    v_and_b32 v{VT+3}, 1, v{VT+1}              ; g0
    v_lshrrev_b32 v{VT+4}, 3, v{VT}            ; rr>>1
    v_lshl_add_u32 v{VT+4}, v{VT+3}, 1, v{VT+4}
    v_lshl_add_u32 v{VT+4}, v{VT+2}, 3, v{VT+4}    ; slot>>1
    v_mul_u32_u24 v{VT+4}, 960, v{VT+4}
    v_and_b32 v{VT+5}, 3, v{VT}
    v_lshl_add_u32 v{VT+4}, v{VT+5}, 3, v{VT+4}
    v_add_u32 v{VT+4}, {XREG}, v{VT+4}
    v_bfe_u32 v{VT+5}, v{VT}, 2, 1
    v_cmp_eq_u32 vcc, 1, v{VT+5}
    s_cmp_eq_u32 s51, 0
    s_cselect_b32 s62, 12, 14
    s_and_b32 s63, s53, 1
    s_cmp_eq_u32 s51, 0
    s_cselect_b32 s63, s63, 0
    """)
    for j in range(4):
        A(f"""
        s_add_u32 s69, s59, {j}
        s_mul_i32 s60, s69, 13
        s_lshr_b32 s60, s60, 6
        s_mul_i32 s61, s60, 5
        s_sub_u32 s61, s69, s61                ; e
        s_sub_u32 s61, s61, s63
        s_lshl_b32 s78, s60, 2
        s_add_u32 s78, s78, s61
        s_cmp_eq_u32 s51, 0
        s_cselect_b32 s78, s78, s69
        s_cselect_b32 s79, s61, 0
        s_xor_b32 s77, s78, 1
        s_add_u32 s77, s77, s62
        s_add_u32 s76, s60, 24
        s_add_u32 s69, s60, 27
        s_cmp_gt_u32 s79, 3
        s_cselect_b32 s78, s76, s78
        s_cselect_b32 s77, s69, s77
        s_lshl_b32 s78, s78, 5
        s_lshl_b32 s77, s77, 5
        v_mov_b32 v{VT+6}, s78
        v_mov_b32 v{VT+7}, s77
        v_cndmask_b32 v{VT+6}, v{VT+6}, v{VT+7}, vcc
        v_add_u32 v{VW+j}, v{VT+6}, v{VT+4}
        """)
    for i in range(72):
        A(f"v_mov_b32 v{ACC+i}, 0")
    A(f"""
    s_waitcnt lgkmcnt(0)
    s_mov_b32 s28, s10
    s_and_b32 s29, s11, 0xffff
    s_mov_b32 s30, {WS_SIZE}
    s_mov_b32 s31, 0x20000
    s_mov_b32 s44, s14
    s_and_b32 s45, s15, 0xffff
    s_mov_b32 s46, 3456
    s_mov_b32 s47, 0x20000
    """)
    if prefetch:
        A(f"""
        s_and_b32 s60, s2, 7
        s_lshr_b32 s61, s2, 3                  ; idx
        s_lshr_b32 s62, s60, 1                 ; cq
        s_and_b32 s60, s60, 1                  ; M half
        v_mul_u32_u24 v{VT}, 57, v{VL}
        v_lshrrev_b32 v{VT}, 9, v{VT}          ; st = l/9
        v_mul_u32_u24 v{VT+1}, 9, v{VT}
        v_sub_u32 v{VT+1}, v{VL}, v{VT+1}      ; l9
        v_add_u32 v{VT}, 3, v{VT}              ; stage
        s_cmp_lt_u32 s50, 4
        s_cbranch_scc0 {name}_pfW
        s_lshl_b32 s63, s61, 2
        s_add_u32 s63, s63, s50
        s_mul_i32 s63, s63, 9
        s_lshl_b32 s60, s60, 10
        s_add_u32 s63, s63, s60
        s_sub_u32 s63, s63, 16
        v_add_u32 v{VT+2}, s63, v{VT+1}
        v_max_i32 v{VT+2}, 0, v{VT+2}
        v_mul_u32_u24 v{VT+2}, 1280, v{VT+2}
        v_lshl_add_u32 v{VT+2}, v{VT}, 7, v{VT+2}
        s_mov_b32 s40, s4
        s_and_b32 s41, s5, 0xffff
        s_mov_b32 s42, 2621440
        s_branch {name}_pfgo
        {name}_pfW:
        s_lshl_b32 s63, s61, 1
        s_and_b32 s60, s50, 1
        s_add_u32 s63, s63, s60
        v_lshlrev_b32 v{VT}, 6, v{VT}
        v_add_u32 v{VT}, s63, v{VT}            ; k row
        s_cmp_lt_u32 s50, 6
        s_cbranch_scc0 {name}_pfW1
        v_mul_u32_u24 v{VT+2}, 11, v{VT+1}
        v_lshrrev_b32 v{VT+2}, 5, v{VT+2}      ; grp = l9/3
        v_mul_u32_u24 v{VT+3}, 896, v{VT+2}    ; grp*(1280-384)
        v_lshl_add_u32 v{VT+3}, v{VT+1}, 7, v{VT+3}
        v_mul_u32_u24 v{VT+2}, 3840, v{VT}
        s_mul_i32 s60, s62, 320
        s_and_b32 s60, s60, 0xffffff80
        v_add3_u32 v{VT+2}, v{VT+2}, v{VT+3}, s60
        s_mov_b32 s40, s6
        s_and_b32 s41, s7, 0xffff
        s_mov_b32 s42, 2457600
        s_branch {name}_pfgo
        {name}_pfW1:
        s_mul_i32 s60, s62, 28
        s_lshr_b32 s63, s62, 1
        s_lshl_b32 s63, s63, 1
        s_sub_u32 s60, s60, s63
        s_lshl_b32 s60, s60, 5
        s_and_b32 s60, s60, 0xffffff80
        v_min_u32 v{VT+1}, 7, v{VT+1}
        v_mul_u32_u24 v{VT+2}, 3456, v{VT}
        v_lshl_add_u32 v{VT+2}, v{VT+1}, 7, v{VT+2}
        v_add_u32 v{VT+2}, s60, v{VT+2}
        s_mov_b32 s40, s12
        s_and_b32 s41, s13, 0xffff
        s_mov_b32 s42, 2211840
        {name}_pfgo:
        s_mov_b32 s43, 0x20000
        v_cmp_gt_u32 vcc, 63, v{VL}
        v_mov_b32 v{VT+3}, 0x80000000
        v_cndmask_b32 v{VT+2}, v{VT+3}, v{VT+2}, vcc
        buffer_load_dword v{VPF}, v{VT+2}, s[40:43], 0 offen
        """)
    A(f"""
    s_add_u32 s60, s55, s59
    s_lshl_b32 s60, s60, 5
    v_lshrrev_b32 v{VT}, 4, v{VL}
    v_lshlrev_b32 v{VT}, 3, v{VT}
    """)
    for j in range(4):
        A(f"buffer_load_dwordx2 v[{VBRAW+2*j}:{VBRAW+2*j+1}], v{VT}, s[44:47], s60 offen offset:{j*32}")
    A(f"""
    s_mov_b32 s32, s98
    s_and_b32 s33, s99, 0xffff
    s_mov_b32 s34, 256
    s_mov_b32 s35, 0x20000
    s_mov_b32 s36, s96
    s_and_b32 s37, s97, 0xffff
    s_mov_b32 s38, {OUT_BYTES}
    s_mov_b32 s39, 0x20000
    s_and_b32 s60, s2, 7
    s_lshr_b32 s61, s2, 3
    s_lshr_b32 s20, s60, 1
    s_lshl_b32 s20, s20, 3
    s_lshr_b32 s62, s61, 2
    s_add_u32 s20, s20, s62                ; t2
    s_and_b32 s21, s60, 1
    s_lshl_b32 s21, s21, 2
    s_and_b32 s62, s61, 3
    s_add_u32 s21, s21, s62                ; u2
    s_mul_i32 s60, s50, 9
    s_add_u32 s60, s60, 2
    s_mul_i32 s61, s50, 10
    s_cmp_lt_u32 s50, 2
    s_cselect_b32 s60, s61, s60            ; kb0
    s_mul_i32 s22, s20, 74
    s_add_u32 s22, s22, s60
    s_lshl_b32 s22, s22, 12
    s_mul_i32 s23, s21, 74
    s_add_u32 s23, s23, s60
    s_mul_i32 s23, s23, 5120
    s_add_u32 s23, s23, {WS_WF + 4*5120}
    s_mul_i32 s24, s50, 5120
    s_cmp_eq_u32 s50, 0
    s_cselect_b32 s25, 5, 99
    s_lshr_b32 s60, s3, 5
    s_and_b32 s61, s3, 31
    s_lshl_b32 s62, s50, 5
    s_add_u32 s61, s61, s62
    s_mul_i32 s60, s60, 74
    s_add_u32 s60, s60, s61
    s_mul_i32 s60, s60, 5120
    s_add_u32 s40, s60, {WS_WF}
    s_cmp_lt_u32 s61, 74
    s_cselect_b32 s40, s40, 0x80000000
    s_add_u32 s41, s40, 4096
    s_mul_i32 s42, s50, 5120
    s_add_u32 s42, s42, {RL_BASE}
    s_and_b32 s60, s3, 15
    s_lshl_b32 s60, s60, 3
    s_add_u32 s60, s60, s52
    s_lshl_b32 s60, s60, 2
    s_add_u32 s43, s60, {WS_G}
    s_cmp_gt_u32 s50, 2
    s_cbranch_scc1 {name}_norl
    s_mov_b32 s70, 2211840
    s_cmp_lt_u32 s61, 20
    s_cselect_b32 s68, s8, s16
    s_cselect_b32 s69, s9, s17
    s_cselect_b32 s70, 819200, s70
    s_cselect_b32 s60, 0, 20
    s_and_b32 s69, s69, 0xffff
    s_mov_b32 s71, 0x20000
    s_sub_u32 s60, s61, s60
    s_mul_i32 s60, s60, 40960
    s_lshr_b32 s62, s3, 5
    s_mul_i32 s62, s62, 160
    s_add_u32 s60, s60, s62
    s_cmp_lt_u32 s61, 74
    s_cselect_b32 s60, s60, 0x80000000
    """)
    for i in range(5):
        A(f"""
        v_add_u32 v{VT+1}, {64*i}, v{VL}
        v_mul_u32_u24 v{VT+2}, 205, v{VT+1}
        v_lshrrev_b32 v{VT+2}, 11, v{VT+2}
        v_mul_u32_u24 v{VT+3}, 10, v{VT+2}
        v_sub_u32 v{VT+3}, v{VT+1}, v{VT+3}
        v_mul_u32_u24 v{VT+2}, 1280, v{VT+2}
        v_lshl_add_u32 v{VT+2}, v{VT+3}, 4, v{VT+2}
        s_add_u32 m0, s42, {i*1024}
        buffer_load_dwordx4 v{VT+2}, s[68:71], s60 offen lds
        """)
    A(f"""
    {name}_norl:
    s_cmp_eq_u32 s50, 3
    s_cbranch_scc0 {name}_noclr
    s_lshr_b32 s60, s3, 4
    s_lshl_b32 s60, s60, 8
    s_and_b32 s61, s3, 15
    s_lshl_b32 s61, s61, 2
    s_add_u32 s60, s60, s61
    s_add_u32 s60, s60, {WS_FLAG}
    v_mov_b32 v{VT}, 0
    s_mov_b64 exec, 1
    buffer_store_dword v{VT}, v{VT}, s[28:31], s60 offen sc1
    s_mov_b64 exec, -1
    {name}_noclr:
    s_mov_b32 s76, 0
    s_mov_b32 s77, 0
    s_mov_b32 s49, {STAGE}
    """)
    classes = {"c4": (4, ()), "c4a": (4, (0, 1)), "c4b": (4, (2, 3)), "c4c": (4, (1,)),
               "c3a": (3, (0, 1)), "c3b": (3, (2,)), "c3": (3, ())}
    amap = {0: "c4", 1: "c4", 2: "c4a", 3: "c4b", 4: "c4b", 5: "c4c", 6: "c3a", 7: "c3b"}
    A(f"""
    s_cmp_eq_u32 s51, 0
    s_cbranch_scc1 {name}_dispA
    s_cmp_eq_u32 s56, 1
    s_cbranch_scc1 {name}_c3
    s_cmp_lt_u32 s58, 2
    s_cbranch_scc1 {name}_c4
    s_branch {name}_c3
    {name}_dispA:
    """)
    for w in range(2, 8):
        A(f"s_cmp_eq_u32 s50, {w}\ns_cbranch_scc1 {name}_{amap[w]}")
    A(f"s_branch {name}_c4")

    def reads(fs, kk, nc, halo):
        out = []
        for j in range(nc):
            b = wfrag(fs, j)
            out.append(f"ds_read_b64_tr_b16 v[{b}:{b+1}], v{VW+j} offset:{kk*15360}")
            out.append(f"ds_read_b64_tr_b16 v[{b+2}:{b+3}], v{VW+j} offset:{kk*15360 + 3840}")
            if j == 0:
                for i in range(4):
                    out.append(f"ds_read_b128 {R(xfrag(fs, i))}, v{VXA+kk} offset:{i*2048}")
        if halo:
            out.append(f"ds_read_b128 {R(xfrag(fs, 4))}, v{VXH+kk}")
        return out

    def mfmas(fs, nc, halo):
        out = []
        for j in range(nc):
            for i in range(4):
                a = ACC + (i * 4 + j) * 4
                out.append(f"v_mfma_f32_16x16x32_bf16 {R(a)}, {R(wfrag(fs, j))}, {R(xfrag(fs, i))}, {R(a)}")
        for hi, j in enumerate(halo):
            a = ACC + (16 + hi) * 4
            out.append(f"v_mfma_f32_16x16x32_bf16 {R(a)}, {R(wfrag(fs, j))}, {R(xfrag(fs, 4))}, {R(a)}")
        return out

    def wdma(slot):
        return [f"s_add_u32 m0, s24, {slot*40960}"] + \
               [f"buffer_load_dwordx4 v{VLANE16}, s[28:31], s23 offen offset:{j*1024}{LD} lds" for j in range(4)] + \
               [f"s_add_u32 m0, s24, {slot*40960 + 4096}", "s_add_u32 s26, s23, 4096",
                f"buffer_load_dwordx4 v{VLANE16}, s[28:31], s26 offen{LD} lds", "s_add_u32 s23, s23, 5120"]

    A(f"""
    {name}_auxst:
    s_cmp_gt_u32 s50, 2
    s_cbranch_scc1 {name}_auxret
    s_waitcnt vmcnt(0)
    v_lshrrev_b32 v{F1}, 2, v{VL}
    v_mul_u32_u24 v{F1}, 160, v{F1}
    v_and_b32 v{F1+1}, 3, v{VL}
    v_lshl_add_u32 v{F1}, v{F1+1}, 3, v{F1}
    v_add_u32 v{F1}, s42, v{F1}
    """)
    for j in range(5):
        b = F1 + 4 + 4 * j
        A(f"ds_read_b64_tr_b16 v[{b}:{b+1}], v{F1} offset:{j*32}")
        A(f"ds_read_b64_tr_b16 v[{b+2}:{b+3}], v{F1} offset:{j*32 + 2560}")
    A("s_waitcnt lgkmcnt(0)")
    for j in range(5):
        b = F1 + 4 + 4 * j
        if j < 4:
            A(f"buffer_store_dwordx4 v[{b}:{b+3}], v{VLANE16}, s[28:31], s40 offen offset:{j*1024}{ST}")
        else:
            A(f"buffer_store_dwordx4 v[{b}:{b+3}], v{VLANE16}, s[28:31], s41 offen{ST}")
    A(f"""
    s_nop 1
    s_setpc_b64 s[88:89]
    {name}_auxg:
    s_cmp_eq_u32 s50, 3
    s_cbranch_scc0 {name}_auxret
    v_lshlrev_b32 v{F1}, 2, v{VL}
    v_add_u32 v{F1+1}, {GLDS}, v{F1}
    s_mov_b64 exec, 0xff
    ds_read_b32 v{F1+2}, v{F1+1}
    s_waitcnt lgkmcnt(0)
    buffer_store_dword v{F1+2}, v{F1}, s[28:31], s43 offen{ST}
    s_mov_b64 exec, -1
    {name}_auxret:
    s_setpc_b64 s[88:89]
    """)
    for cname, (nc, halo) in classes.items():
        A(f"{name}_{cname}:")
        A("s_barrier")
        if stamp:
            A("s_memrealtime s[82:83]")
        for l in reads(F0, 0, nc, halo): A(l)
        lab = f"{name}_{cname}_loop"
        A(f"{lab}:")
        A("s_waitcnt lgkmcnt(0)")
        interleave(A, mfmas(F0, nc, halo), [[l] for l in reads(F1, 1, nc, halo)])
        A(f"""
        s_cmp_eq_u32 s77, {2*STAGE}
        s_cselect_b32 s78, {(-2*STAGE) & 0xffffffff}, s49
        s_add_u32 s77, s77, s78
        s_waitcnt lgkmcnt(0)
        s_barrier
        """)
        fill = [[f"v_add_u32 v{VW}, s78, v{VW}", f"v_add_u32 v{VXA}, s78, v{VXA}"]]
        f2 = [f"v_add_u32 v{VXA+1}, s78, v{VXA+1}"]
        if halo:
            f2.append(f"v_add_u32 v{VXH+1}, s78, v{VXH+1}")
        seq = []
        for l in reads(F0, 0, nc, halo):
            for j in range(1, nc):
                if f"v{VW+j} offset:0" in l and l.endswith("offset:0"):
                    seq.append(f"v_add_u32 v{VW+j}, s78, v{VW+j}")
            if halo and l.endswith(f"v{VXH}"):
                seq.append(f"v_add_u32 v{VXH}, s78, v{VXH}")
            seq.append(l)
        for k in range(0, len(seq), 2):
            fill.append(seq[k:k + 2])
        fill.append(f2)
        interleave(A, mfmas(F1, nc, halo), fill)
        A(f"""
        s_add_u32 s76, s76, 1
        s_cmp_eq_u32 s76, 1
        s_cbranch_scc0 {lab}_na
        s_nop 7
        s_call_b64 s[88:89], {name}_auxst
        {lab}_na:
        s_cmp_eq_u32 s76, 4
        s_cbranch_scc0 {lab}_nv
        s_waitcnt vmcnt(0)
        {lab}_nv:
        s_cmp_eq_u32 s76, 9
        s_cbranch_scc0 {lab}_ng
        s_nop 7
        s_call_b64 s[88:89], {name}_auxg
        {lab}_ng:
        """)
        if cname in ("c4", "c3"):
            A(f"""
            s_cmp_eq_u32 s76, s25
            s_cbranch_scc0 {lab}_nf
            v_mov_b32 v{VPF+1}, 1
            v_mov_b32 v{VPF}, 0
            s_mov_b64 exec, 1
            buffer_store_byte v{VPF+1}, v{VPF}, s[32:35], s3 offen sc1
            s_mov_b64 exec, -1
            {lab}_nf:
            """)
        A(f"""
        s_cmp_lt_u32 s76, 10
        s_cbranch_scc1 {lab}
        """)
        A("s_waitcnt vmcnt(0) lgkmcnt(0)")
        if halo or cname == "c4":
            if cname == "c4":
                A(f"s_cmp_eq_u32 s51, 1\ns_cbranch_scc1 {name}_epiB4")
            A(f"""
            v_and_b32 v{VTA}, 15, v{VL}
            v_lshrrev_b32 v{VTA+1}, 4, v{VL}
            v_mul_u32_u24 v{VTA}, {RSQ}, v{VTA}
            v_lshl_add_u32 v{VTA}, v{VTA+1}, 3, v{VTA}
            s_lshl_b32 s60, s59, 5
            v_add_u32 v{VTA}, s60, v{VTA}
            s_lshl_b32 s60, s57, 2
            s_add_u32 s60, s60, 1
            s_mul_i32 s60, s60, {16*RSQ}
            v_add_u32 v{VTA+1}, s60, v{VTA}
            """)
            k = 0
            for j in range(nc):
                for i in range(4):
                    a = ACC + (i * 4 + j) * 4
                    t = F0 + 2 * k; k += 1
                    A(f"v_cvt_pk_bf16_f32 v{t}, v{a}, v{a+1}")
                    A(f"v_cvt_pk_bf16_f32 v{t+1}, v{a+2}, v{a+3}")
                    A(f"ds_write_b64 v{VTA+1}, v[{t}:{t+1}] offset:{i*16*RSQ + j*32}")
            for hi, j in enumerate(halo):
                a = ACC + (16 + hi) * 4
                t = F0 + 2 * k; k += 1
                A(f"v_cvt_pk_bf16_f32 v{t}, v{a}, v{a+1}")
                A(f"v_cvt_pk_bf16_f32 v{t+1}, v{a+2}, v{a+3}")
                A(f"ds_write_b64 v{VTA}, v[{t}:{t+1}] offset:{j*32}")
            A(f"s_branch {name}_attn")
        else:
            A(f"s_branch {name}_epiB3")

    A(f"{name}_attn:")
    mi, g = VTA, VTA + 1
    vQ, vK0, vK1, vV = VTA + 2, VTA + 3, VTA + 4, VTA + 5
    vmlo, vmhi, vsh = VTA + 6, VTA + 7, VTA + 8
    A(f"""
    v_and_b32 v{mi}, 15, v{VL}
    v_lshrrev_b32 v{g}, 4, v{VL}
    s_mul_i32 s60, s50, {16*RSQ}
    v_mul_u32_u24 v{vK0}, {RSQ}, v{mi}
    v_lshl_add_u32 v{vK0}, v{g}, 4, v{vK0}
    v_add_u32 v{vK0}, s60, v{vK0}
    v_add_u32 v{vQ}, {16*RSQ}, v{vK0}
    v_add_u32 v{vK0}, 160, v{vK0}
    v_add_u32 v{vK1}, 160, v{vQ}
    v_lshrrev_b32 v{VTA+9}, 2, v{mi}
    v_lshl_add_u32 v{VTA+9}, v{g}, 2, v{VTA+9}
    v_mul_u32_u24 v{vV}, {RSQ}, v{VTA+9}
    v_and_b32 v{VTA+9}, 3, v{mi}
    v_lshl_add_u32 v{vV}, v{VTA+9}, 3, v{vV}
    v_add_u32 v{vV}, s60, v{vV}
    v_add_u32 v{vV}, 320, v{vV}
    v_cmp_gt_u32 vcc, 3, v{g}
    v_cndmask_b32 v{vmlo}, 0, -1, vcc
    v_cmp_gt_u32 vcc, 2, v{g}
    v_cndmask_b32 v{vmhi}, 0, -1, vcc
    v_and_b32 v{VTA+9}, 1, v{mi}
    v_lshlrev_b32 v{vsh}, 4, v{VTA+9}
    v_cmp_eq_u32 s[60:61], 1, v{VTA+9}            ; Mpar
    v_lshrrev_b32 v{VTA+9}, 1, v{mi}              ; qe
    v_lshlrev_b32 v{VTA+10}, 1, v{g}
    v_cmp_le_u32 s[62:63], v{VTA+10}, v{VTA+9}
    v_add_u32 v{VTA+10}, 1, v{VTA+10}
    v_cmp_le_u32 s[64:65], v{VTA+10}, v{VTA+9}
    v_cmp_le_u32 s[70:71], 1, v{g}               ; Mg1
    v_cmp_le_u32 s[72:73], 2, v{g}               ; Mg2
    v_cmp_le_u32 s[74:75], 3, v{g}               ; Mg3
    s_add_u32 s76, s52, s50
    s_not_b64 s[66:67], s[62:63]
    s_not_b64 s[68:69], s[64:65]
    s_cmp_eq_u32 s76, 0
    s_cselect_b64 s[66:67], s[66:67], 0          ; Minv0
    s_cselect_b64 s[68:69], s[68:69], 0          ; Minv1
    s_waitcnt lgkmcnt(0)
    s_barrier
    """)
    Q = lambda h: 0 + 4 * h
    K0 = lambda h: 16 + 4 * h
    K1 = lambda h: 32 + 4 * h
    V = lambda b: 48 + 4 * b
    S0 = lambda h: 68 + 4 * h
    S1 = lambda h: 84 + 4 * h
    L = lambda h, t: 100 + 2 * h + t
    M = lambda h: 108 + h
    T = lambda h: 112 + h
    P = lambda h: 116 + 4 * h
    O = lambda n: 0 + 4 * n
    PK = 132
    for h in range(4):
        A(f"ds_read2_b64 {R(Q(h))}, v{vQ} offset0:{h*5} offset1:{h*5+1}")
        A(f"ds_read2_b64 {R(K0(h))}, v{vK0} offset0:{h*5} offset1:{h*5+1}")
        A(f"ds_read2_b64 {R(K1(h))}, v{vK1} offset0:{h*5} offset1:{h*5+1}")
    for h in range(4):
        A(f"s_waitcnt lgkmcnt({9 - 3*h})")
        q = Q(h)
        A(f"""
        v_and_b32 v{q}, v{q}, v{vmlo}
        v_and_b32 v{q+1}, v{q+1}, v{vmlo}
        v_and_b32 v{q+2}, v{q+2}, v{vmhi}
        v_and_b32 v{q+3}, v{q+3}, v{vmhi}
        v_mfma_f32_16x16x32_bf16 {R(S0(h))}, {R(K0(h))}, {R(q)}, 0
        v_mfma_f32_16x16x32_bf16 {R(S1(h))}, {R(K1(h))}, {R(q)}, 0
        """)
    for b in range(5):
        A(f"ds_read_b64_tr_b16 v[{V(b)}:{V(b)+1}], v{vV} offset:{b*32}")
        A(f"ds_read_b64_tr_b16 v[{V(b)+2}:{V(b)+3}], v{vV} offset:{b*32 + 16*RSQ}")
    A(f"s_mov_b32 s77, 0xffff0000")
    A(f"s_mov_b32 s78, {SCALE}")
    A(f"s_mov_b32 s79, 0xce6e6b28")
    A(f"v_mov_b32 v{VTA+11}, s79")
    Mc = ["s[62:63]", "s[64:65]"]; Minv = ["s[66:67]", "s[68:69]"]
    for h in range(4):
        for t in range(2):
            A(f"v_cndmask_b32 v{S0(h)+2*t}, v{S0(h)+2*t}, v{S0(h)+2*t+1}, s[60:61]")
            A(f"v_cndmask_b32 v{S1(h)+2*t}, v{S1(h)+2*t}, v{S1(h)+2*t+1}, s[60:61]")
    for h in range(4):
        for t in range(2):
            A(f"v_cndmask_b32 v{L(h,t)}, v{S0(h)+2*t}, v{S1(h)+2*t}, {Mc[t]}")
    for h in range(4):
        l0, l1, t_ = L(h, 0), L(h, 1), T(h)
        A(f"""
        v_cvt_pk_bf16_f32 v{t_}, v{l0}, v{l1}
        v_lshlrev_b32 v{l0}, 16, v{t_}
        v_and_b32 v{l1}, s77, v{t_}
        v_mul_f32 v{l0}, s78, v{l0}
        v_mul_f32 v{l1}, s78, v{l1}
        v_cvt_pk_bf16_f32 v{t_}, v{l0}, v{l1}
        v_lshlrev_b32 v{l0}, 16, v{t_}
        v_and_b32 v{l1}, s77, v{t_}
        v_cndmask_b32 v{l0}, v{l0}, v{VTA+11}, {Minv[0]}
        v_cndmask_b32 v{l1}, v{l1}, v{VTA+11}, {Minv[1]}
        v_max_f32 v{M(h)}, v{l0}, v{l1}
        """)
    for swap in ("v_permlane16_swap_b32", "v_permlane32_swap_b32"):
        for h in range(4):
            A(f"v_mov_b32 v{T(h)}, v{M(h)}")
        for h in range(4):
            A(f"{swap} v{T(h)}, v{M(h)}")
        for h in range(4):
            A(f"v_max_f32 v{M(h)}, v{M(h)}, v{T(h)}")
    A(f"s_mov_b32 s79, {LOG2E}")
    for h in range(4):
        for t in range(2):
            A(f"v_sub_f32 v{L(h,t)}, v{L(h,t)}, v{M(h)}")
    for h in range(4):
        for t in range(2):
            A(f"v_mul_f32 v{L(h,t)}, s79, v{L(h,t)}")
    for h in range(4):
        for t in range(2):
            A(f"v_exp_f32 v{L(h,t)}, v{L(h,t)}")
    for h in range(4):
        A(f"v_add_f32 v{M(h)}, v{L(h,0)}, v{L(h,1)}")
    for swap in ("v_permlane16_swap_b32", "v_permlane32_swap_b32"):
        for h in range(4):
            A(f"v_mov_b32 v{T(h)}, v{M(h)}")
        for h in range(4):
            A(f"{swap} v{T(h)}, v{M(h)}")
        for h in range(4):
            A(f"v_add_f32 v{M(h)}, v{M(h)}, v{T(h)}")
    for h in range(4):
        A(f"v_rcp_f32 v{M(h)}, v{M(h)}")
    for h in range(4):
        for t in range(2):
            A(f"v_mul_f32 v{L(h,t)}, v{L(h,t)}, v{M(h)}")
    for h in range(4):
        for t in range(2):
            A(f"v_cvt_pk_bf16_f32 v{L(h,t)}, v{L(h,t)}, 0")
    for h in range(4):
        for t in range(2):
            A(f"v_lshlrev_b32 v{L(h,t)}, v{vsh}, v{L(h,t)}")
    for h in range(4):
        for t in range(2):
            A(f"v_cndmask_b32 v{P(h)+t}, v{L(h,t)}, 0, {Mc[t]}")
            A(f"v_cndmask_b32 v{P(h)+2+t}, 0, v{L(h,t)}, {Mc[t]}")
    A("s_waitcnt lgkmcnt(0)")
    for h in range(4):
        for e in range(2):
            A(f"v_mfma_f32_16x16x32_bf16 {R(O(2*h+e))}, {R(V(h+e))}, {R(P(h))}, 0")
    Mg = {1: "s[70:71]", 2: "s[72:73]", 3: "s[74:75]"}
    A(f"""
    s_lshr_b32 s60, s50, 2
    s_lshl_b32 s61, s54, 1
    s_add_u32 s60, s60, s61              ; t
    s_mul_i32 s60, s60, 74
    s_mul_i32 s61, s53, 5
    s_lshr_b32 s61, s61, 1
    s_add_u32 s60, s60, s61              ; t*74 + kb0
    s_lshl_b32 s60, s60, 2
    s_and_b32 s61, s50, 3
    s_add_u32 s60, s60, s61
    s_lshl_b32 s60, s60, 10
    s_add_u32 s61, s60, 4096
    s_add_u32 s62, s60, 8192
    """)
    A(f"v_cvt_pk_bf16_f32 v{PK}, v{O(0)}, v{O(0)+1}")
    A(f"v_cvt_pk_bf16_f32 v{PK+1}, v{O(0)+2}, v{O(0)+3}")
    for b in (1, 2, 3):
        lo, hi = O(2 * (b - 1) + 1), O(2 * b)
        for r in range(4):
            A(f"v_cndmask_b32 v{lo+r}, v{lo+r}, v{hi+r}, {Mg[b]}")
        A(f"v_cvt_pk_bf16_f32 v{PK+2*b}, v{lo}, v{lo+1}")
        A(f"v_cvt_pk_bf16_f32 v{PK+2*b+1}, v{lo+2}, v{lo+3}")
    A(f"v_cvt_pk_bf16_f32 v{PK+8}, v{O(7)}, v{O(7)+1}")
    A(f"v_cvt_pk_bf16_f32 v{PK+9}, v{O(7)+2}, v{O(7)+3}")
    A(f"""
    s_and_b32 s63, s53, 1
    s_cmp_eq_u32 s63, 1
    s_cbranch_scc1 {name}_ostodd
    buffer_store_dwordx4 v[{PK}:{PK+3}], v{VLANE16}, s[28:31], s60 offen{ST}
    buffer_store_dwordx4 v[{PK+4}:{PK+7}], v{VLANE16}, s[28:31], s61 offen{ST}
    buffer_store_dwordx2 v[{PK+8}:{PK+9}], v{VLANE16}, s[28:31], s62 offen{ST}
    s_branch {name}_done
    {name}_ostodd:
    buffer_store_dwordx2 v[{PK}:{PK+1}], v{VLANE16}, s[28:31], s60 offen offset:8{ST}
    buffer_store_dwordx4 v[{PK+2}:{PK+5}], v{VLANE16}, s[28:31], s61 offen{ST}
    buffer_store_dwordx4 v[{PK+6}:{PK+9}], v{VLANE16}, s[28:31], s62 offen{ST}
    s_branch {name}_done
    """)

    def mish_blocks(blks):
        def each(f):
            for (a, bias, dst, t) in blks:
                A(f(a, bias, dst, t))
        each(lambda a, b, d, t: f"v_cvt_pk_bf16_f32 v{t}, v{a}, v{a+1}\nv_cvt_pk_bf16_f32 v{t+1}, v{a+2}, v{a+3}")
        each(lambda a, b, d, t: f"v_lshlrev_b32 v{a}, 16, v{t}\nv_and_b32 v{a+1}, s77, v{t}\n"
                                f"v_lshlrev_b32 v{a+2}, 16, v{t+1}\nv_and_b32 v{a+3}, s77, v{t+1}")
        each(lambda a, b, d, t: f"v_pk_add_f32 v[{a}:{a+1}], v[{a}:{a+1}], v[{b}:{b+1}]\n"
                                f"v_pk_add_f32 v[{a+2}:{a+3}], v[{a+2}:{a+3}], v[{b+2}:{b+3}]")
        each(lambda a, b, d, t: f"v_cvt_pk_bf16_f32 v{t}, v{a}, v{a+1}\nv_cvt_pk_bf16_f32 v{t+1}, v{a+2}, v{a+3}")
        each(lambda a, b, d, t: f"v_lshlrev_b32 v{a}, 16, v{t}\nv_and_b32 v{a+1}, s77, v{t}\n"
                                f"v_lshlrev_b32 v{a+2}, 16, v{t+1}\nv_and_b32 v{a+3}, s77, v{t+1}")
        each(lambda a, b, d, t: f"v_pk_mul_f32 v[{t}:{t+1}], v[{a}:{a+1}], s[78:79]\n"
                                f"v_pk_mul_f32 v[{t+2}:{t+3}], v[{a+2}:{a+3}], s[78:79]")
        each(lambda a, b, d, t: "\n".join(f"v_exp_f32 v{t+r}, v{t+r}" for r in range(4)))
        each(lambda a, b, d, t: f"v_pk_add_f32 v[{t}:{t+1}], v[{t}:{t+1}], s[66:67]\n"
                                f"v_pk_add_f32 v[{t+2}:{t+3}], v[{t+2}:{t+3}], s[66:67]")
        each(lambda a, b, d, t: f"v_pk_fma_f32 v[{t}:{t+1}], v[{t}:{t+1}], v[{t}:{t+1}], s[66:67]\n"
                                f"v_pk_fma_f32 v[{t+2}:{t+3}], v[{t+2}:{t+3}], v[{t+2}:{t+3}], s[66:67]")
        each(lambda a, b, d, t: "\n".join(f"v_rcp_f32 v{t+r}, v{t+r}" for r in range(4)))
        each(lambda a, b, d, t: f"v_pk_fma_f32 v[{t}:{t+1}], v[{t}:{t+1}], v[{VC2}:{VC2+1}], s[66:67]\n"
                                f"v_pk_fma_f32 v[{t+2}:{t+3}], v[{t+2}:{t+3}], v[{VC2}:{VC2+1}], s[66:67]")
        each(lambda a, b, d, t: f"v_pk_mul_f32 v[{t}:{t+1}], v[{t}:{t+1}], v[{a}:{a+1}]\n"
                                f"v_pk_mul_f32 v[{t+2}:{t+3}], v[{t+2}:{t+3}], v[{a+2}:{a+3}]")
        each(lambda a, b, d, t: f"v_cvt_pk_bf16_f32 v{d}, v{t}, v{t+1}\nv_cvt_pk_bf16_f32 v{d+1}, v{t+2}, v{t+3}")

    def epiB_common():
        A(f"""
        s_mov_b32 s77, 0xffff0000
        s_mov_b32 s78, {LOG2E}
        s_mov_b32 s79, {LOG2E}
        s_mov_b32 s66, 1.0
        s_mov_b32 s67, 1.0
        v_mov_b32 v{VC2}, -2.0
        v_mov_b32 v{VC2+1}, -2.0
        s_add_u32 s60, s55, s59            ; fb0
        s_lshl_b32 s61, s54, 1
        s_add_u32 s61, s61, s57            ; t
        s_mul_i32 s61, s61, 74
        s_lshr_b32 s62, s60, 1
        s_add_u32 s61, s61, s62
        s_add_u32 s61, s61, 20
        s_lshl_b32 s61, s61, 12
        s_add_u32 s62, s61, 4096
        """)
        for j in range(4):
            A(f"v_lshlrev_b32 v{VBIAS+4*j}, 16, v{VBRAW+2*j}")
            A(f"v_and_b32 v{VBIAS+4*j+1}, s77, v{VBRAW+2*j}")
            A(f"v_lshlrev_b32 v{VBIAS+4*j+2}, 16, v{VBRAW+2*j+1}")
            A(f"v_and_b32 v{VBIAS+4*j+3}, s77, v{VBRAW+2*j+1}")

    def blk(i, j):
        return ACC + (i * 4 + j) * 4
    A(f"{name}_epiB4:")
    epiB_common()
    for i in range(4):
        d = VDB + 8 * i
        mish_blocks([(blk(i, j), VBIAS + 4 * j, d + 2 * j, VTB + 4 * j + 16 * (i % 2)) for j in range(4)])
        A(f"buffer_store_dwordx4 v[{d}:{d+3}], v{VLANE16}, s[28:31], s61 offen offset:{i*1024}{ST}")
        A(f"buffer_store_dwordx4 v[{d+4}:{d+7}], v{VLANE16}, s[28:31], s62 offen offset:{i*1024}{ST}")
    A(f"s_branch {name}_done")
    A(f"{name}_epiB3:")
    epiB_common()
    A(f"""
    s_and_b32 s63, s60, 1
    s_cmp_eq_u32 s63, 1
    s_cbranch_scc1 {name}_epiB3odd
    """)
    for i in range(4):
        d = VDB + 8 * i
        mish_blocks([(blk(i, j), VBIAS + 4 * j, d + 2 * j, VTB + 4 * j + 16 * (i % 2)) for j in range(3)])
        A(f"buffer_store_dwordx4 v[{d}:{d+3}], v{VLANE16}, s[28:31], s61 offen offset:{i*1024}{ST}")
        A(f"buffer_store_dwordx2 v[{d+4}:{d+5}], v{VLANE16}, s[28:31], s62 offen offset:{i*1024}{ST}")
    A(f"s_branch {name}_done")
    A(f"{name}_epiB3odd:")
    for i in range(4):
        d = VDB + 8 * i
        mish_blocks([(blk(i, j), VBIAS + 4 * j, d + 2 + 2 * j, VTB + 4 * j + 16 * (i % 2)) for j in range(3)])
        A(f"buffer_store_dwordx2 v[{d+2}:{d+3}], v{VLANE16}, s[28:31], s61 offen offset:{i*1024+8}{ST}")
        A(f"buffer_store_dwordx4 v[{d+4}:{d+7}], v{VLANE16}, s[28:31], s62 offen offset:{i*1024}{ST}")


    A(f"{name}_done:")
    if stamp:
        A("s_memrealtime s[86:87]")
    A(f"""
    s_waitcnt vmcnt(0) lgkmcnt(0)
    s_barrier
    """)
    if stamp:
        A("s_memrealtime s[84:85]")
    A("s_barrier")
    if stamp:
        A("s_memrealtime s[88:89]")
    AB = lambda b, i: 80 + 16 * b + 4 * i
    WB = lambda j: 128 + 4 * j
    V7, V5, VA = 148, 149, 150
    A(f"""
    s_lshl_b32 s60, s20, 6
    s_lshr_b32 s61, s50, 1
    s_lshl_b32 s61, s61, 4
    s_add_u32 s60, s60, s61
    v_and_b32 v{V5}, 15, v{VL}
    v_add_u32 v{V5}, s60, v{V5}
    v_lshlrev_b32 v{VA}, 2, v{V5}
    s_mov_b32 s61, {WS_G}
    buffer_load_dword v{V7}, v{VA}, s[28:31], s61 offen{LD}
    v_add_u32 v{VA}, s24, v{VLANE16}
    v_add_u32 v{VA+1}, 0x14000, v{VA}
    """)

    def aloads(b):
        return [f"buffer_load_dwordx4 {R(AB(b, i))}, v{VLANE16}, s[28:31], s22 offen offset:{i*1024}{LD}" for i in range(4)] + \
               ["s_add_u32 s22, s22, 4096"]

    def body2(n):
        q = VQ()
        q.add("pre", 1)
        for i in range(2):
            for l in aloads(i): A(l)
            q.add(f"A{i}", 4)
        for i in range(n):
            slot = (i + 2) % 4
            tags = [t for t in (f"A{i}", f"W{i}") if t in q.q]
            last = max(tags, key=lambda t: max(k for k, x in enumerate(q.q) if x == t))
            A(f"s_waitcnt vmcnt({q.wait_for(last)})")
            for j in range(5):
                off = (slot % 2) * 40960 + j * 1024
                A(f"ds_read_b128 {R(WB(j))}, v{VA + slot//2} offset:{off}")
            if i + 2 < n:
                for l in aloads((i + 2) % 3): A(l)
                q.add(f"A{i+2}", 4)
            mf = []
            for j in range(5):
                for ii in range(4):
                    acc = R((ii * 5 + j) * 4)
                    mf.append(f"v_mfma_f32_16x16x32_bf16 {acc}, {R(WB(j))}, {R(AB(i % 3, ii))}, {acc if i else 0}")
            A("s_waitcnt lgkmcnt(0)")
            fill = []
            if i + 4 < n:
                w = wdma(slot)
                fill = [w[0:2], w[2:3], w[3:4], w[4:5], w[5:]]
                q.add(f"W{i+4}", 5)
            interleave(A, mf, fill)

    A(f"""
    s_cmp_lt_u32 s50, 2
    s_cbranch_scc0 {name}_b9
    """)
    body2(10)
    A(f"s_branch {name}_epi2")
    A(f"{name}_b9:")
    body2(9)
    A(f"{name}_epi2:")
    if stamp:
        A("s_memrealtime s[90:91]")
    for i in range(4):
        for j in range(5):
            A(f"ds_write_b128 v{VA + i//2}, {R((i*5+j)*4)} offset:{(i%2)*40960 + j*1024}")
    A(f"""
    s_lshr_b32 s60, s50, 1
    s_mul_i32 s60, s60, 40960
    s_and_b32 s61, s50, 1
    s_mul_i32 s62, s61, 3072
    s_add_u32 s60, s60, s62
    v_add_u32 v{VA}, s60, v{VLANE16}
    s_waitcnt lgkmcnt(0)
    s_barrier
    """)
    for jj in range(3):
        if jj == 2:
            A(f"s_cmp_eq_u32 s61, 1\ns_cbranch_scc1 {name}_rd_done")
        for w in range(8):
            b = (jj * 8 + w) * 4
            A(f"ds_read_b128 v[{b}:{b+3}], v{VA} offset:{jj*1024 + w*5120}")
    A(f"{name}_rd_done:")
    V9, V11, VO = 151, 154, 156
    A(f"""
    s_waitcnt vmcnt(0)
    v_sub_f32 v{V9}, 1.0, v{V7}
    v_cvt_pk_bf16_f32 v{V9}, v{V9}, v{V9}
    v_lshlrev_b32 v{V9}, 16, v{V9}
    v_lshrrev_b32 v{VO}, 4, v{VL}
    v_mul_u32_u24 v{V11}, 1280, v{V5}
    v_lshl_add_u32 v{V11}, v{VO}, 3, v{V11}
    s_mul_i32 s60, s21, 160
    s_mul_i32 s62, s61, 96
    s_add_u32 s60, s60, s62
    s_mov_b32 s62, 0xffff0000
    s_waitcnt lgkmcnt(0)
    """)
    for jj in range(3):
        if jj == 2:
            A(f"s_cmp_eq_u32 s61, 1\ns_cbranch_scc1 {name}_fin")
        base = jj * 32
        a0, a1, b1 = base, base + 4, base + 8
        pk = lambda op, d, x, y: A(f"{op} v[{d}:{d+1}], v[{x}:{x+1}], v[{y}:{y+1}]")
        for h in (0, 2):
            pk("v_pk_add_f32", a0 + h, a0 + h, a1 + h)
            pk("v_pk_add_f32", b1 + h, b1 + h, b1 + 4 + h)
            pk("v_pk_add_f32", b1 + 8 + h, b1 + 8 + h, b1 + 12 + h)
            pk("v_pk_add_f32", b1 + 16 + h, b1 + 16 + h, b1 + 20 + h)
        for h in (0, 2):
            pk("v_pk_add_f32", b1 + h, b1 + h, b1 + 8 + h)
        for h in (0, 2):
            pk("v_pk_add_f32", b1 + h, b1 + h, b1 + 16 + h)
        for p in range(2):
            ra, rb = a0 + 2 * p, b1 + 2 * p
            t0, t1 = b1 + 8 + 2 * p, b1 + 12 + 2 * p
            A(f"""
            v_cvt_pk_bf16_f32 v{t0}, v{ra}, v{ra+1}
            v_cvt_pk_bf16_f32 v{t1}, v{rb}, v{rb+1}
            v_lshlrev_b32 v{ra}, 16, v{t0}
            v_and_b32 v{ra+1}, s62, v{t0}
            v_lshlrev_b32 v{rb}, 16, v{t1}
            v_and_b32 v{rb+1}, s62, v{t1}
            v_mul_f32 v{ra}, v{V7}, v{ra}
            v_mul_f32 v{ra+1}, v{V7}, v{ra+1}
            v_mul_f32 v{rb}, v{V9}, v{rb}
            v_mul_f32 v{rb+1}, v{V9}, v{rb+1}
            v_cvt_pk_bf16_f32 v{t0}, v{ra}, v{ra+1}
            v_cvt_pk_bf16_f32 v{t1}, v{rb}, v{rb+1}
            v_lshlrev_b32 v{ra}, 16, v{t0}
            v_and_b32 v{ra+1}, s62, v{t0}
            v_lshlrev_b32 v{rb}, 16, v{t1}
            v_and_b32 v{rb+1}, s62, v{t1}
            v_pk_add_f32 v[{ra}:{ra+1}], v[{ra}:{ra+1}], v[{rb}:{rb+1}]
            v_cvt_pk_bf16_f32 v{VO+2*jj+p}, v{ra}, v{ra+1}
            """)
        A(f"buffer_store_dwordx2 v[{VO+2*jj}:{VO+2*jj+1}], v{V11}, s[36:39], s60 offen offset:{jj*32}")
    A(f"{name}_fin:")
    if stamp:
        A(f"""
        s_waitcnt vmcnt(0)
        s_memrealtime s[94:95]
        s_waitcnt lgkmcnt(0)
        v_mov_b32 v16, s80
        v_mov_b32 v17, s94
        v_mov_b32 v18, s82
        v_mov_b32 v19, s84
        v_mov_b32 v20, s86
        v_mov_b32 v21, s88
        v_mov_b32 v22, s90
        v_mov_b32 v23, 0
        s_lshl_b32 s60, s2, 3
        s_add_u32 s60, s60, s50
        s_lshl_b32 s60, s60, 5
        s_add_u32 s60, s60, {WS_STAMP}
        v_mov_b32 v14, 0
        buffer_store_dwordx4 v[16:19], v14, s[28:31], s60 offen
        buffer_store_dwordx4 v[20:23], v14, s[28:31], s60 offen offset:16
        """)
    A(f"{name}_exit:")
    A("s_endpgm")


def desc(name):
    return f"""
.section .rodata,"a"
.p2align 6
.amdhsa_kernel {name}
  .amdhsa_next_free_vgpr 168
  .amdhsa_next_free_sgpr 102
  .amdhsa_accum_offset 168
  .amdhsa_group_segment_fixed_size 0
  .amdhsa_kernarg_size 88
  .amdhsa_user_sgpr_count 2
  .amdhsa_user_sgpr_kernarg_segment_ptr 1
  .amdhsa_system_sgpr_workgroup_id_x 1
.end_amdhsa_kernel
"""


if __name__ == "__main__":
    import sys
    NAME = "gated_mix__sliding_local_dilated__dense_activation_mish__prompt"
    out = f"cdna_kernels/{NAME}.s"
    for a in sys.argv[1:]:
        if a.endswith(".s"): out = a
    A = Asm()
    A.raw(f"; @launch grid=(256,1,1) block=({NWAVE*64},1,1) lds={P1_LDS}")
    A.raw('.amdgcn_target "amdgcn-amd-amdhsa--gfx950"')
    gen_fused(A, NAME + "_kernel", stamp="stamp" in sys.argv, prefetch="pf" in sys.argv)
    open(out, "w").write(A.finish() + desc(NAME + "_kernel"))
    print("wrote", out)
```

```python
from asmlib import Asm

WS_ACT, WS_WF, WS_G = 0, 0xA00000, 0xE00000
WS_SIZE = 0x1000000
WS_STAMP = 0xF00000
WS_FLAG = 0xE80000
WS_FLAG2 = 0xE90000
OUT_BYTES = 2048 * 640 * 2
P1_LDS = 160 * 1024
STAGE = 49152
XREG = 18432
RL_BASE = 3 * STAGE
GLDS = RL_BASE + 15360
BLDS = GLDS + 64
RSQ = 488
LOG2E = 0x3fb8aa3b
SCALE = 0x3e64f92e

ACC = 0
F0 = 72
F1 = 108
VW = 144
VXA = 148
VXH = 150
VLANE16 = 152
VL = 153
VBRAW = 154
VPF = 162
VC2 = 164
VT = 72
VTA = 154
VBIAS = 72
VTB = 88
VDB = 120
VDMA = 4
HT = 8
HF = 100
NWAVE = 12
ROT = 1
ROT2 = 0
WTOUCH = 0
PF0 = 2


def xfrag(fs, i):
    return fs + 4 * i
def wfrag(fs, j):
    return fs + 20 + 4 * j
def R(b, n=4):
    return "v[%d:%d]" % (b, b + n - 1)


def interleave(A, mf, fillers):
    n = len(mf)
    for mi, m in enumerate(mf):
        A(m)
        if mi < len(fillers):
            for l in fillers[mi]: A(l)
    for g in fillers[n:]:
        for l in g: A(l)


class VQ:
    def __init__(self): self.q = []
    def add(self, tag, n): self.q += [tag] * n
    def wait_for(self, tag):
        last = max(i for i, t in enumerate(self.q) if t == tag)
        n = len(self.q) - 1 - last
        self.q = self.q[last + 1:]
        return n


def gen_fused(A, name, stamp=False, prefetch=False):
    ST = " sc1"
    LD = ""
    A(f"""
.text
.globl {name}
.p2align 8
.type {name},@function
{name}:
    s_cmp_ge_u32 s2, 256
    s_cbranch_scc1 {name}_exit
    """)
    if stamp:
        A("s_memrealtime s[80:81]")
        A("s_memtime s[92:93]")
    A(f"""
    s_load_dwordx4 s[96:99], s[0:1], 64
    s_load_dwordx4 s[4:7], s[0:1], 0
    s_load_dwordx2 s[8:9], s[0:1], 16
    s_load_dwordx2 s[10:11], s[0:1], 80
    s_load_dwordx4 s[12:15], s[0:1], 32
    s_load_dwordx4 s[16:19], s[0:1], 48
    v_lshrrev_b32 v1, 6, v0
    v_and_b32 v{VL}, 63, v0
    v_readfirstlane_b32 s50, v1
    v_lshlrev_b32 v{VLANE16}, 4, v{VL}
    s_and_b32 s60, s2, 7
    s_lshr_b32 s61, s2, 3
    s_and_b32 s62, s60, 1
    s_lshl_b32 s62, s62, 3
    s_and_b32 s63, s61, 7
    s_add_u32 s54, s62, s63            ; s54 = mt (0..15)
    s_lshl_b32 s52, s54, 7             ; s52 = m0
    s_lshr_b32 s62, s60, 1             ; cq
    s_lshr_b32 s63, s61, 3             ; cl
    s_lshr_b32 s51, s63, 1             ; s51 = type (0=A,1=B)
    s_and_b32 s63, s63, 1
    s_lshl_b32 s62, s62, 1
    s_add_u32 s53, s62, s63
    s_mul_i32 s55, s53, 14
    s_lshr_b32 s62, s53, 2
    s_lshl_b32 s62, s62, 1
    s_sub_u32 s55, s55, s62
    s_and_b32 s62, s53, 3
    s_cmp_eq_u32 s62, 3
    s_cselect_b32 s56, 1, 0
    s_and_b32 s57, s50, 1              ; s57 = mh
    s_lshr_b32 s58, s50, 1             ; s58 = ng
    s_mov_b32 s64, 3456
    s_cmp_eq_u32 s51, 0
    s_cselect_b32 s64, 3840, s64
    s_cselect_b32 s65, 1152, 0
    s_mul_i32 s62, s53, 160
    s_mul_i32 s63, s55, 32
    s_cselect_b32 s66, s62, s63
    s_lshl_b32 s62, s56, 1
    s_sub_u32 s62, 14, s62
    s_cmp_eq_u32 s51, 0
    s_cselect_b32 s67, 64, s62
    s_lshl_b32 s68, s64, 6
    s_lshl_b32 s3, s54, 4
    s_lshl_b32 s60, s51, 3
    s_add_u32 s3, s3, s60
    s_add_u32 s3, s3, s53
    s_cmp_ge_u32 s50, 8
    s_cbranch_scc0 {name}_compute
    s_setprio 3
    v_mov_b32 v{HF}, 0
    s_sub_u32 s50, s50, 8              ; h
    s_lshl_b32 s60, s50, 4
    s_mul_i32 s72, s60, s64
    s_lshl_b32 s61, s64, 1
    s_add_u32 s73, s72, s61            ; +2
    s_lshl_b32 s62, s64, 3
    s_add_u32 s74, s72, s62            ; +8
    s_add_u32 s75, s74, s61            ; +10
    s_lshl_b32 s63, s64, 2
    s_add_u32 s76, s72, s63            ; +4
    s_add_u32 s77, s76, s61            ; +6
    s_add_u32 s78, s74, s63            ; +12
    s_add_u32 s79, s78, s61            ; +14
    s_lshl_b32 s60, s50, 5
    s_add_u32 s60, s60, s52
    s_mul_i32 s20, s60, 1280
    s_sub_u32 s60, s52, 16
    s_lshl_b32 s61, s50, 3
    s_add_u32 s60, s60, s61
    s_mul_i32 s22, s60, 1280
    s_cmp_eq_u32 s52, 0
    s_cselect_b32 s22, 0x80000000, s22
    s_mov_b32 s90, -1
    s_mov_b32 s91, 0x0fffffff
    s_mul_i32 s71, s50, 7680
    s_add_u32 s71, s71, {XREG}
    s_lshl_b32 s23, s50, 12
    s_add_u32 s23, s23, 2048
    s_lshl_b32 s48, s50, 10
    s_lshl_b32 s60, s51, 1
    s_add_u32 s60, s60, s50
    s_cmp_lt_u32 s60, 2
    s_cselect_b32 s70, 1, 0
    s_cmp_eq_u32 s51, 0
    s_cselect_b32 s62, 12, 14
    s_and_b32 s63, s53, 1
    s_cselect_b32 s63, s63, 0
    s_cmp_eq_u32 s51, 0
    s_cselect_b32 s63, s63, 0
    s_lshl_b32 s60, s62, 1
    v_lshrrev_b32 v{HT}, 1, v{VL}                    ; pos
    v_cmp_le_u32 vcc, s62, v{HT}
    v_subrev_u32 v{HT+1}, s62, v{HT}
    v_xor_b32 v{HT+1}, 1, v{HT+1}
    v_cndmask_b32 v{HT+1}, v{HT}, v{HT+1}, vcc
    v_cndmask_b32 v{HT+2}, 0, 1, vcc                 ; parity
    v_lshrrev_b32 v{HT+3}, 2, v{HT+1}
    v_mul_u32_u24 v{HT+3}, s65, v{HT+3}
    v_lshl_add_u32 v{HT+3}, v{HT+1}, 5, v{HT+3}
    s_lshl_b32 s61, s63, 5
    v_add_u32 v{HT+3}, s61, v{HT+3}
    ; singles (type A): q = pos-24 (0..5): parity = q>=3, grp = q%3, e = hgpar?0:4
    v_subrev_u32 v{HT+4}, 24, v{HT}
    v_cmp_le_u32 vcc, 3, v{HT+4}
    v_subrev_u32 v{HT+5}, 3, v{HT+4}
    v_cndmask_b32 v{HT+4}, v{HT+4}, v{HT+5}, vcc
    v_cndmask_b32 v{HT+5}, 0, 1, vcc
    v_mul_u32_u24 v{HT+4}, 1280, v{HT+4}
    s_lshl_b32 s61, s63, 7
    s_sub_u32 s61, 128, s61
    v_add_u32 v{HT+4}, s61, v{HT+4}
    v_cmp_le_u32 vcc, s60, v{HT}
    v_cndmask_b32 v{HT+3}, v{HT+3}, v{HT+4}, vcc
    v_cndmask_b32 v{HT+2}, v{HT+2}, v{HT+5}, vcc
    v_mul_u32_u24 v{HT+2}, s64, v{HT+2}
    v_and_b32 v{HT+4}, 1, v{VL}
    v_lshl_add_u32 v{HT+3}, v{HT+4}, 4, v{HT+3}
    v_add3_u32 v{HT+1}, v{HT+2}, v{HT+3}, s66        ; offset
    s_cmp_eq_u32 s51, 0
    s_cselect_b32 s60, 64, s60
    v_cmp_le_u32 vcc, s60, v{HT}
    v_mov_b32 v{HT+2}, 0x80000000
    v_cndmask_b32 v{HT+1}, v{HT+1}, v{HT+2}, vcc
    v_cmp_le_u32 vcc, s62, v{HT}
    v_subrev_u32 v{HT+4}, s62, v{HT}
    v_cndmask_b32 v{HT+4}, v{HT}, v{HT+4}, vcc
    v_cmp_le_u32 vcc, s67, v{HT+4}
    v_lshrrev_b32 v{HT+3}, 3, v{VL}
    v_cndmask_b32 v{VDMA}, v{HT+1}, v{HT+2}, vcc
    v_mul_u32_u24 v{HT+3}, 1280, v{HT+3}
    v_and_b32 v{HT+1}, 7, v{VL}
    v_lshrrev_b32 v{HT+2}, 4, v{VL}
    v_xor_b32 v{HT+1}, v{HT+1}, v{HT+2}
    v_lshl_add_u32 v{VDMA+1}, v{HT+1}, 4, v{HT+3}
    v_xor_b32 v{VDMA+2}, 64, v{VDMA+1}
    v_mov_b32 v{VDMA+3}, v{VDMA+1}
    s_cmp_eq_u32 s50, 1
    s_cbranch_scc0 {name}_h0
    v_mov_b32 v{VDMA+3}, v{VDMA+2}
    {name}_h0:
    s_waitcnt lgkmcnt(0)
    s_mov_b32 s36, s4
    s_and_b32 s37, s5, 0xffff
    s_mov_b32 s38, 2621440
    s_mov_b32 s39, 0x20000
    s_mov_b32 s26, 2211840
    s_cmp_eq_u32 s51, 0
    s_cselect_b32 s24, s6, s12
    s_cselect_b32 s25, s7, s13
    s_cselect_b32 s26, 2457600, s26
    s_and_b32 s25, s25, 0xffff
    s_mov_b32 s27, 0x20000
    s_mov_b32 s28, s10
    s_and_b32 s29, s11, 0xffff
    s_mov_b32 s30, {WS_SIZE}
    s_mov_b32 s31, 0x20000
    s_mov_b32 s40, s18
    s_and_b32 s41, s19, 0xffff
    s_mov_b32 s42, 1280
    s_mov_b32 s43, 0x20000
    s_mov_b32 s21, 0
    s_lshl_b32 s67, s64, 6
    s_lshr_b32 s60, s2, 6              ; cl
    s_mul_i32 s60, s60, 3
    s_and_b32 s61, s54, 7
    s_add_u32 s60, s60, s61
    s_sub_u32 s61, s60, 10
    s_cmp_ge_u32 s60, 10
    s_cselect_b32 s44, s61, s60
    s_mul_i32 s44, s44, {ROT}
    s_lshl_b32 s60, s44, 7
    s_add_u32 s20, s20, s60
    s_add_u32 s22, s22, s60
    s_mul_i32 s60, s44, s67
    s_add_u32 s72, s72, s60
    s_add_u32 s73, s73, s60
    s_add_u32 s74, s74, s60
    s_add_u32 s75, s75, s60
    s_add_u32 s76, s76, s60
    s_add_u32 s77, s77, s60
    s_add_u32 s78, s78, s60
    s_add_u32 s79, s79, s60
    s_mul_i32 s45, s67, -9
    s_mov_b32 s66, 128
    s_and_b32 s63, s3, 31
    s_lshl_b32 s60, s50, 5
    s_add_u32 s63, s63, s60                ; kb
    s_mov_b32 s34, 2211840
    s_cmp_lt_u32 s63, 20
    s_cselect_b32 s32, s8, s16
    s_cselect_b32 s33, s9, s17
    s_cselect_b32 s34, 819200, s34
    s_cselect_b32 s60, 0, 20
    s_sub_u32 s60, s63, s60
    s_mul_i32 s60, s60, 40960
    s_lshr_b32 s61, s3, 5
    s_mul_i32 s61, s61, 160
    s_add_u32 s62, s60, s61
    s_cmp_lt_u32 s63, 74
    s_cselect_b32 s62, s62, 0x80000000
    s_lshl_b32 s60, s55, 5
    s_cmp_eq_u32 s50, 3
    s_cselect_b32 s32, s14, s32
    s_cselect_b32 s33, s15, s33
    s_cselect_b32 s34, 3456, s34
    s_cselect_b32 s62, s60, s62
    s_and_b32 s33, s33, 0xffff
    s_mov_b32 s35, 0x20000
    s_lshr_b32 s60, s3, 5
    s_mul_i32 s60, s60, 74
    s_add_u32 s60, s60, s63
    s_mul_i32 s60, s60, 5120
    s_add_u32 s64, s60, {WS_WF}
    s_cmp_lt_u32 s63, 74
    s_cselect_b32 s64, s64, 0x80000000
    s_add_u32 s65, s64, 4096
    s_mul_i32 s63, s50, 5120
    s_add_u32 s63, s63, {RL_BASE + 0}
    s_and_b32 s60, s3, 15
    s_lshl_b32 s60, s60, 3
    s_add_u32 s60, s60, s52
    s_lshl_b32 s61, s50, 1
    s_add_u32 s49, s60, s61
    s_cmp_eq_u32 s70, 1
    s_cbranch_scc1 {name}_hA
    s_branch {name}_hB
    """)

    def dma_sub(halo):
        A(f"{name}_dma{int(halo)}:")
        A(f"""
        s_add_u32 s44, s44, 1
        s_cmp_eq_u32 s44, 10
        s_cselect_b32 s46, s45, s67
        s_cselect_b32 s47, {(-1152) & 0xffffffff}, s66
        s_cselect_b32 s44, 0, s44
        """)
        A("s_add_u32 s68, s23, s21")
        for i in range(4):
            A(f"""
            s_add_u32 s69, s20, {i*10240}
            s_add_u32 m0, s68, {i*1024}
            buffer_load_dwordx4 v{VDMA+1+(i&1)}, s[36:39], s69 offen lds
            """)
        if halo:
            A(f"""
            s_add_u32 m0, s48, s21
            buffer_load_dwordx4 v{VDMA+3}, s[36:39], s22 offen lds
            s_add_u32 s22, s22, s47
            """)
        A("s_add_u32 s68, s71, s21")
        A("s_mov_b64 exec, s[90:91]")
        for i in range(8):
            A(f"""
            s_add_u32 m0, s68, {i*960}
            buffer_load_dwordx4 v{VDMA}, s[24:27], s{72+i} offen lds
            s_add_u32 s{72+i}, s{72+i}, s46
            """)
        A("s_mov_b64 exec, -1")
        A(f"""
        s_add_u32 s20, s20, s47
        s_add_u32 s21, s21, {STAGE}
        s_cmp_eq_u32 s21, {3*STAGE}
        s_cselect_b32 s21, 0, s21
        s_setpc_b64 s[88:89]
        """)
    dma_sub(False)
    dma_sub(True)

    GX = HT + 8
    G = [HT + 24, HT + 25]
    T2 = HT + 28

    def early_aux():
        A(f"""
        s_cmp_eq_u32 s50, 3
        s_cbranch_scc1 {{0}}
        """.format(f"{name}_ea3_{early_aux.n}"))
        for i in range(5):
            A(f"""
            v_add_u32 v{HT+1}, {64*i}, v{VL}
            v_mul_u32_u24 v{HT+2}, 205, v{HT+1}
            v_lshrrev_b32 v{HT+2}, 11, v{HT+2}
            v_mul_u32_u24 v{HT+3}, 10, v{HT+2}
            v_sub_u32 v{HT+3}, v{HT+1}, v{HT+3}
            v_mul_u32_u24 v{HT+2}, 1280, v{HT+2}
            v_lshl_add_u32 v{HT+2}, v{HT+3}, 4, v{HT+2}
            s_add_u32 m0, s63, {i*1024}
            buffer_load_dwordx4 v{HT+2}, s[32:35], s62 offen lds
            """)
        A(f"""
        s_branch {name}_ea_end{early_aux.n}
        {name}_ea3_{early_aux.n}:
        s_mov_b32 m0, {BLDS}
        s_mov_b64 exec, 0xffffffff
        buffer_load_dwordx4 v{VLANE16}, s[32:35], s62 offen lds
        s_lshr_b32 s60, s3, 4
        s_lshl_b32 s60, s60, 8
        s_and_b32 s61, s3, 15
        s_lshl_b32 s61, s61, 2
        s_add_u32 s60, s60, s61
        s_add_u32 s60, s60, {WS_FLAG}
        v_mov_b32 v{HT+1}, 0
        s_mov_b64 exec, 1
        buffer_store_dword v{HT+1}, v{HT+1}, s[28:31], s60 offen sc1
        s_lshl_b32 s60, s3, 2
        s_add_u32 s60, s60, {WS_FLAG2}
        buffer_store_dword v{HT+1}, v{HT+1}, s[28:31], s60 offen sc1
        buffer_store_dword v{HT+1}, v{HT+1}, s[28:31], s64 offen
        buffer_store_dword v{HT+1}, v{HT+1}, s[28:31], s64 offen
        s_mov_b64 exec, -1
        {name}_ea_end{early_aux.n}:
        """)
        early_aux.n += 1
        return 5
    early_aux.n = 0

    def rl_store(tag):
        A(f"""
        v_lshrrev_b32 v{HT}, 2, v{VL}
        v_mul_u32_u24 v{HT}, 160, v{HT}
        v_and_b32 v{HT+1}, 3, v{VL}
        v_lshl_add_u32 v{HT}, v{HT+1}, 3, v{HT}
        v_add_u32 v{HT}, s63, v{HT}
        """)
        for j in range(5):
            b = HT + 60 + 4 * j
            A(f"ds_read_b64_tr_b16 v[{b}:{b+1}], v{HT} offset:{j*32}")
            A(f"ds_read_b64_tr_b16 v[{b+2}:{b+3}], v{HT} offset:{j*32 + 2560}")
        A("s_waitcnt lgkmcnt(0)")
        for j in range(5):
            b = HT + 60 + 4 * j
            if j < 4:
                A(f"buffer_store_dwordx4 v[{b}:{b+3}], v{VLANE16}, s[28:31], s64 offen offset:{j*1024}{ST}")
            else:
                A(f"buffer_store_dwordx4 v[{b}:{b+3}], v{VLANE16}, s[28:31], s65 offen{ST}")
        return 5

    def aux_loads(rl):
        A(f"""
        s_mul_i32 s61, s49, 1280
        v_lshlrev_b32 v{HT}, 2, v{VL}
        buffer_load_dwordx4 v[{GX}:{GX+3}], v{VLANE16}, s[36:39], s61 offen
        buffer_load_dword v{GX+12}, v{HT}, s[36:39], s61 offen offset:1024
        buffer_load_dwordx4 v[{GX+4}:{GX+7}], v{VLANE16}, s[36:39], s61 offen offset:1280
        buffer_load_dword v{GX+13}, v{HT}, s[36:39], s61 offen offset:2304
        buffer_load_dwordx4 v[{GX+8}:{GX+11}], v{VLANE16}, s[40:43], 0 offen
        buffer_load_dword v{GX+14}, v{HT}, s[40:43], 0 offen offset:1024
        """)
        return 6

    def aux_proc(rl):
        A("s_mov_b32 s68, 0xffff0000")
        for r in range(2):
            for i in range(5):
                x = GX + 4 * r + i if i < 4 else GX + 12 + r
                gw = GX + 8 + i if i < 4 else GX + 14
                t = T2 + 4 * i
                A(f"""
                v_lshlrev_b32 v{t}, 16, v{x}
                v_and_b32 v{t+1}, s68, v{x}
                v_lshlrev_b32 v{t+2}, 16, v{gw}
                v_and_b32 v{t+3}, s68, v{gw}
                v_pk_mul_f32 v[{t}:{t+1}], v[{t}:{t+1}], v[{t+2}:{t+3}]
                v_cvt_pk_bf16_f32 v{t}, v{t}, v{t+1}
                v_and_b32 v{t+1}, s68, v{t}
                v_lshlrev_b32 v{t}, 16, v{t}
                """)
            A(f"""
            v_pk_add_f32 v[{T2}:{T2+1}], v[{T2}:{T2+1}], v[{T2+4}:{T2+5}]
            v_pk_add_f32 v[{T2+8}:{T2+9}], v[{T2+8}:{T2+9}], v[{T2+12}:{T2+13}]
            v_pk_add_f32 v[{T2}:{T2+1}], v[{T2}:{T2+1}], v[{T2+16}:{T2+17}]
            v_pk_add_f32 v[{T2}:{T2+1}], v[{T2}:{T2+1}], v[{T2+8}:{T2+9}]
            v_add_f32 v{G[r]}, v{T2}, v{T2+1}
            """)
        for sh in (1, 2, 4, 8):
            for r in range(2):
                A(f"v_add_f32_dpp v{G[r]}, v{G[r]}, v{G[r]} row_ror:{sh} row_mask:0xf bank_mask:0xf")
        for swap in ("v_permlane16_swap_b32", "v_permlane32_swap_b32"):
            for r in range(2):
                A(f"v_mov_b32 v{T2+r}, v{G[r]}")
            for r in range(2):
                A(f"{swap} v{T2+r}, v{G[r]}")
            for r in range(2):
                A(f"v_add_f32 v{G[r]}, v{G[r]}, v{T2+r}")
        for r in range(2):
            A(f"""
            v_cvt_pk_bf16_f32 v{G[r]}, v{G[r]}, v{G[r]}
            v_lshlrev_b32 v{G[r]}, 16, v{G[r]}
            v_mul_f32 v{G[r]}, 0xbfb8aa3b, v{G[r]}
            v_exp_f32 v{G[r]}, v{G[r]}
            v_add_f32 v{G[r]}, 1.0, v{G[r]}
            v_rcp_f32 v{G[r]}, v{G[r]}
            v_cvt_pk_bf16_f32 v{G[r]}, v{G[r]}, v{G[r]}
            v_lshlrev_b32 v{G[r]}, 16, v{G[r]}
            """)
        A(f"""
        s_lshl_b32 s60, s50, 3
        s_add_u32 s60, s60, {GLDS}
        v_mov_b32 v{HT}, s60
        s_mov_b64 exec, 1
        ds_write_b64 v{HT}, v[{G[0]}:{G[1]}]
        s_mov_b64 exec, -1
        s_waitcnt lgkmcnt(0)
        """)
        return 0

    for var, halo in (("hA", True), ("hB", False)):
        nd = 13 if halo else 12
        q = VQ()
        A(f"{name}_{var}:")
        def D(k):
            A(f"s_call_b64 s[88:89], {name}_dma{int(halo)}")
            q.add(f"D{k}", nd)
        def B(k):
            A(f"s_waitcnt vmcnt({q.wait_for(f'D{k}')})")
            A("s_barrier")
        D(0); D(1); B(0)
        D(2); q.add("ea", early_aux()); B(1)
        D(3); B(2)
        D(4); B(3)
        if not halo:
            A(f"""
            s_cmp_eq_u32 s50, 3
            s_cbranch_scc0 {name}_nordy
            s_mov_b32 s32, s98
            s_and_b32 s33, s99, 0xffff
            s_mov_b32 s34, 256
            s_mov_b32 s35, 0x20000
            v_mov_b32 v{HT+1}, 1
            v_mov_b32 v{HT+2}, 0
            s_mov_b64 exec, 1
            buffer_store_byte v{HT+1}, v{HT+2}, s[32:35], s3 offen sc1
            s_mov_b64 exec, -1
            {name}_nordy:
            """)
        D(5); q.add("rs", rl_store(var)); B(4)
        D(6); q.add("aux", aux_loads(False)); B(5)
        D(7); B(6)
        A(f"""
        s_cmp_eq_u32 s50, 1
        s_cbranch_scc0 {name}_nowf{var}
        v_mov_b32 v{HT+1}, 1
        v_mov_b32 v{HT+2}, 0
        s_lshl_b32 s60, s3, 2
        s_add_u32 s60, s60, {WS_FLAG2}
        s_mov_b64 exec, 1
        buffer_store_dword v{HT+1}, v{HT+2}, s[28:31], s60 offen sc1
        s_mov_b64 exec, -1
        {name}_nowf{var}:
        """)
        D(8)
        A(f"""
        s_cmp_eq_u32 s50, 0
        s_cbranch_scc0 {name}_nodbg{var}
        s_mov_b32 s32, s98
        s_and_b32 s33, s99, 0xffff
        s_mov_b32 s34, 256
        s_mov_b32 s35, 0x20000
        s_and_b32 s60, s2, 7
        s_lshr_b32 s61, s2, 3
        s_lshl_b32 s56, s60, 2
        s_lshr_b32 s62, s61, 3
        s_add_u32 s56, s56, s62                ; t2
        s_and_b32 s57, s61, 7                  ; u2
        s_lshr_b32 s58, s56, 1
        s_lshl_b32 s60, s58, 4
        s_lshl_b32 s61, s57, 5
        s_sub_u32 s61, s61, 16
        v_min_u32 v{HF+2}, 11, v{VL}
        v_lshlrev_b32 v{HF}, 2, v{HF+2}
        v_cmp_gt_u32 vcc, 4, v{HF+2}
        v_mov_b32 v{HF+3}, s61
        v_mov_b32 v{HF+4}, s60
        v_cndmask_b32 v{HF+3}, v{HF+3}, v{HF+4}, vcc
        v_add_u32 v{HF}, v{HF}, v{HF+3}
        buffer_load_dword v{HF+1}, v{HF}, s[32:35], 0 offen sc1
    
        {name}_nodbg{var}:
        """)
        A(f"s_waitcnt vmcnt({q.wait_for('D7')})")
        A("s_barrier")
        D(9)
        aux_proc(False)
        B(8)
        A(f"""
        s_cmp_eq_u32 s50, 0
        s_cbranch_scc1 {name}_htail
        s_waitcnt vmcnt(0)
        s_barrier
        s_endpgm
        """)
    def hw(tag, slot0, i0):
        A(f"""
        s_mov_b32 s73, 0
        s_mov_b32 s74, s72
        s_mov_b32 s75, {slot0*40960}
        {name}_hw{tag}:
        s_cmp_lt_u32 s73, 2
        s_cselect_b32 s76, 10, 9
        """)
        for un in range(2):
            A(f"""
            s_add_u32 s77, s59, {i0 + un}
            s_sub_u32 s78, s77, s76
            s_cmp_ge_u32 s77, s76
            s_cselect_b32 s77, s78, s77
            s_mul_i32 s77, s77, 5120
            s_add_u32 s69, s74, s77
            s_add_u32 m0, s75, {un*40960}
            """)
            for j in range(4):
                A(f"buffer_load_dwordx4 v{VLANE16}, s[28:31], s69 offen offset:{j*1024} lds")
            A(f"""
            s_add_u32 m0, s75, {un*40960 + 4096}
            s_add_u32 s69, s69, 4096
            buffer_load_dwordx4 v{VLANE16}, s[28:31], s69 offen lds
            """)
        A(f"""
        s_add_u32 s75, s75, 5120
        s_mul_i32 s77, s76, 5120
        s_add_u32 s74, s74, s77
        s_add_u32 s73, s73, 1
        s_cmp_lt_u32 s73, 8
        s_cbranch_scc1 {name}_hw{tag}
        """)
    A(f"""
    {name}_htail:
    s_waitcnt vmcnt(0)
    s_barrier                              ; B9
    v_and_b32 v{HT+5}, 31, v{VL}
    v_lshlrev_b32 v{HT+5}, 2, v{HT+5}
    s_lshl_b32 s23, s57, 7
    s_add_u32 s23, s23, {WS_FLAG2}
    buffer_load_dword v{HT+6}, v{HT+5}, s[28:31], s23 offen sc1
    s_mul_i32 s72, s57, {74*5120}
    s_add_u32 s72, s72, {WS_WF}
    s_and_b32 s60, s57, 3
    s_lshl_b32 s60, s60, 1
    s_and_b32 s61, s56, 7
    s_add_u32 s60, s60, s61
    s_sub_u32 s61, s60, 9
    s_cmp_ge_u32 s60, 9
    s_cselect_b32 s59, s61, s60
    s_mul_i32 s59, s59, {ROT2}
    s_mov_b32 s26, 0x01010101
    s_barrier                              ; B10
    s_cmp_eq_u32 s51, 0
    s_cbranch_scc0 {name}_hnoattn
    s_barrier
    {name}_hnoattn:
    s_mov_b32 s48, 1
    s_waitcnt vmcnt(0)
    v_and_b32 v{HF+1}, s26, v{HF+1}
    v_cmp_ne_u32 vcc, s26, v{HF+1}
    s_cbranch_vccnz {name}_hskip
    v_cmp_ne_u32 vcc, 1, v{HT+6}
    s_cbranch_vccnz {name}_hskip
    s_mov_b32 s48, 0
    """)
    hw("a", 2, 0)
    def wtouch():
        A(f"""
        s_and_b32 s60, s56, 3
        s_mul_i32 s60, s60, {740*128}
        s_add_u32 s60, s60, s72
        v_lshlrev_b32 v{HT+7}, 7, v{VL}
        """)
        for k in range(12):
            A(f"buffer_load_dword v{HT+8}, v{HT+7}, s[28:31], s60 offen")
            A("s_add_u32 s60, s60, 8192")
    if WTOUCH: wtouch()
    A(f"""
    {name}_hskip:
    s_barrier
    v_mov_b32 v{HT+3}, 1
    v_mov_b32 v{HT+2}, 0
    s_lshr_b32 s60, s3, 4
    s_lshl_b32 s60, s60, 8
    s_and_b32 s61, s3, 15
    s_lshl_b32 s61, s61, 2
    s_add_u32 s60, s60, s61
    s_add_u32 s60, s60, {WS_FLAG}
    s_mov_b64 exec, 1
    buffer_store_dword v{HT+3}, v{HT+2}, s[28:31], s60 offen sc1
    s_mov_b64 exec, -1
    s_cmp_eq_u32 s48, 0
    s_cbranch_scc1 {name}_hready
    s_mov_b32 s27, 0
    {name}_hwf:
    buffer_load_dword v{HF+1}, v{HF}, s[32:35], 0 offen sc1
    s_waitcnt vmcnt(0)
    v_and_b32 v{HF+1}, s26, v{HF+1}
    v_cmp_ne_u32 vcc, s26, v{HF+1}
    s_cbranch_vccz {name}_hwf2
    s_add_u32 s27, s27, 1
    s_cmp_gt_u32 s27, 0x40000
    s_cbranch_scc1 {name}_hwf2
    s_sleep 8
    s_branch {name}_hwf
    {name}_hwf2:
    buffer_load_dword v{HT+6}, v{HT+5}, s[28:31], s23 offen sc1
    s_waitcnt vmcnt(0)
    v_cmp_ne_u32 vcc, 1, v{HT+6}
    s_cbranch_vccz {name}_hwfok
    s_add_u32 s27, s27, 1
    s_cmp_gt_u32 s27, 0x40000
    s_cbranch_scc1 {name}_hwfok
    s_sleep 4
    s_branch {name}_hwf2
    {name}_hwfok:
    """)
    hw("b", 2, 0)
    A(f"{name}_hready:")
    hw("c", 0, 2)
    A(f"""
    s_lshl_b32 s60, s58, 8
    s_add_u32 s60, s60, {WS_FLAG}
    v_and_b32 v{HT}, 15, v{VL}
    v_lshlrev_b32 v{HT}, 2, v{HT}
    s_mov_b32 s27, 0
    {name}_poll:
    buffer_load_dword v{HT+1}, v{HT}, s[28:31], s60 offen sc1
    s_waitcnt vmcnt(0)
    v_cmp_ne_u32 vcc, 1, v{HT+1}
    s_cbranch_vccz {name}_hgate
    s_add_u32 s27, s27, 1
    s_cmp_gt_u32 s27, 0x40000
    s_cbranch_scc1 {name}_hgate
    s_sleep 2
    s_branch {name}_poll
    {name}_hgate:
    s_barrier
    s_endpgm
    """)

    A(f"""
    {name}_compute:
    s_lshl_b32 s60, s58, 2
    s_cmp_eq_u32 s58, 3
    s_cselect_b32 s60, 11, s60
    s_mul_i32 s61, s58, 3
    s_cmp_eq_u32 s56, 1
    s_cselect_b32 s60, s61, s60
    s_and_b32 s61, s58, 1
    s_lshl_b32 s61, s61, 3
    s_lshr_b32 s62, s58, 1
    s_lshl_b32 s62, s62, 2
    s_add_u32 s61, s61, s62
    s_cmp_eq_u32 s51, 0
    s_cselect_b32 s59, s61, s60
    """)
    A(f"""
    v_and_b32 v{VT}, 15, v{VL}                 ; mi
    v_lshrrev_b32 v{VT+1}, 4, v{VL}            ; g
    v_lshrrev_b32 v{VT+2}, 1, v{VT}            ; mi>>1
    v_xor_b32 v{VT+3}, v{VT+1}, v{VT+2}
    v_lshlrev_b32 v{VT+3}, 4, v{VT+3}
    v_lshl_add_u32 v{VXH}, v{VT}, 7, v{VT+3}
    v_xor_b32 v{VXH+1}, 64, v{VXH}
    s_lshl_b32 s60, s57, 13
    s_add_u32 s60, s60, 2048
    v_add_u32 v{VXA}, s60, v{VXH}
    v_add_u32 v{VXA+1}, s60, v{VXH+1}
    v_lshrrev_b32 v{VT+2}, 1, v{VT+1}          ; g1
    v_and_b32 v{VT+3}, 1, v{VT+1}              ; g0
    v_lshrrev_b32 v{VT+4}, 3, v{VT}            ; rr>>1
    v_lshl_add_u32 v{VT+4}, v{VT+3}, 1, v{VT+4}
    v_lshl_add_u32 v{VT+4}, v{VT+2}, 3, v{VT+4}    ; slot>>1
    v_mul_u32_u24 v{VT+4}, 960, v{VT+4}
    v_and_b32 v{VT+5}, 3, v{VT}
    v_lshl_add_u32 v{VT+4}, v{VT+5}, 3, v{VT+4}
    v_add_u32 v{VT+4}, {XREG}, v{VT+4}
    v_bfe_u32 v{VT+5}, v{VT}, 2, 1
    v_cmp_eq_u32 vcc, 1, v{VT+5}
    s_cmp_eq_u32 s51, 0
    s_cselect_b32 s62, 12, 14
    s_and_b32 s63, s53, 1
    s_cmp_eq_u32 s51, 0
    s_cselect_b32 s63, s63, 0
    """)
    for j in range(4):
        A(f"""
        s_add_u32 s69, s59, {j}
        s_mul_i32 s60, s69, 13
        s_lshr_b32 s60, s60, 6
        s_mul_i32 s61, s60, 5
        s_sub_u32 s61, s69, s61                ; e
        s_sub_u32 s61, s61, s63
        s_lshl_b32 s78, s60, 2
        s_add_u32 s78, s78, s61
        s_cmp_eq_u32 s51, 0
        s_cselect_b32 s78, s78, s69
        s_cselect_b32 s79, s61, 0
        s_xor_b32 s77, s78, 1
        s_add_u32 s77, s77, s62
        s_add_u32 s76, s60, 24
        s_add_u32 s69, s60, 27
        s_cmp_gt_u32 s79, 3
        s_cselect_b32 s78, s76, s78
        s_cselect_b32 s77, s69, s77
        s_lshl_b32 s78, s78, 5
        s_lshl_b32 s77, s77, 5
        v_mov_b32 v{VT+6}, s78
        v_mov_b32 v{VT+7}, s77
        v_cndmask_b32 v{VT+6}, v{VT+6}, v{VT+7}, vcc
        v_add_u32 v{VW+j}, v{VT+6}, v{VT+4}
        """)
    for i in range(72):
        A(f"v_mov_b32 v{ACC+i}, 0")
    A(f"""
    s_waitcnt lgkmcnt(0)
    s_mov_b32 s28, s10
    s_and_b32 s29, s11, 0xffff
    s_mov_b32 s30, {WS_SIZE}
    s_mov_b32 s31, 0x20000
    s_mov_b32 s44, s14
    s_and_b32 s45, s15, 0xffff
    s_mov_b32 s46, 3456
    s_mov_b32 s47, 0x20000
    """)
    A(f"""
    s_mov_b32 s32, s98
    s_and_b32 s33, s99, 0xffff
    s_mov_b32 s34, 256
    s_mov_b32 s35, 0x20000
    s_mov_b32 s36, s96
    s_and_b32 s37, s97, 0xffff
    s_mov_b32 s38, {OUT_BYTES}
    s_mov_b32 s39, 0x20000
    s_and_b32 s60, s2, 7
    s_lshr_b32 s61, s2, 3
    s_lshl_b32 s20, s60, 2
    s_lshr_b32 s62, s61, 3
    s_add_u32 s20, s20, s62                ; t2
    s_and_b32 s21, s61, 7                  ; u2
    s_mul_i32 s60, s50, 9
    s_add_u32 s60, s60, 2
    s_mul_i32 s61, s50, 10
    s_cmp_lt_u32 s50, 2
    s_cselect_b32 s60, s61, s60            ; kb0
    s_mul_i32 s22, s20, 74
    s_add_u32 s22, s22, s60
    s_lshl_b32 s22, s22, 12
    s_mul_i32 s23, s21, 74
    s_add_u32 s23, s23, s60
    s_mul_i32 s23, s23, 5120
    s_add_u32 s23, s23, {WS_WF}
    s_and_b32 s60, s21, 3
    s_lshl_b32 s60, s60, 1
    s_and_b32 s61, s20, 7
    s_add_u32 s60, s60, s61
    s_sub_u32 s61, s60, 9
    s_cmp_ge_u32 s60, 9
    s_cselect_b32 s26, s61, s60
    s_mul_i32 s26, s26, {ROT2}
    s_cmp_lt_u32 s50, 2
    s_cselect_b32 s48, 10, 9
    s_add_u32 s27, s26, 4
    s_sub_u32 s60, s27, s48
    s_cmp_ge_u32 s27, s48
    s_cselect_b32 s27, s60, s27
    s_lshl_b32 s60, s26, 12
    s_add_u32 s22, s22, s60
    s_mul_i32 s60, s27, 5120
    s_add_u32 s23, s23, s60
    s_mul_i32 s24, s50, 5120
    s_cmp_eq_u32 s50, 0
    s_cselect_b32 s25, 7, 99
    s_lshr_b32 s60, s3, 5
    s_and_b32 s61, s3, 31
    s_lshl_b32 s62, s50, 5
    s_add_u32 s61, s61, s62
    s_mul_i32 s60, s60, 74
    s_add_u32 s60, s60, s61
    s_mul_i32 s60, s60, 5120
    s_add_u32 s40, s60, {WS_WF}
    s_cmp_lt_u32 s61, 74
    s_cselect_b32 s40, s40, 0x80000000
    s_add_u32 s41, s40, 4096
    s_mul_i32 s42, s50, 5120
    s_add_u32 s42, s42, {RL_BASE}
    s_and_b32 s60, s3, 15
    s_lshl_b32 s60, s60, 3
    s_add_u32 s60, s60, s52
    s_lshl_b32 s60, s60, 2
    s_add_u32 s43, s60, {WS_G}
    """)
    if prefetch:
        A(f"""
        s_and_b32 s60, s2, 7
        s_lshr_b32 s61, s2, 3                  ; idx
        s_lshr_b32 s62, s60, 1                 ; cq
        s_and_b32 s60, s60, 1                  ; M half
        v_cmp_le_u32 vcc, 9, v{VL}
        v_subrev_u32 v{VT+1}, 9, v{VL}
        v_cndmask_b32 v{VT+1}, v{VL}, v{VT+1}, vcc
        s_cmp_lt_u32 s50, 4
        s_cbranch_scc0 {name}_pfW
        s_lshl_b32 s63, s61, 2
        s_add_u32 s63, s63, s50
        s_mul_i32 s63, s63, 9
        s_lshl_b32 s60, s60, 10
        s_add_u32 s63, s63, s60
        s_sub_u32 s63, s63, 16
        v_add_u32 v{VT+2}, s63, v{VT+1}
        v_max_i32 v{VT+2}, 0, v{VT+2}
        v_mul_u32_u24 v{VT+2}, 1280, v{VT+2}
        s_mov_b32 s68, s4
        s_and_b32 s69, s5, 0xffff
        s_mov_b32 s70, 2621440
        s_mov_b32 s72, 128
        s_branch {name}_pfgo
        {name}_pfW:
        s_lshl_b32 s63, s61, 1
        s_and_b32 s60, s50, 1
        s_add_u32 s63, s63, s60
        s_cmp_lt_u32 s50, 6
        s_cbranch_scc0 {name}_pfW1
        v_mul_u32_u24 v{VT+2}, 11, v{VT+1}
        v_lshrrev_b32 v{VT+2}, 5, v{VT+2}      ; grp = l9/3
        v_mul_u32_u24 v{VT+3}, 896, v{VT+2}    ; grp*(1280-384)
        v_lshl_add_u32 v{VT+2}, v{VT+1}, 7, v{VT+3}
        s_mul_i32 s60, s62, 320
        s_and_b32 s60, s60, 0xffffff80
        s_mul_i32 s63, s63, 3840
        s_add_u32 s60, s60, s63
        v_add_u32 v{VT+2}, s60, v{VT+2}
        s_mov_b32 s68, s6
        s_and_b32 s69, s7, 0xffff
        s_mov_b32 s70, 2457600
        s_mov_b32 s72, {64*3840}
        s_branch {name}_pfgo
        {name}_pfW1:
        s_mul_i32 s60, s62, 28
        s_lshr_b32 s72, s62, 1
        s_lshl_b32 s72, s72, 1
        s_sub_u32 s60, s60, s72
        s_lshl_b32 s60, s60, 5
        s_and_b32 s60, s60, 0xffffff80
        s_mul_i32 s63, s63, 3456
        s_add_u32 s60, s60, s63
        v_min_u32 v{VT+1}, 7, v{VT+1}
        v_lshlrev_b32 v{VT+2}, 7, v{VT+1}
        v_add_u32 v{VT+2}, s60, v{VT+2}
        s_mov_b32 s68, s12
        s_and_b32 s69, s13, 0xffff
        s_mov_b32 s70, 2211840
        s_mov_b32 s72, {64*3456}
        {name}_pfgo:
        s_mov_b32 s71, 0x20000
        v_mov_b32 v{VT+3}, 0x80000000
        v_add_u32 v{VT+4}, s72, v{VT+2}
        v_cndmask_b32 v{VT+4}, v{VT+2}, v{VT+4}, vcc
        v_cndmask_b32 v{VPF+1}, v{VT+2}, v{VT+3}, vcc
        v_cmp_le_u32 vcc, 18, v{VL}
        v_cndmask_b32 v{VT+4}, v{VT+4}, v{VT+3}, vcc
        s_mul_i32 s73, s72, {PF0}
        buffer_load_dword v{VPF}, v{VT+4}, s[68:71], s73 offen
        s_mul_i32 s73, s72, {PF0 + 2}
        s_mov_b32 s74, {PF0 + 2}
        """)
    A(f"""
    s_mov_b32 s76, 0
    s_mov_b32 s77, 0
    s_mov_b32 s49, {STAGE}
    """)
    classes = {"c4": (4, ()), "c4a": (4, (0, 1)), "c4b": (4, (2, 3)), "c4c": (4, (1,)),
               "c3a": (3, (0, 1)), "c3b": (3, (2,)), "c3": (3, ())}
    amap = {0: "c4", 1: "c4", 2: "c4a", 3: "c4b", 4: "c4b", 5: "c4c", 6: "c3a", 7: "c3b"}
    A(f"""
    s_cmp_eq_u32 s51, 0
    s_cbranch_scc1 {name}_dispA
    s_cmp_eq_u32 s56, 1
    s_cbranch_scc1 {name}_c3
    s_cmp_lt_u32 s58, 2
    s_cbranch_scc1 {name}_c4
    s_branch {name}_c3
    {name}_dispA:
    """)
    for w in range(2, 8):
        A(f"s_cmp_eq_u32 s50, {w}\ns_cbranch_scc1 {name}_{amap[w]}")
    A(f"s_branch {name}_c4")

    def reads(fs, kk, nc, halo):
        out = []
        for j in range(nc):
            b = wfrag(fs, j)
            out.append(f"ds_read_b64_tr_b16 v[{b}:{b+1}], v{VW+j} offset:{kk*15360}")
            out.append(f"ds_read_b64_tr_b16 v[{b+2}:{b+3}], v{VW+j} offset:{kk*15360 + 3840}")
            if j == 0:
                for i in range(4):
                    out.append(f"ds_read_b128 {R(xfrag(fs, i))}, v{VXA+kk} offset:{i*2048}")
        if halo:
            out.append(f"ds_read_b128 {R(xfrag(fs, 4))}, v{VXH+kk}")
        return out

    def mfmas(fs, nc, halo):
        out = []
        for j in range(nc):
            for i in range(4):
                a = ACC + (i * 4 + j) * 4
                out.append(f"v_mfma_f32_16x16x32_bf16 {R(a)}, {R(wfrag(fs, j))}, {R(xfrag(fs, i))}, {R(a)}")
        for hi, j in enumerate(halo):
            a = ACC + (16 + hi) * 4
            out.append(f"v_mfma_f32_16x16x32_bf16 {R(a)}, {R(wfrag(fs, j))}, {R(xfrag(fs, 4))}, {R(a)}")
        return out

    def wdma(slot):
        return [f"s_add_u32 m0, s24, {slot*40960}"] + \
               [f"buffer_load_dwordx4 v{VLANE16}, s[28:31], s23 offen offset:{j*1024}{LD} lds" for j in range(4)] + \
               [f"s_add_u32 m0, s24, {slot*40960 + 4096}", "s_add_u32 s60, s23, 4096",
                f"buffer_load_dwordx4 v{VLANE16}, s[28:31], s60 offen{LD} lds",
                "s_add_u32 s23, s23, 5120", "s_add_u32 s27, s27, 1", "s_cmp_eq_u32 s27, s48",
                "s_cselect_b32 s60, s63, 0", "s_cselect_b32 s27, 0, s27", "s_sub_u32 s23, s23, s60"]

    A(f"""
    {name}_auxg:
    v_lshrrev_b32 v{F1}, 4, v{VL}
    v_lshlrev_b32 v{F1}, 3, v{F1}
    s_lshl_b32 s60, s59, 5
    s_add_u32 s60, s60, {BLDS}
    v_add_u32 v{F1}, s60, v{F1}
    ds_read_b64 v[{VBRAW}:{VBRAW+1}], v{F1}
    ds_read_b64 v[{VBRAW+2}:{VBRAW+3}], v{F1} offset:32
    ds_read_b64 v[{VBRAW+4}:{VBRAW+5}], v{F1} offset:64
    ds_read_b64 v[{VBRAW+6}:{VBRAW+7}], v{F1} offset:96
    s_cmp_eq_u32 s50, 3
    s_cbranch_scc0 {name}_auxret
    v_lshlrev_b32 v{F1}, 2, v{VL}
    v_add_u32 v{F1+1}, {GLDS}, v{F1}
    s_mov_b64 exec, 0xff
    ds_read_b32 v{F1+2}, v{F1+1}
    s_waitcnt lgkmcnt(0)
    buffer_store_dword v{F1+2}, v{F1}, s[28:31], s43 offen{ST}
    s_mov_b64 exec, -1
    {name}_auxret:
    s_setpc_b64 s[88:89]
    """)
    for cname, (nc, halo) in classes.items():
        A(f"{name}_{cname}:")
        A("s_barrier")
        if stamp:
            A("s_memrealtime s[82:83]")
        for l in reads(F0, 0, nc, halo): A(l)
        lab = f"{name}_{cname}_loop"
        A(f"{lab}:")
        A("s_waitcnt lgkmcnt(0)")
        interleave(A, mfmas(F0, nc, halo), [[l] for l in reads(F1, 1, nc, halo)])
        A(f"""
        s_cmp_eq_u32 s77, {2*STAGE}
        s_cselect_b32 s78, {(-2*STAGE) & 0xffffffff}, s49
        s_add_u32 s77, s77, s78
        s_waitcnt lgkmcnt(0)
        s_barrier
        """)
        fill = [[f"v_add_u32 v{VW}, s78, v{VW}", f"v_add_u32 v{VXA}, s78, v{VXA}"]]
        f2 = [f"v_add_u32 v{VXA+1}, s78, v{VXA+1}"]
        if halo:
            f2.append(f"v_add_u32 v{VXH+1}, s78, v{VXH+1}")
        seq = []
        for l in reads(F0, 0, nc, halo):
            for j in range(1, nc):
                if f"v{VW+j} offset:0" in l and l.endswith("offset:0"):
                    seq.append(f"v_add_u32 v{VW+j}, s78, v{VW+j}")
            if halo and l.endswith(f"v{VXH}"):
                seq.append(f"v_add_u32 v{VXH}, s78, v{VXH}")
            seq.append(l)
        for k in range(0, len(seq), 2):
            fill.append(seq[k:k + 2])
        fill.append(f2)
        if prefetch:
            fill.append([f"buffer_load_dword v{VPF}, v{VPF+1}, s[68:71], s73 offen",
                         "s_add_u32 s73, s73, s72", "s_add_u32 s74, s74, 1", "s_cmp_lt_u32 s74, 10",
                         "s_cselect_b32 s73, s73, 0x80000000"])
        interleave(A, mfmas(F1, nc, halo), fill)
        A(f"""
        s_add_u32 s76, s76, 1
        s_cmp_eq_u32 s76, 9
        s_cbranch_scc0 {lab}_ng
        s_nop 7
        s_call_b64 s[88:89], {name}_auxg
        {lab}_ng:
        """)
        A(f"""
        s_cmp_lt_u32 s76, 10
        s_cbranch_scc1 {lab}
        """)
        A("s_waitcnt lgkmcnt(0)")
        if halo or cname == "c4":
            if cname == "c4":
                A(f"s_cmp_eq_u32 s51, 1\ns_cbranch_scc1 {name}_epiB4")
            A(f"""
            v_and_b32 v{VTA}, 15, v{VL}
            v_lshrrev_b32 v{VTA+1}, 4, v{VL}
            v_mul_u32_u24 v{VTA}, {RSQ}, v{VTA}
            v_lshl_add_u32 v{VTA}, v{VTA+1}, 3, v{VTA}
            s_lshl_b32 s60, s59, 5
            v_add_u32 v{VTA}, s60, v{VTA}
            s_lshl_b32 s60, s57, 2
            s_add_u32 s60, s60, 1
            s_mul_i32 s60, s60, {16*RSQ}
            v_add_u32 v{VTA+1}, s60, v{VTA}
            """)
            k = 0
            for j in range(nc):
                for i in range(4):
                    a = ACC + (i * 4 + j) * 4
                    t = F0 + 2 * k; k += 1
                    A(f"v_cvt_pk_bf16_f32 v{t}, v{a}, v{a+1}")
                    A(f"v_cvt_pk_bf16_f32 v{t+1}, v{a+2}, v{a+3}")
                    A(f"ds_write_b64 v{VTA+1}, v[{t}:{t+1}] offset:{i*16*RSQ + j*32}")
            for hi, j in enumerate(halo):
                a = ACC + (16 + hi) * 4
                t = F0 + 2 * k; k += 1
                A(f"v_cvt_pk_bf16_f32 v{t}, v{a}, v{a+1}")
                A(f"v_cvt_pk_bf16_f32 v{t+1}, v{a+2}, v{a+3}")
                A(f"ds_write_b64 v{VTA}, v[{t}:{t+1}] offset:{j*32}")
            A(f"s_branch {name}_attn")
        else:
            A(f"s_branch {name}_epiB3")

    A(f"{name}_attn:")
    mi, g = VTA, VTA + 1
    vQ, vK0, vK1, vV = VTA + 2, VTA + 3, VTA + 4, VTA + 5
    vmlo, vmhi, vsh = VTA + 6, VTA + 7, VTA + 8
    A(f"""
    v_and_b32 v{mi}, 15, v{VL}
    v_lshrrev_b32 v{g}, 4, v{VL}
    s_mul_i32 s60, s50, {16*RSQ}
    v_mul_u32_u24 v{vK0}, {RSQ}, v{mi}
    v_lshl_add_u32 v{vK0}, v{g}, 4, v{vK0}
    v_add_u32 v{vK0}, s60, v{vK0}
    v_add_u32 v{vQ}, {16*RSQ}, v{vK0}
    v_add_u32 v{vK0}, 160, v{vK0}
    v_add_u32 v{vK1}, 160, v{vQ}
    v_lshrrev_b32 v{VTA+9}, 2, v{mi}
    v_lshl_add_u32 v{VTA+9}, v{g}, 2, v{VTA+9}
    v_mul_u32_u24 v{vV}, {RSQ}, v{VTA+9}
    v_and_b32 v{VTA+9}, 3, v{mi}
    v_lshl_add_u32 v{vV}, v{VTA+9}, 3, v{vV}
    v_add_u32 v{vV}, s60, v{vV}
    v_add_u32 v{vV}, 320, v{vV}
    v_cmp_gt_u32 vcc, 3, v{g}
    v_cndmask_b32 v{vmlo}, 0, -1, vcc
    v_cmp_gt_u32 vcc, 2, v{g}
    v_cndmask_b32 v{vmhi}, 0, -1, vcc
    v_and_b32 v{VTA+9}, 1, v{mi}
    v_lshlrev_b32 v{vsh}, 4, v{VTA+9}
    v_cmp_eq_u32 s[60:61], 1, v{VTA+9}            ; Mpar
    v_lshrrev_b32 v{VTA+9}, 1, v{mi}              ; qe
    v_lshlrev_b32 v{VTA+10}, 1, v{g}
    v_cmp_le_u32 s[62:63], v{VTA+10}, v{VTA+9}
    v_add_u32 v{VTA+10}, 1, v{VTA+10}
    v_cmp_le_u32 s[64:65], v{VTA+10}, v{VTA+9}
    v_cmp_le_u32 s[70:71], 1, v{g}               ; Mg1
    v_cmp_le_u32 s[72:73], 2, v{g}               ; Mg2
    v_cmp_le_u32 s[74:75], 3, v{g}               ; Mg3
    s_add_u32 s76, s52, s50
    s_not_b64 s[66:67], s[62:63]
    s_not_b64 s[68:69], s[64:65]
    s_cmp_eq_u32 s76, 0
    s_cselect_b64 s[66:67], s[66:67], 0          ; Minv0
    s_cselect_b64 s[68:69], s[68:69], 0          ; Minv1
    s_waitcnt lgkmcnt(0)
    s_barrier
    """)
    Q = lambda h: 0 + 4 * h
    K0 = lambda h: 16 + 4 * h
    K1 = lambda h: 32 + 4 * h
    V = lambda b: 48 + 4 * b
    S0 = lambda h: 68 + 4 * h
    S1 = lambda h: 84 + 4 * h
    L = lambda h, t: 100 + 2 * h + t
    M = lambda h: 108 + h
    T = lambda h: 112 + h
    P = lambda h: 116 + 4 * h
    O = lambda n: 0 + 4 * n
    PK = 132
    for h in range(4):
        A(f"ds_read2_b64 {R(Q(h))}, v{vQ} offset0:{h*5} offset1:{h*5+1}")
        A(f"ds_read2_b64 {R(K0(h))}, v{vK0} offset0:{h*5} offset1:{h*5+1}")
        A(f"ds_read2_b64 {R(K1(h))}, v{vK1} offset0:{h*5} offset1:{h*5+1}")
    for h in range(4):
        A(f"s_waitcnt lgkmcnt({9 - 3*h})")
        q = Q(h)
        A(f"""
        v_and_b32 v{q}, v{q}, v{vmlo}
        v_and_b32 v{q+1}, v{q+1}, v{vmlo}
        v_and_b32 v{q+2}, v{q+2}, v{vmhi}
        v_and_b32 v{q+3}, v{q+3}, v{vmhi}
        v_mfma_f32_16x16x32_bf16 {R(S0(h))}, {R(K0(h))}, {R(q)}, 0
        v_mfma_f32_16x16x32_bf16 {R(S1(h))}, {R(K1(h))}, {R(q)}, 0
        """)
    for b in range(5):
        A(f"ds_read_b64_tr_b16 v[{V(b)}:{V(b)+1}], v{vV} offset:{b*32}")
        A(f"ds_read_b64_tr_b16 v[{V(b)+2}:{V(b)+3}], v{vV} offset:{b*32 + 16*RSQ}")
    A(f"s_mov_b32 s77, 0xffff0000")
    A(f"s_mov_b32 s78, {SCALE}")
    A(f"s_mov_b32 s79, 0xce6e6b28")
    A(f"v_mov_b32 v{VTA+11}, s79")
    Mc = ["s[62:63]", "s[64:65]"]; Minv = ["s[66:67]", "s[68:69]"]
    for h in range(4):
        for t in range(2):
            A(f"v_cndmask_b32 v{S0(h)+2*t}, v{S0(h)+2*t}, v{S0(h)+2*t+1}, s[60:61]")
            A(f"v_cndmask_b32 v{S1(h)+2*t}, v{S1(h)+2*t}, v{S1(h)+2*t+1}, s[60:61]")
    for h in range(4):
        for t in range(2):
            A(f"v_cndmask_b32 v{L(h,t)}, v{S0(h)+2*t}, v{S1(h)+2*t}, {Mc[t]}")
    for h in range(4):
        l0, l1, t_ = L(h, 0), L(h, 1), T(h)
        A(f"""
        v_cvt_pk_bf16_f32 v{t_}, v{l0}, v{l1}
        v_lshlrev_b32 v{l0}, 16, v{t_}
        v_and_b32 v{l1}, s77, v{t_}
        v_mul_f32 v{l0}, s78, v{l0}
        v_mul_f32 v{l1}, s78, v{l1}
        v_cvt_pk_bf16_f32 v{t_}, v{l0}, v{l1}
        v_lshlrev_b32 v{l0}, 16, v{t_}
        v_and_b32 v{l1}, s77, v{t_}
        v_cndmask_b32 v{l0}, v{l0}, v{VTA+11}, {Minv[0]}
        v_cndmask_b32 v{l1}, v{l1}, v{VTA+11}, {Minv[1]}
        v_max_f32 v{M(h)}, v{l0}, v{l1}
        """)
    for swap in ("v_permlane16_swap_b32", "v_permlane32_swap_b32"):
        for h in range(4):
            A(f"v_mov_b32 v{T(h)}, v{M(h)}")
        for h in range(4):
            A(f"{swap} v{T(h)}, v{M(h)}")
        for h in range(4):
            A(f"v_max_f32 v{M(h)}, v{M(h)}, v{T(h)}")
    A(f"s_mov_b32 s79, {LOG2E}")
    for h in range(4):
        for t in range(2):
            A(f"v_sub_f32 v{L(h,t)}, v{L(h,t)}, v{M(h)}")
    for h in range(4):
        for t in range(2):
            A(f"v_mul_f32 v{L(h,t)}, s79, v{L(h,t)}")
    for h in range(4):
        for t in range(2):
            A(f"v_exp_f32 v{L(h,t)}, v{L(h,t)}")
    for h in range(4):
        A(f"v_add_f32 v{M(h)}, v{L(h,0)}, v{L(h,1)}")
    for swap in ("v_permlane16_swap_b32", "v_permlane32_swap_b32"):
        for h in range(4):
            A(f"v_mov_b32 v{T(h)}, v{M(h)}")
        for h in range(4):
            A(f"{swap} v{T(h)}, v{M(h)}")
        for h in range(4):
            A(f"v_add_f32 v{M(h)}, v{M(h)}, v{T(h)}")
    for h in range(4):
        A(f"v_rcp_f32 v{M(h)}, v{M(h)}")
    for h in range(4):
        for t in range(2):
            A(f"v_mul_f32 v{L(h,t)}, v{L(h,t)}, v{M(h)}")
    for h in range(4):
        for t in range(2):
            A(f"v_cvt_pk_bf16_f32 v{L(h,t)}, v{L(h,t)}, 0")
    for h in range(4):
        for t in range(2):
            A(f"v_lshlrev_b32 v{L(h,t)}, v{vsh}, v{L(h,t)}")
    for h in range(4):
        for t in range(2):
            A(f"v_cndmask_b32 v{P(h)+t}, v{L(h,t)}, 0, {Mc[t]}")
            A(f"v_cndmask_b32 v{P(h)+2+t}, 0, v{L(h,t)}, {Mc[t]}")
    A("s_waitcnt lgkmcnt(0)")
    for h in range(4):
        for e in range(2):
            A(f"v_mfma_f32_16x16x32_bf16 {R(O(2*h+e))}, {R(V(h+e))}, {R(P(h))}, 0")
    Mg = {1: "s[70:71]", 2: "s[72:73]", 3: "s[74:75]"}
    A(f"""
    s_lshr_b32 s60, s50, 2
    s_lshl_b32 s61, s54, 1
    s_add_u32 s60, s60, s61              ; t
    s_mul_i32 s60, s60, 74
    s_mul_i32 s61, s53, 5
    s_lshr_b32 s61, s61, 1
    s_add_u32 s60, s60, s61              ; t*74 + kb0
    s_lshl_b32 s60, s60, 2
    s_and_b32 s61, s50, 3
    s_add_u32 s60, s60, s61
    s_lshl_b32 s60, s60, 10
    s_add_u32 s61, s60, 4096
    s_add_u32 s62, s60, 8192
    """)
    A(f"v_cvt_pk_bf16_f32 v{PK}, v{O(0)}, v{O(0)+1}")
    A(f"v_cvt_pk_bf16_f32 v{PK+1}, v{O(0)+2}, v{O(0)+3}")
    for b in (1, 2, 3):
        lo, hi = O(2 * (b - 1) + 1), O(2 * b)
        for r in range(4):
            A(f"v_cndmask_b32 v{lo+r}, v{lo+r}, v{hi+r}, {Mg[b]}")
        A(f"v_cvt_pk_bf16_f32 v{PK+2*b}, v{lo}, v{lo+1}")
        A(f"v_cvt_pk_bf16_f32 v{PK+2*b+1}, v{lo+2}, v{lo+3}")
    A(f"v_cvt_pk_bf16_f32 v{PK+8}, v{O(7)}, v{O(7)+1}")
    A(f"v_cvt_pk_bf16_f32 v{PK+9}, v{O(7)+2}, v{O(7)+3}")
    A(f"""
    s_and_b32 s63, s53, 1
    s_cmp_eq_u32 s63, 1
    s_cbranch_scc1 {name}_ostodd
    buffer_store_dwordx4 v[{PK}:{PK+3}], v{VLANE16}, s[28:31], s60 offen{ST}
    buffer_store_dwordx4 v[{PK+4}:{PK+7}], v{VLANE16}, s[28:31], s61 offen{ST}
    buffer_store_dwordx2 v[{PK+8}:{PK+9}], v{VLANE16}, s[28:31], s62 offen{ST}
    s_branch {name}_done
    {name}_ostodd:
    buffer_store_dwordx2 v[{PK}:{PK+1}], v{VLANE16}, s[28:31], s60 offen offset:8{ST}
    buffer_store_dwordx4 v[{PK+2}:{PK+5}], v{VLANE16}, s[28:31], s61 offen{ST}
    buffer_store_dwordx4 v[{PK+6}:{PK+9}], v{VLANE16}, s[28:31], s62 offen{ST}
    s_branch {name}_done
    """)

    def mish_blocks(blks):
        def each(f):
            for (a, bias, dst, t) in blks:
                A(f(a, bias, dst, t))
        each(lambda a, b, d, t: f"v_cvt_pk_bf16_f32 v{t}, v{a}, v{a+1}\nv_cvt_pk_bf16_f32 v{t+1}, v{a+2}, v{a+3}")
        each(lambda a, b, d, t: f"v_lshlrev_b32 v{a}, 16, v{t}\nv_and_b32 v{a+1}, s77, v{t}\n"
                                f"v_lshlrev_b32 v{a+2}, 16, v{t+1}\nv_and_b32 v{a+3}, s77, v{t+1}")
        each(lambda a, b, d, t: f"v_pk_add_f32 v[{a}:{a+1}], v[{a}:{a+1}], v[{b}:{b+1}]\n"
                                f"v_pk_add_f32 v[{a+2}:{a+3}], v[{a+2}:{a+3}], v[{b+2}:{b+3}]")
        each(lambda a, b, d, t: f"v_cvt_pk_bf16_f32 v{t}, v{a}, v{a+1}\nv_cvt_pk_bf16_f32 v{t+1}, v{a+2}, v{a+3}")
        each(lambda a, b, d, t: f"v_lshlrev_b32 v{a}, 16, v{t}\nv_and_b32 v{a+1}, s77, v{t}\n"
                                f"v_lshlrev_b32 v{a+2}, 16, v{t+1}\nv_and_b32 v{a+3}, s77, v{t+1}")
        each(lambda a, b, d, t: f"v_pk_mul_f32 v[{t}:{t+1}], v[{a}:{a+1}], s[78:79]\n"
                                f"v_pk_mul_f32 v[{t+2}:{t+3}], v[{a+2}:{a+3}], s[78:79]")
        each(lambda a, b, d, t: "\n".join(f"v_exp_f32 v{t+r}, v{t+r}" for r in range(4)))
        each(lambda a, b, d, t: f"v_pk_add_f32 v[{t}:{t+1}], v[{t}:{t+1}], s[66:67]\n"
                                f"v_pk_add_f32 v[{t+2}:{t+3}], v[{t+2}:{t+3}], s[66:67]")
        each(lambda a, b, d, t: f"v_pk_fma_f32 v[{t}:{t+1}], v[{t}:{t+1}], v[{t}:{t+1}], s[66:67]\n"
                                f"v_pk_fma_f32 v[{t+2}:{t+3}], v[{t+2}:{t+3}], v[{t+2}:{t+3}], s[66:67]")
        each(lambda a, b, d, t: "\n".join(f"v_rcp_f32 v{t+r}, v{t+r}" for r in range(4)))
        each(lambda a, b, d, t: f"v_pk_fma_f32 v[{t}:{t+1}], v[{t}:{t+1}], v[{VC2}:{VC2+1}], s[66:67]\n"
                                f"v_pk_fma_f32 v[{t+2}:{t+3}], v[{t+2}:{t+3}], v[{VC2}:{VC2+1}], s[66:67]")
        each(lambda a, b, d, t: f"v_pk_mul_f32 v[{t}:{t+1}], v[{t}:{t+1}], v[{a}:{a+1}]\n"
                                f"v_pk_mul_f32 v[{t+2}:{t+3}], v[{t+2}:{t+3}], v[{a+2}:{a+3}]")
        each(lambda a, b, d, t: f"v_cvt_pk_bf16_f32 v{d}, v{t}, v{t+1}\nv_cvt_pk_bf16_f32 v{d+1}, v{t+2}, v{t+3}")

    def epiB_common():
        A(f"""
        s_mov_b32 s77, 0xffff0000
        s_mov_b32 s78, {LOG2E}
        s_mov_b32 s79, {LOG2E}
        s_mov_b32 s66, 1.0
        s_mov_b32 s67, 1.0
        v_mov_b32 v{VC2}, -2.0
        v_mov_b32 v{VC2+1}, -2.0
        s_add_u32 s60, s55, s59            ; fb0
        s_lshl_b32 s61, s54, 1
        s_add_u32 s61, s61, s57            ; t
        s_mul_i32 s61, s61, 74
        s_lshr_b32 s62, s60, 1
        s_add_u32 s61, s61, s62
        s_add_u32 s61, s61, 20
        s_lshl_b32 s61, s61, 12
        s_add_u32 s62, s61, 4096
        """)
        for j in range(4):
            A(f"v_lshlrev_b32 v{VBIAS+4*j}, 16, v{VBRAW+2*j}")
            A(f"v_and_b32 v{VBIAS+4*j+1}, s77, v{VBRAW+2*j}")
            A(f"v_lshlrev_b32 v{VBIAS+4*j+2}, 16, v{VBRAW+2*j+1}")
            A(f"v_and_b32 v{VBIAS+4*j+3}, s77, v{VBRAW+2*j+1}")

    def blk(i, j):
        return ACC + (i * 4 + j) * 4
    A(f"{name}_epiB4:")
    epiB_common()
    for i in range(4):
        d = VDB + 8 * i
        mish_blocks([(blk(i, j), VBIAS + 4 * j, d + 2 * j, VTB + 4 * j + 16 * (i % 2)) for j in range(4)])
        A(f"buffer_store_dwordx4 v[{d}:{d+3}], v{VLANE16}, s[28:31], s61 offen offset:{i*1024}{ST}")
        A(f"buffer_store_dwordx4 v[{d+4}:{d+7}], v{VLANE16}, s[28:31], s62 offen offset:{i*1024}{ST}")
    A(f"s_branch {name}_done")
    A(f"{name}_epiB3:")
    epiB_common()
    A(f"""
    s_and_b32 s63, s60, 1
    s_cmp_eq_u32 s63, 1
    s_cbranch_scc1 {name}_epiB3odd
    """)
    for i in range(4):
        d = VDB + 8 * i
        mish_blocks([(blk(i, j), VBIAS + 4 * j, d + 2 * j, VTB + 4 * j + 16 * (i % 2)) for j in range(3)])
        A(f"buffer_store_dwordx4 v[{d}:{d+3}], v{VLANE16}, s[28:31], s61 offen offset:{i*1024}{ST}")
        A(f"buffer_store_dwordx2 v[{d+4}:{d+5}], v{VLANE16}, s[28:31], s62 offen offset:{i*1024}{ST}")
    A(f"s_branch {name}_done")
    A(f"{name}_epiB3odd:")
    for i in range(4):
        d = VDB + 8 * i
        mish_blocks([(blk(i, j), VBIAS + 4 * j, d + 2 + 2 * j, VTB + 4 * j + 16 * (i % 2)) for j in range(3)])
        A(f"buffer_store_dwordx2 v[{d+2}:{d+3}], v{VLANE16}, s[28:31], s61 offen offset:{i*1024+8}{ST}")
        A(f"buffer_store_dwordx4 v[{d+4}:{d+7}], v{VLANE16}, s[28:31], s62 offen offset:{i*1024}{ST}")


    A(f"{name}_done:")
    if stamp:
        A("s_memrealtime s[86:87]")
    A(f"""
    s_waitcnt vmcnt(0) lgkmcnt(0)
    s_barrier
    """)
    if stamp:
        A("s_memrealtime s[84:85]")
    A("s_barrier")
    if stamp:
        A("s_memrealtime s[88:89]")
    AB = lambda b, i: (80 + 16 * b if b < 3 else 152) + 4 * i
    WB = lambda j: 128 + 4 * j
    V7, VL16, VA = 148, 149, 150
    V5 = 80
    NB = 4
    A(f"""
    s_lshl_b32 s60, s20, 6
    s_lshr_b32 s61, s50, 1
    s_lshl_b32 s61, s61, 4
    s_add_u32 s60, s60, s61
    v_and_b32 v{V5}, 15, v{VL}
    v_add_u32 v{V5}, s60, v{V5}
    v_lshlrev_b32 v{VA}, 2, v{V5}
    s_mov_b32 s61, {WS_G}
    buffer_load_dword v{V7}, v{VA}, s[28:31], s61 offen{LD}
    v_add_u32 v{VA}, s24, v{VLANE16}
    v_mov_b32 v{VL16}, v{VLANE16}
    v_add_u32 v{VA+1}, 0x14000, v{VA}
    s_lshl_b32 s62, s48, 12
    s_mul_i32 s63, s48, 5120
    """)

    def aloads(b):
        return [f"buffer_load_dwordx4 {R(AB(b, i))}, v{VL16}, s[28:31], s22 offen offset:{i*1024}{LD}" for i in range(4)] + \
               ["s_add_u32 s22, s22, 4096", "s_add_u32 s26, s26, 1", "s_cmp_eq_u32 s26, s48",
                "s_cselect_b32 s60, s62, 0", "s_cselect_b32 s26, 0, s26", "s_sub_u32 s22, s22, s60"]

    def body2(n):
        q = VQ()
        q.add("pre", 1)
        for i in range(NB - 1):
            for l in aloads(i): A(l)
            q.add(f"A{i}", 4)
        for i in range(n):
            slot = (i + 2) % 4
            tags = [t for t in (f"A{i}", f"W{i}") if t in q.q]
            last = max(tags, key=lambda t: max(k for k, x in enumerate(q.q) if x == t))
            A(f"s_waitcnt vmcnt({q.wait_for(last)})")
            for j in range(5):
                off = (slot % 2) * 40960 + j * 1024
                A(f"ds_read_b128 {R(WB(j))}, v{VA + slot//2} offset:{off}")
            if i + NB - 1 < n:
                for l in aloads((i + NB - 1) % NB): A(l)
                q.add(f"A{i+NB-1}", 4)
            mf = []
            for j in range(5):
                for ii in range(4):
                    acc = R((ii * 5 + j) * 4)
                    mf.append(f"v_mfma_f32_16x16x32_bf16 {acc}, {R(WB(j))}, {R(AB(i % NB, ii))}, {acc if i else 0}")
            A("s_waitcnt lgkmcnt(0)")
            fill = []
            if i + 4 < n:
                w = [l.replace(f'v{VLANE16},', f'v{VL16},') for l in wdma(slot)]
                fill = [w[0:2], w[2:3], w[3:4], w[4:5], w[5:]]
                q.add(f"W{i+4}", 5)
            interleave(A, mf, fill)

    A(f"""
    s_cmp_lt_u32 s50, 2
    s_cbranch_scc0 {name}_b9
    """)
    body2(10)
    A(f"s_branch {name}_epi2")
    A(f"{name}_b9:")
    body2(9)
    A(f"{name}_epi2:")
    if stamp:
        A("s_memrealtime s[90:91]")
    for i in range(4):
        for j in range(5):
            A(f"ds_write_b128 v{VA + i//2}, {R((i*5+j)*4)} offset:{(i%2)*40960 + j*1024}")
    A(f"""
    s_lshr_b32 s60, s50, 1
    s_mul_i32 s60, s60, 40960
    s_and_b32 s61, s50, 1
    s_mul_i32 s62, s61, 3072
    s_add_u32 s60, s60, s62
    v_add_u32 v{VA}, s60, v{VL16}
    v_lshrrev_b32 v{VL}, 4, v{VL16}
    s_waitcnt lgkmcnt(0)
    s_barrier
    """)
    for jj in range(3):
        if jj == 2:
            A(f"s_cmp_eq_u32 s61, 1\ns_cbranch_scc1 {name}_rd_done")
        for w in range(8):
            b = (jj * 8 + w) * 4
            A(f"ds_read_b128 v[{b}:{b+3}], v{VA} offset:{jj*1024 + w*5120}")
    A(f"{name}_rd_done:")
    V9, V11, VO = 151, 154, 156
    A(f"""
    s_waitcnt vmcnt(0)
    v_sub_f32 v{V9}, 1.0, v{V7}
    v_cvt_pk_bf16_f32 v{V9}, v{V9}, v{V9}
    v_lshlrev_b32 v{V9}, 16, v{V9}
    s_lshl_b32 s60, s20, 6
    s_lshr_b32 s62, s50, 1
    s_lshl_b32 s62, s62, 4
    s_add_u32 s60, s60, s62
    v_and_b32 v{V11}, 15, v{VL}
    v_add_u32 v{V11}, s60, v{V11}
    v_lshrrev_b32 v{VO}, 4, v{VL}
    v_mul_u32_u24 v{V11}, 1280, v{V11}
    v_lshl_add_u32 v{V11}, v{VO}, 3, v{V11}
    s_mul_i32 s60, s21, 160
    s_mul_i32 s62, s61, 96
    s_add_u32 s60, s60, s62
    s_mov_b32 s62, 0xffff0000
    s_waitcnt lgkmcnt(0)
    """)
    for jj in range(3):
        if jj == 2:
            A(f"s_cmp_eq_u32 s61, 1\ns_cbranch_scc1 {name}_fin")
        base = jj * 32
        a0, a1, b1 = base, base + 4, base + 8
        pk = lambda op, d, x, y: A(f"{op} v[{d}:{d+1}], v[{x}:{x+1}], v[{y}:{y+1}]")
        for h in (0, 2):
            pk("v_pk_add_f32", a0 + h, a0 + h, a1 + h)
            pk("v_pk_add_f32", b1 + h, b1 + h, b1 + 4 + h)
            pk("v_pk_add_f32", b1 + 8 + h, b1 + 8 + h, b1 + 12 + h)
            pk("v_pk_add_f32", b1 + 16 + h, b1 + 16 + h, b1 + 20 + h)
        for h in (0, 2):
            pk("v_pk_add_f32", b1 + h, b1 + h, b1 + 8 + h)
        for h in (0, 2):
            pk("v_pk_add_f32", b1 + h, b1 + h, b1 + 16 + h)
        for p in range(2):
            ra, rb = a0 + 2 * p, b1 + 2 * p
            t0, t1 = b1 + 8 + 2 * p, b1 + 12 + 2 * p
            A(f"""
            v_cvt_pk_bf16_f32 v{t0}, v{ra}, v{ra+1}
            v_cvt_pk_bf16_f32 v{t1}, v{rb}, v{rb+1}
            v_lshlrev_b32 v{ra}, 16, v{t0}
            v_and_b32 v{ra+1}, s62, v{t0}
            v_lshlrev_b32 v{rb}, 16, v{t1}
            v_and_b32 v{rb+1}, s62, v{t1}
            v_mul_f32 v{ra}, v{V7}, v{ra}
            v_mul_f32 v{ra+1}, v{V7}, v{ra+1}
            v_mul_f32 v{rb}, v{V9}, v{rb}
            v_mul_f32 v{rb+1}, v{V9}, v{rb+1}
            v_cvt_pk_bf16_f32 v{t0}, v{ra}, v{ra+1}
            v_cvt_pk_bf16_f32 v{t1}, v{rb}, v{rb+1}
            v_lshlrev_b32 v{ra}, 16, v{t0}
            v_and_b32 v{ra+1}, s62, v{t0}
            v_lshlrev_b32 v{rb}, 16, v{t1}
            v_and_b32 v{rb+1}, s62, v{t1}
            v_pk_add_f32 v[{ra}:{ra+1}], v[{ra}:{ra+1}], v[{rb}:{rb+1}]
            v_cvt_pk_bf16_f32 v{VO+2*jj+p}, v{ra}, v{ra+1}
            """)
        A(f"buffer_store_dwordx2 v[{VO+2*jj}:{VO+2*jj+1}], v{V11}, s[36:39], s60 offen offset:{jj*32}")
    A(f"{name}_fin:")
    if stamp:
        A(f"""
        s_waitcnt vmcnt(0)
        s_memrealtime s[94:95]
        s_waitcnt lgkmcnt(0)
        v_mov_b32 v16, s80
        v_mov_b32 v17, s94
        v_mov_b32 v18, s82
        v_mov_b32 v19, s84
        v_mov_b32 v20, s86
        v_mov_b32 v21, s88
        v_mov_b32 v22, s90
        v_mov_b32 v23, 0
        s_lshl_b32 s60, s2, 3
        s_add_u32 s60, s60, s50
        s_lshl_b32 s60, s60, 5
        s_add_u32 s60, s60, {WS_STAMP}
        v_mov_b32 v14, 0
        buffer_store_dwordx4 v[16:19], v14, s[28:31], s60 offen
        buffer_store_dwordx4 v[20:23], v14, s[28:31], s60 offen offset:16
        """)
    A(f"{name}_exit:")
    A("s_endpgm")


def desc(name):
    return f"""
.section .rodata,"a"
.p2align 6
.amdhsa_kernel {name}
  .amdhsa_next_free_vgpr 168
  .amdhsa_next_free_sgpr 102
  .amdhsa_accum_offset 168
  .amdhsa_group_segment_fixed_size 0
  .amdhsa_kernarg_size 88
  .amdhsa_user_sgpr_count 2
  .amdhsa_user_sgpr_kernarg_segment_ptr 1
  .amdhsa_system_sgpr_workgroup_id_x 1
.end_amdhsa_kernel
"""


if __name__ == "__main__":
    import sys
    NAME = "gated_mix__sliding_local_dilated__dense_activation_mish__prompt"
    out = f"cdna_kernels/{NAME}.s"
    for a in sys.argv[1:]:
        if a.endswith(".s"): out = a
    A = Asm()
    A.raw(f"; @launch grid=(256,1,1) block=({NWAVE*64},1,1) lds={P1_LDS}")
    A.raw('.amdgcn_target "amdgcn-amd-amdhsa--gfx950"')
    if "norot" in sys.argv: ROT = 0
    if "notouch" in sys.argv: WTOUCH = 0
    gen_fused(A, NAME + "_kernel", stamp="stamp" in sys.argv, prefetch="pf" in sys.argv)
    open(out, "w").write(A.finish() + desc(NAME + "_kernel"))
    print("wrote", out)
```

```python
from asmlib import Asm

WS_ACT, WS_WF, WS_G = 0, 0xA00000, 0xE00000
WS_SIZE = 0x1000000
WS_STAMP = 0xF00000
WS_FLAG = 0xE80000
WS_FLAG2 = 0xE90000
OUT_BYTES = 2048 * 640 * 2
P1_LDS = 160 * 1024
STAGE = 49152
XREG = 18432
RL_BASE = 3 * STAGE
GLDS = RL_BASE + 15360
BLDS = GLDS + 64
RSQ = 488
LOG2E = 0x3fb8aa3b
SCALE = 0x3e64f92e

ACC = 0
F0 = 72
F1 = 108
VW = 144
VXA = 148
VXH = 150
VLANE16 = 152
VL = 153
VBRAW = 154
VPF = 162
VC2 = 164
VT = 72
VTA = 154
VBIAS = 72
VTB = 88
VDB = 120
VDMA = 4
HT = 8
HF = 100
NWAVE = 12
ROT = 1
ROT2 = 0
WTOUCH = 0
PF0 = 2


def xfrag(fs, i):
    return fs + 4 * i
def wfrag(fs, j):
    return fs + 20 + 4 * j
def R(b, n=4):
    return "v[%d:%d]" % (b, b + n - 1)


def interleave(A, mf, fillers):
    n = len(mf)
    for mi, m in enumerate(mf):
        A(m)
        if mi < len(fillers):
            for l in fillers[mi]: A(l)
    for g in fillers[n:]:
        for l in g: A(l)


class VQ:
    def __init__(self): self.q = []
    def add(self, tag, n): self.q += [tag] * n
    def wait_for(self, tag):
        last = max(i for i, t in enumerate(self.q) if t == tag)
        n = len(self.q) - 1 - last
        self.q = self.q[last + 1:]
        return n


def gen_fused(A, name, stamp=False, prefetch=False):
    ST = " sc1"
    LD = ""
    A(f"""
.text
.globl {name}
.p2align 8
.type {name},@function
{name}:
    s_cmp_ge_u32 s2, 256
    s_cbranch_scc1 {name}_exit
    """)
    if stamp:
        A("s_memrealtime s[80:81]")
        A("s_memtime s[92:93]")
    A(f"""
    s_load_dwordx4 s[96:99], s[0:1], 64
    s_load_dwordx4 s[4:7], s[0:1], 0
    s_load_dwordx2 s[8:9], s[0:1], 16
    s_load_dwordx2 s[10:11], s[0:1], 80
    s_load_dwordx4 s[12:15], s[0:1], 32
    s_load_dwordx4 s[16:19], s[0:1], 48
    v_lshrrev_b32 v1, 6, v0
    v_and_b32 v{VL}, 63, v0
    v_readfirstlane_b32 s50, v1
    v_lshlrev_b32 v{VLANE16}, 4, v{VL}
    s_and_b32 s60, s2, 7
    s_lshr_b32 s61, s2, 3
    s_and_b32 s62, s60, 1
    s_lshl_b32 s62, s62, 3
    s_and_b32 s63, s61, 7
    s_add_u32 s54, s62, s63            ; s54 = mt (0..15)
    s_lshl_b32 s52, s54, 7             ; s52 = m0
    s_lshr_b32 s62, s60, 1             ; cq
    s_lshr_b32 s63, s61, 3             ; cl
    s_lshr_b32 s51, s63, 1             ; s51 = type (0=A,1=B)
    s_and_b32 s63, s63, 1
    s_lshl_b32 s62, s62, 1
    s_add_u32 s53, s62, s63
    s_mul_i32 s55, s53, 14
    s_lshr_b32 s62, s53, 2
    s_lshl_b32 s62, s62, 1
    s_sub_u32 s55, s55, s62
    s_and_b32 s62, s53, 3
    s_cmp_eq_u32 s62, 3
    s_cselect_b32 s56, 1, 0
    s_and_b32 s57, s50, 1              ; s57 = mh
    s_lshr_b32 s58, s50, 1             ; s58 = ng
    s_mov_b32 s64, 3456
    s_cmp_eq_u32 s51, 0
    s_cselect_b32 s64, 3840, s64
    s_cselect_b32 s65, 1152, 0
    s_mul_i32 s62, s53, 160
    s_mul_i32 s63, s55, 32
    s_cselect_b32 s66, s62, s63
    s_lshl_b32 s62, s56, 1
    s_sub_u32 s62, 14, s62
    s_cmp_eq_u32 s51, 0
    s_cselect_b32 s67, 64, s62
    s_lshl_b32 s68, s64, 6
    s_lshl_b32 s3, s54, 4
    s_lshl_b32 s60, s51, 3
    s_add_u32 s3, s3, s60
    s_add_u32 s3, s3, s53
    s_cmp_ge_u32 s50, 8
    s_cbranch_scc0 {name}_compute
    s_setprio 3
    v_mov_b32 v{HF}, 0
    s_sub_u32 s50, s50, 8              ; h
    s_lshl_b32 s60, s50, 4
    s_mul_i32 s72, s60, s64
    s_lshl_b32 s61, s64, 1
    s_add_u32 s73, s72, s61            ; +2
    s_lshl_b32 s62, s64, 3
    s_add_u32 s74, s72, s62            ; +8
    s_add_u32 s75, s74, s61            ; +10
    s_lshl_b32 s63, s64, 2
    s_add_u32 s76, s72, s63            ; +4
    s_add_u32 s77, s76, s61            ; +6
    s_add_u32 s78, s74, s63            ; +12
    s_add_u32 s79, s78, s61            ; +14
    s_lshl_b32 s60, s50, 5
    s_add_u32 s60, s60, s52
    s_mul_i32 s20, s60, 1280
    s_sub_u32 s60, s52, 16
    s_lshl_b32 s61, s50, 3
    s_add_u32 s60, s60, s61
    s_mul_i32 s22, s60, 1280
    s_cmp_eq_u32 s52, 0
    s_cselect_b32 s22, 0x80000000, s22
    s_mov_b32 s90, -1
    s_mov_b32 s91, 0x0fffffff
    s_mul_i32 s71, s50, 7680
    s_add_u32 s71, s71, {XREG}
    s_lshl_b32 s23, s50, 12
    s_add_u32 s23, s23, 2048
    s_lshl_b32 s48, s50, 10
    s_lshl_b32 s60, s51, 1
    s_add_u32 s60, s60, s50
    s_cmp_lt_u32 s60, 2
    s_cselect_b32 s70, 1, 0
    s_cmp_eq_u32 s51, 0
    s_cselect_b32 s62, 12, 14
    s_and_b32 s63, s53, 1
    s_cselect_b32 s63, s63, 0
    s_cmp_eq_u32 s51, 0
    s_cselect_b32 s63, s63, 0
    s_lshl_b32 s60, s62, 1
    v_lshrrev_b32 v{HT}, 1, v{VL}                    ; pos
    v_cmp_le_u32 vcc, s62, v{HT}
    v_subrev_u32 v{HT+1}, s62, v{HT}
    v_xor_b32 v{HT+1}, 1, v{HT+1}
    v_cndmask_b32 v{HT+1}, v{HT}, v{HT+1}, vcc
    v_cndmask_b32 v{HT+2}, 0, 1, vcc                 ; parity
    v_lshrrev_b32 v{HT+3}, 2, v{HT+1}
    v_mul_u32_u24 v{HT+3}, s65, v{HT+3}
    v_lshl_add_u32 v{HT+3}, v{HT+1}, 5, v{HT+3}
    s_lshl_b32 s61, s63, 5
    v_add_u32 v{HT+3}, s61, v{HT+3}
    ; singles (type A): q = pos-24 (0..5): parity = q>=3, grp = q%3, e = hgpar?0:4
    v_subrev_u32 v{HT+4}, 24, v{HT}
    v_cmp_le_u32 vcc, 3, v{HT+4}
    v_subrev_u32 v{HT+5}, 3, v{HT+4}
    v_cndmask_b32 v{HT+4}, v{HT+4}, v{HT+5}, vcc
    v_cndmask_b32 v{HT+5}, 0, 1, vcc
    v_mul_u32_u24 v{HT+4}, 1280, v{HT+4}
    s_lshl_b32 s61, s63, 7
    s_sub_u32 s61, 128, s61
    v_add_u32 v{HT+4}, s61, v{HT+4}
    v_cmp_le_u32 vcc, s60, v{HT}
    v_cndmask_b32 v{HT+3}, v{HT+3}, v{HT+4}, vcc
    v_cndmask_b32 v{HT+2}, v{HT+2}, v{HT+5}, vcc
    v_mul_u32_u24 v{HT+2}, s64, v{HT+2}
    v_and_b32 v{HT+4}, 1, v{VL}
    v_lshl_add_u32 v{HT+3}, v{HT+4}, 4, v{HT+3}
    v_add3_u32 v{HT+1}, v{HT+2}, v{HT+3}, s66        ; offset
    s_cmp_eq_u32 s51, 0
    s_cselect_b32 s60, 64, s60
    v_cmp_le_u32 vcc, s60, v{HT}
    v_mov_b32 v{HT+2}, 0x80000000
    v_cndmask_b32 v{HT+1}, v{HT+1}, v{HT+2}, vcc
    v_cmp_le_u32 vcc, s62, v{HT}
    v_subrev_u32 v{HT+4}, s62, v{HT}
    v_cndmask_b32 v{HT+4}, v{HT}, v{HT+4}, vcc
    v_cmp_le_u32 vcc, s67, v{HT+4}
    v_lshrrev_b32 v{HT+3}, 3, v{VL}
    v_cndmask_b32 v{VDMA}, v{HT+1}, v{HT+2}, vcc
    v_mul_u32_u24 v{HT+3}, 1280, v{HT+3}
    v_and_b32 v{HT+1}, 7, v{VL}
    v_lshrrev_b32 v{HT+2}, 4, v{VL}
    v_xor_b32 v{HT+1}, v{HT+1}, v{HT+2}
    v_lshl_add_u32 v{VDMA+1}, v{HT+1}, 4, v{HT+3}
    v_xor_b32 v{VDMA+2}, 64, v{VDMA+1}
    v_mov_b32 v{VDMA+3}, v{VDMA+1}
    s_cmp_eq_u32 s50, 1
    s_cbranch_scc0 {name}_h0
    v_mov_b32 v{VDMA+3}, v{VDMA+2}
    {name}_h0:
    s_waitcnt lgkmcnt(0)
    s_mov_b32 s36, s4
    s_and_b32 s37, s5, 0xffff
    s_mov_b32 s38, 2621440
    s_mov_b32 s39, 0x20000
    s_mov_b32 s26, 2211840
    s_cmp_eq_u32 s51, 0
    s_cselect_b32 s24, s6, s12
    s_cselect_b32 s25, s7, s13
    s_cselect_b32 s26, 2457600, s26
    s_and_b32 s25, s25, 0xffff
    s_mov_b32 s27, 0x20000
    s_mov_b32 s28, s10
    s_and_b32 s29, s11, 0xffff
    s_mov_b32 s30, {WS_SIZE}
    s_mov_b32 s31, 0x20000
    s_mov_b32 s40, s18
    s_and_b32 s41, s19, 0xffff
    s_mov_b32 s42, 1280
    s_mov_b32 s43, 0x20000
    s_mov_b32 s21, 0
    s_lshl_b32 s67, s64, 6
    s_lshr_b32 s60, s2, 6              ; cl
    s_mul_i32 s60, s60, 3
    s_and_b32 s61, s54, 7
    s_add_u32 s60, s60, s61
    s_sub_u32 s61, s60, 10
    s_cmp_ge_u32 s60, 10
    s_cselect_b32 s44, s61, s60
    s_mul_i32 s44, s44, {ROT}
    s_lshl_b32 s60, s44, 7
    s_add_u32 s20, s20, s60
    s_add_u32 s22, s22, s60
    s_mul_i32 s60, s44, s67
    s_add_u32 s72, s72, s60
    s_add_u32 s73, s73, s60
    s_add_u32 s74, s74, s60
    s_add_u32 s75, s75, s60
    s_add_u32 s76, s76, s60
    s_add_u32 s77, s77, s60
    s_add_u32 s78, s78, s60
    s_add_u32 s79, s79, s60
    s_mul_i32 s45, s67, -9
    s_mov_b32 s66, 128
    s_and_b32 s63, s3, 31
    s_lshl_b32 s60, s50, 5
    s_add_u32 s63, s63, s60                ; kb
    s_mov_b32 s34, 2211840
    s_cmp_lt_u32 s63, 20
    s_cselect_b32 s32, s8, s16
    s_cselect_b32 s33, s9, s17
    s_cselect_b32 s34, 819200, s34
    s_cselect_b32 s60, 0, 20
    s_sub_u32 s60, s63, s60
    s_mul_i32 s60, s60, 40960
    s_lshr_b32 s61, s3, 5
    s_mul_i32 s61, s61, 160
    s_add_u32 s62, s60, s61
    s_cmp_lt_u32 s63, 74
    s_cselect_b32 s62, s62, 0x80000000
    s_lshl_b32 s60, s55, 5
    s_cmp_eq_u32 s50, 3
    s_cselect_b32 s32, s14, s32
    s_cselect_b32 s33, s15, s33
    s_cselect_b32 s34, 3456, s34
    s_cselect_b32 s62, s60, s62
    s_and_b32 s33, s33, 0xffff
    s_mov_b32 s35, 0x20000
    s_lshr_b32 s60, s3, 5
    s_mul_i32 s60, s60, 74
    s_add_u32 s60, s60, s63
    s_mul_i32 s60, s60, 5120
    s_add_u32 s64, s60, {WS_WF}
    s_cmp_lt_u32 s63, 74
    s_cselect_b32 s64, s64, 0x80000000
    s_add_u32 s65, s64, 4096
    s_mul_i32 s63, s50, 5120
    s_add_u32 s63, s63, {RL_BASE + 0}
    s_lshl_b32 s60, s53, 4
    s_add_u32 s60, s60, s52
    s_lshl_b32 s61, s50, 2
    s_add_u32 s49, s60, s61
    s_cmp_eq_u32 s70, 1
    s_cbranch_scc1 {name}_hA
    s_cmp_eq_u32 s51, 0
    s_cbranch_scc1 {name}_hC
    s_branch {name}_hB
    """)

    def dma_sub(halo):
        A(f"{name}_dma{int(halo)}:")
        A(f"""
        s_add_u32 s44, s44, 1
        s_cmp_eq_u32 s44, 10
        s_cselect_b32 s46, s45, s67
        s_cselect_b32 s47, {(-1152) & 0xffffffff}, s66
        s_cselect_b32 s44, 0, s44
        """)
        A("s_add_u32 s68, s23, s21")
        for i in range(4):
            A(f"""
            s_add_u32 s69, s20, {i*10240}
            s_add_u32 m0, s68, {i*1024}
            buffer_load_dwordx4 v{VDMA+1+(i&1)}, s[36:39], s69 offen lds
            """)
        if halo:
            A(f"""
            s_add_u32 m0, s48, s21
            buffer_load_dwordx4 v{VDMA+3}, s[36:39], s22 offen lds
            s_add_u32 s22, s22, s47
            """)
        A("s_add_u32 s68, s71, s21")
        A("s_mov_b64 exec, s[90:91]")
        for i in range(8):
            A(f"""
            s_add_u32 m0, s68, {i*960}
            buffer_load_dwordx4 v{VDMA}, s[24:27], s{72+i} offen lds
            s_add_u32 s{72+i}, s{72+i}, s46
            """)
        A("s_mov_b64 exec, -1")
        A(f"""
        s_add_u32 s20, s20, s47
        s_add_u32 s21, s21, {STAGE}
        s_cmp_eq_u32 s21, {3*STAGE}
        s_cselect_b32 s21, 0, s21
        s_setpc_b64 s[88:89]
        """)
    dma_sub(False)
    dma_sub(True)

    GX = HT + 8
    G = [HT + 36 + r for r in range(4)]
    T2 = HT + 40

    def early_aux():
        A(f"""
        s_cmp_eq_u32 s50, 3
        s_cbranch_scc1 {{0}}
        """.format(f"{name}_ea3_{early_aux.n}"))
        for i in range(5):
            A(f"""
            v_add_u32 v{HT+1}, {64*i}, v{VL}
            v_mul_u32_u24 v{HT+2}, 205, v{HT+1}
            v_lshrrev_b32 v{HT+2}, 11, v{HT+2}
            v_mul_u32_u24 v{HT+3}, 10, v{HT+2}
            v_sub_u32 v{HT+3}, v{HT+1}, v{HT+3}
            v_mul_u32_u24 v{HT+2}, 1280, v{HT+2}
            v_lshl_add_u32 v{HT+2}, v{HT+3}, 4, v{HT+2}
            s_add_u32 m0, s63, {i*1024}
            buffer_load_dwordx4 v{HT+2}, s[32:35], s62 offen lds
            """)
        A(f"""
        s_branch {name}_ea_end{early_aux.n}
        {name}_ea3_{early_aux.n}:
        s_mov_b32 m0, {BLDS}
        s_mov_b64 exec, 0xffffffff
        buffer_load_dwordx4 v{VLANE16}, s[32:35], s62 offen lds
        s_lshr_b32 s60, s3, 4
        s_lshl_b32 s60, s60, 8
        s_and_b32 s61, s3, 15
        s_lshl_b32 s61, s61, 2
        s_add_u32 s60, s60, s61
        s_add_u32 s60, s60, {WS_FLAG}
        v_mov_b32 v{HT+1}, 0
        s_mov_b64 exec, 1
        buffer_store_dword v{HT+1}, v{HT+1}, s[28:31], s60 offen sc1
        s_lshl_b32 s60, s3, 2
        s_add_u32 s60, s60, {WS_FLAG2}
        buffer_store_dword v{HT+1}, v{HT+1}, s[28:31], s60 offen sc1
        buffer_store_dword v{HT+1}, v{HT+1}, s[28:31], s64 offen
        buffer_store_dword v{HT+1}, v{HT+1}, s[28:31], s64 offen
        s_mov_b64 exec, -1
        {name}_ea_end{early_aux.n}:
        """)
        early_aux.n += 1
        return 5
    early_aux.n = 0

    def rl_store(tag):
        A(f"""
        v_lshrrev_b32 v{HT}, 2, v{VL}
        v_mul_u32_u24 v{HT}, 160, v{HT}
        v_and_b32 v{HT+1}, 3, v{VL}
        v_lshl_add_u32 v{HT}, v{HT+1}, 3, v{HT}
        v_add_u32 v{HT}, s63, v{HT}
        """)
        for j in range(5):
            b = HT + 64 + 4 * j
            A(f"ds_read_b64_tr_b16 v[{b}:{b+1}], v{HT} offset:{j*32}")
            A(f"ds_read_b64_tr_b16 v[{b+2}:{b+3}], v{HT} offset:{j*32 + 2560}")
        A("s_waitcnt lgkmcnt(0)")
        for j in range(5):
            b = HT + 64 + 4 * j
            if j < 4:
                A(f"buffer_store_dwordx4 v[{b}:{b+3}], v{VLANE16}, s[28:31], s64 offen offset:{j*1024}{ST}")
            else:
                A(f"buffer_store_dwordx4 v[{b}:{b+3}], v{VLANE16}, s[28:31], s65 offen{ST}")
        return 5

    def aux_loads(rl):
        A(f"""
        s_mul_i32 s61, s49, 1280
        s_add_u32 s60, s61, 2560
        v_lshlrev_b32 v{HT}, 2, v{VL}
        """)
        for r in range(4):
            so = "s61" if r < 2 else "s60"
            A(f"buffer_load_dwordx4 v[{GX+4*r}:{GX+4*r+3}], v{VLANE16}, s[36:39], {so} offen offset:{(r%2)*1280}")
            A(f"buffer_load_dword v{GX+20+r}, v{HT}, s[36:39], {so} offen offset:{(r%2)*1280 + 1024}")
        A(f"""
        buffer_load_dwordx4 v[{GX+16}:{GX+19}], v{VLANE16}, s[40:43], 0 offen
        buffer_load_dword v{GX+24}, v{HT}, s[40:43], 0 offen offset:1024
        """)
        return 10

    def aux_proc(rl):
        A("s_mov_b32 s68, 0xffff0000")
        for r in range(4):
            for i in range(5):
                x = GX + 4 * r + i if i < 4 else GX + 20 + r
                gw = GX + 16 + i if i < 4 else GX + 24
                t = T2 + 4 * i
                A(f"""
                v_lshlrev_b32 v{t}, 16, v{x}
                v_and_b32 v{t+1}, s68, v{x}
                v_lshlrev_b32 v{t+2}, 16, v{gw}
                v_and_b32 v{t+3}, s68, v{gw}
                v_pk_mul_f32 v[{t}:{t+1}], v[{t}:{t+1}], v[{t+2}:{t+3}]
                v_cvt_pk_bf16_f32 v{t}, v{t}, v{t+1}
                v_and_b32 v{t+1}, s68, v{t}
                v_lshlrev_b32 v{t}, 16, v{t}
                """)
            A(f"""
            v_pk_add_f32 v[{T2}:{T2+1}], v[{T2}:{T2+1}], v[{T2+4}:{T2+5}]
            v_pk_add_f32 v[{T2+8}:{T2+9}], v[{T2+8}:{T2+9}], v[{T2+12}:{T2+13}]
            v_pk_add_f32 v[{T2}:{T2+1}], v[{T2}:{T2+1}], v[{T2+16}:{T2+17}]
            v_pk_add_f32 v[{T2}:{T2+1}], v[{T2}:{T2+1}], v[{T2+8}:{T2+9}]
            v_add_f32 v{G[r]}, v{T2}, v{T2+1}
            """)
        for sh in (1, 2, 4, 8):
            for r in range(4):
                A(f"v_add_f32_dpp v{G[r]}, v{G[r]}, v{G[r]} row_ror:{sh} row_mask:0xf bank_mask:0xf")
        for swap in ("v_permlane16_swap_b32", "v_permlane32_swap_b32"):
            for r in range(4):
                A(f"v_mov_b32 v{T2+r}, v{G[r]}")
            for r in range(4):
                A(f"{swap} v{T2+r}, v{G[r]}")
            for r in range(4):
                A(f"v_add_f32 v{G[r]}, v{G[r]}, v{T2+r}")
        for op in ("v_cvt_pk_bf16_f32 v{0}, v{0}, v{0}", "v_lshlrev_b32 v{0}, 16, v{0}", "v_mul_f32 v{0}, 0xbfb8aa3b, v{0}",
                   "v_exp_f32 v{0}, v{0}", "v_add_f32 v{0}, 1.0, v{0}", "v_rcp_f32 v{0}, v{0}",
                   "v_cvt_pk_bf16_f32 v{0}, v{0}, v{0}", "v_lshlrev_b32 v{0}, 16, v{0}"):
            for r in range(4):
                A(op.format(G[r]))
        A(f"""
        s_lshl_b32 s60, s50, 4
        s_add_u32 s60, s60, {GLDS}
        v_mov_b32 v{HT}, s60
        s_mov_b64 exec, 1
        ds_write_b128 v{HT}, v[{G[0]}:{G[3]}]
        s_mov_b64 exec, -1
        s_waitcnt lgkmcnt(0)
        """)

    for var, halo, gate in (("hA", True, False), ("hC", False, False), ("hB", False, True)):
        nd = 13 if halo else 12
        q = VQ()
        A(f"{name}_{var}:")
        def D(k):
            A(f"s_call_b64 s[88:89], {name}_dma{int(halo)}")
            q.add(f"D{k}", nd)
        def B(k):
            A(f"s_waitcnt vmcnt({q.wait_for(f'D{k}')})")
            A("s_barrier")
        D(0); D(1); B(0)
        D(2); q.add("ea", early_aux()); B(1)
        D(3); B(2)
        D(4); B(3)
        if not halo:
            A(f"""
            s_cmp_eq_u32 s50, 3
            s_cbranch_scc0 {name}_nordy{var}
            s_mov_b32 s32, s98
            s_and_b32 s33, s99, 0xffff
            s_mov_b32 s34, 256
            s_mov_b32 s35, 0x20000
            v_mov_b32 v{HT+1}, 1
            v_mov_b32 v{HT+2}, 0
            s_mov_b64 exec, 1
            buffer_store_byte v{HT+1}, v{HT+2}, s[32:35], s3 offen sc1
            s_mov_b64 exec, -1
            {name}_nordy{var}:
            """)
        D(5); q.add("rs", rl_store(var)); B(4)
        D(6)
        if gate: q.add("aux", aux_loads(False))
        B(5)
        D(7); B(6)
        A(f"""
        s_cmp_eq_u32 s50, 1
        s_cbranch_scc0 {name}_nowf{var}
        v_mov_b32 v{HT+1}, 1
        v_mov_b32 v{HT+2}, 0
        s_lshl_b32 s60, s3, 2
        s_add_u32 s60, s60, {WS_FLAG2}
        s_mov_b64 exec, 1
        buffer_store_dword v{HT+1}, v{HT+2}, s[28:31], s60 offen sc1
        s_mov_b64 exec, -1
        {name}_nowf{var}:
        """)
        D(8)
        A(f"""
        s_cmp_eq_u32 s50, 0
        s_cbranch_scc0 {name}_nodbg{var}
        s_mov_b32 s32, s98
        s_and_b32 s33, s99, 0xffff
        s_mov_b32 s34, 256
        s_mov_b32 s35, 0x20000
        s_and_b32 s60, s2, 7
        s_lshr_b32 s61, s2, 3
        s_lshl_b32 s56, s60, 2
        s_lshr_b32 s62, s61, 3
        s_add_u32 s56, s56, s62                ; t2
        s_and_b32 s57, s61, 7                  ; u2
        s_lshr_b32 s58, s56, 1
        s_lshl_b32 s60, s58, 4
        s_lshl_b32 s61, s57, 5
        s_sub_u32 s61, s61, 16
        v_min_u32 v{HF+2}, 11, v{VL}
        v_lshlrev_b32 v{HF}, 2, v{HF+2}
        v_cmp_gt_u32 vcc, 4, v{HF+2}
        v_mov_b32 v{HF+3}, s61
        v_mov_b32 v{HF+4}, s60
        v_cndmask_b32 v{HF+3}, v{HF+3}, v{HF+4}, vcc
        v_add_u32 v{HF}, v{HF}, v{HF+3}
        buffer_load_dword v{HF+1}, v{HF}, s[32:35], 0 offen sc1
    
        {name}_nodbg{var}:
        """)
        A(f"s_waitcnt vmcnt({q.wait_for('D7')})")
        A("s_barrier")
        D(9)
        if gate: aux_proc(False)
        B(8)
        A(f"""
        s_cmp_eq_u32 s50, 0
        s_cbranch_scc1 {name}_htail
        s_waitcnt vmcnt(0)
        s_barrier
        s_endpgm
        """)
    def hw(tag, slot0, i0):
        A(f"""
        s_mov_b32 s73, 0
        s_mov_b32 s74, s72
        s_mov_b32 s75, {slot0*40960}
        {name}_hw{tag}:
        s_cmp_lt_u32 s73, 2
        s_cselect_b32 s76, 10, 9
        """)
        for un in range(2):
            A(f"""
            s_add_u32 s77, s59, {i0 + un}
            s_sub_u32 s78, s77, s76
            s_cmp_ge_u32 s77, s76
            s_cselect_b32 s77, s78, s77
            s_mul_i32 s77, s77, 5120
            s_add_u32 s69, s74, s77
            s_add_u32 m0, s75, {un*40960}
            """)
            for j in range(4):
                A(f"buffer_load_dwordx4 v{VLANE16}, s[28:31], s69 offen offset:{j*1024} lds")
            A(f"""
            s_add_u32 m0, s75, {un*40960 + 4096}
            s_add_u32 s69, s69, 4096
            buffer_load_dwordx4 v{VLANE16}, s[28:31], s69 offen lds
            """)
        A(f"""
        s_add_u32 s75, s75, 5120
        s_mul_i32 s77, s76, 5120
        s_add_u32 s74, s74, s77
        s_add_u32 s73, s73, 1
        s_cmp_lt_u32 s73, 8
        s_cbranch_scc1 {name}_hw{tag}
        """)
    A(f"""
    {name}_htail:
    s_waitcnt vmcnt(0)
    s_barrier                              ; B9
    v_and_b32 v{HT+5}, 31, v{VL}
    v_lshlrev_b32 v{HT+5}, 2, v{HT+5}
    s_lshl_b32 s23, s57, 7
    s_add_u32 s23, s23, {WS_FLAG2}
    buffer_load_dword v{HT+6}, v{HT+5}, s[28:31], s23 offen sc1
    s_mul_i32 s72, s57, {74*5120}
    s_add_u32 s72, s72, {WS_WF}
    s_and_b32 s60, s57, 3
    s_lshl_b32 s60, s60, 1
    s_and_b32 s61, s56, 7
    s_add_u32 s60, s60, s61
    s_sub_u32 s61, s60, 9
    s_cmp_ge_u32 s60, 9
    s_cselect_b32 s59, s61, s60
    s_mul_i32 s59, s59, {ROT2}
    s_mov_b32 s26, 0x01010101
    s_barrier                              ; B10
    s_cmp_eq_u32 s51, 0
    s_cbranch_scc0 {name}_hnoattn
    s_barrier
    {name}_hnoattn:
    s_mov_b32 s27, 0
    {name}_hwf:
    s_waitcnt vmcnt(0)
    v_and_b32 v{HF+1}, s26, v{HF+1}
    v_cmp_ne_u32 vcc, s26, v{HF+1}
    s_cbranch_vccnz {name}_hretry
    v_cmp_ne_u32 vcc, 1, v{HT+6}
    s_cbranch_vccz {name}_hwfok
    {name}_hretry:
    s_add_u32 s27, s27, 1
    s_cmp_gt_u32 s27, 0x40000
    s_cbranch_scc1 {name}_hwfok
    s_sleep 8
    buffer_load_dword v{HF+1}, v{HF}, s[32:35], 0 offen sc1
    s_waitcnt vmcnt(0)
    buffer_load_dword v{HT+6}, v{HT+5}, s[28:31], s23 offen sc1
    s_branch {name}_hwf
    {name}_hwfok:
    """)
    hw("a", 2, 0)
    A(f"""
    v_mov_b32 v{HT+3}, 1
    v_mov_b32 v{HT+2}, 0
    s_lshr_b32 s60, s3, 4
    s_lshl_b32 s60, s60, 8
    s_and_b32 s61, s3, 15
    s_lshl_b32 s61, s61, 2
    s_add_u32 s60, s60, s61
    s_add_u32 s60, s60, {WS_FLAG}
    s_waitcnt vmcnt(0)
    s_barrier
    s_mov_b64 exec, 1
    buffer_store_dword v{HT+3}, v{HT+2}, s[28:31], s60 offen sc1
    s_endpgm
    """)

    A(f"""
    {name}_compute:
    s_lshl_b32 s60, s58, 2
    s_cmp_eq_u32 s58, 3
    s_cselect_b32 s60, 11, s60
    s_mul_i32 s61, s58, 3
    s_cmp_eq_u32 s56, 1
    s_cselect_b32 s60, s61, s60
    s_and_b32 s61, s58, 1
    s_lshl_b32 s61, s61, 3
    s_lshr_b32 s62, s58, 1
    s_lshl_b32 s62, s62, 2
    s_add_u32 s61, s61, s62
    s_cmp_eq_u32 s51, 0
    s_cselect_b32 s59, s61, s60
    """)
    A(f"""
    v_and_b32 v{VT}, 15, v{VL}                 ; mi
    v_lshrrev_b32 v{VT+1}, 4, v{VL}            ; g
    v_lshrrev_b32 v{VT+2}, 1, v{VT}            ; mi>>1
    v_xor_b32 v{VT+3}, v{VT+1}, v{VT+2}
    v_lshlrev_b32 v{VT+3}, 4, v{VT+3}
    v_lshl_add_u32 v{VXH}, v{VT}, 7, v{VT+3}
    v_xor_b32 v{VXH+1}, 64, v{VXH}
    s_lshl_b32 s60, s57, 13
    s_add_u32 s60, s60, 2048
    v_add_u32 v{VXA}, s60, v{VXH}
    v_add_u32 v{VXA+1}, s60, v{VXH+1}
    v_lshrrev_b32 v{VT+2}, 1, v{VT+1}          ; g1
    v_and_b32 v{VT+3}, 1, v{VT+1}              ; g0
    v_lshrrev_b32 v{VT+4}, 3, v{VT}            ; rr>>1
    v_lshl_add_u32 v{VT+4}, v{VT+3}, 1, v{VT+4}
    v_lshl_add_u32 v{VT+4}, v{VT+2}, 3, v{VT+4}    ; slot>>1
    v_mul_u32_u24 v{VT+4}, 960, v{VT+4}
    v_and_b32 v{VT+5}, 3, v{VT}
    v_lshl_add_u32 v{VT+4}, v{VT+5}, 3, v{VT+4}
    v_add_u32 v{VT+4}, {XREG}, v{VT+4}
    v_bfe_u32 v{VT+5}, v{VT}, 2, 1
    v_cmp_eq_u32 vcc, 1, v{VT+5}
    s_cmp_eq_u32 s51, 0
    s_cselect_b32 s62, 12, 14
    s_and_b32 s63, s53, 1
    s_cmp_eq_u32 s51, 0
    s_cselect_b32 s63, s63, 0
    """)
    for j in range(4):
        A(f"""
        s_add_u32 s69, s59, {j}
        s_mul_i32 s60, s69, 13
        s_lshr_b32 s60, s60, 6
        s_mul_i32 s61, s60, 5
        s_sub_u32 s61, s69, s61                ; e
        s_sub_u32 s61, s61, s63
        s_lshl_b32 s78, s60, 2
        s_add_u32 s78, s78, s61
        s_cmp_eq_u32 s51, 0
        s_cselect_b32 s78, s78, s69
        s_cselect_b32 s79, s61, 0
        s_xor_b32 s77, s78, 1
        s_add_u32 s77, s77, s62
        s_add_u32 s76, s60, 24
        s_add_u32 s69, s60, 27
        s_cmp_gt_u32 s79, 3
        s_cselect_b32 s78, s76, s78
        s_cselect_b32 s77, s69, s77
        s_lshl_b32 s78, s78, 5
        s_lshl_b32 s77, s77, 5
        v_mov_b32 v{VT+6}, s78
        v_mov_b32 v{VT+7}, s77
        v_cndmask_b32 v{VT+6}, v{VT+6}, v{VT+7}, vcc
        v_add_u32 v{VW+j}, v{VT+6}, v{VT+4}
        """)
    for i in range(72):
        A(f"v_mov_b32 v{ACC+i}, 0")
    A(f"""
    s_waitcnt lgkmcnt(0)
    s_mov_b32 s28, s10
    s_and_b32 s29, s11, 0xffff
    s_mov_b32 s30, {WS_SIZE}
    s_mov_b32 s31, 0x20000
    s_mov_b32 s44, s14
    s_and_b32 s45, s15, 0xffff
    s_mov_b32 s46, 3456
    s_mov_b32 s47, 0x20000
    """)
    A(f"""
    s_mov_b32 s32, s98
    s_and_b32 s33, s99, 0xffff
    s_mov_b32 s34, 256
    s_mov_b32 s35, 0x20000
    s_mov_b32 s36, s96
    s_and_b32 s37, s97, 0xffff
    s_mov_b32 s38, {OUT_BYTES}
    s_mov_b32 s39, 0x20000
    s_and_b32 s60, s2, 7
    s_lshr_b32 s61, s2, 3
    s_lshl_b32 s20, s60, 2
    s_lshr_b32 s62, s61, 3
    s_add_u32 s20, s20, s62                ; t2
    s_and_b32 s21, s61, 7                  ; u2
    s_mul_i32 s60, s50, 9
    s_add_u32 s60, s60, 2
    s_mul_i32 s61, s50, 10
    s_cmp_lt_u32 s50, 2
    s_cselect_b32 s60, s61, s60            ; kb0
    s_mul_i32 s22, s20, 74
    s_add_u32 s22, s22, s60
    s_lshl_b32 s22, s22, 12
    s_mul_i32 s23, s21, 74
    s_add_u32 s23, s23, s60
    s_mul_i32 s23, s23, 5120
    s_add_u32 s23, s23, {WS_WF}
    s_and_b32 s60, s21, 3
    s_lshl_b32 s60, s60, 1
    s_and_b32 s61, s20, 7
    s_add_u32 s60, s60, s61
    s_sub_u32 s61, s60, 9
    s_cmp_ge_u32 s60, 9
    s_cselect_b32 s26, s61, s60
    s_mul_i32 s26, s26, {ROT2}
    s_cmp_lt_u32 s50, 2
    s_cselect_b32 s48, 10, 9
    s_add_u32 s27, s26, 2
    s_sub_u32 s60, s27, s48
    s_cmp_ge_u32 s27, s48
    s_cselect_b32 s27, s60, s27
    s_lshl_b32 s60, s26, 12
    s_add_u32 s22, s22, s60
    s_mul_i32 s60, s27, 5120
    s_add_u32 s23, s23, s60
    s_mul_i32 s24, s50, 5120
    s_cmp_eq_u32 s50, 0
    s_cselect_b32 s25, 7, 99
    s_lshr_b32 s60, s3, 5
    s_and_b32 s61, s3, 31
    s_lshl_b32 s62, s50, 5
    s_add_u32 s61, s61, s62
    s_mul_i32 s60, s60, 74
    s_add_u32 s60, s60, s61
    s_mul_i32 s60, s60, 5120
    s_add_u32 s40, s60, {WS_WF}
    s_cmp_lt_u32 s61, 74
    s_cselect_b32 s40, s40, 0x80000000
    s_add_u32 s41, s40, 4096
    s_mul_i32 s42, s50, 5120
    s_add_u32 s42, s42, {RL_BASE}
    s_lshl_b32 s60, s53, 4
    s_add_u32 s60, s60, s52
    s_lshl_b32 s60, s60, 2
    s_add_u32 s43, s60, {WS_G}
    s_cmp_eq_u32 s51, 1
    s_cselect_b32 s43, s43, 0x80000000
    """)
    if prefetch:
        A(f"""
        s_and_b32 s60, s2, 7
        s_lshr_b32 s61, s2, 3                  ; idx
        s_lshr_b32 s62, s60, 1                 ; cq
        s_and_b32 s60, s60, 1                  ; M half
        v_cmp_le_u32 vcc, 9, v{VL}
        v_subrev_u32 v{VT+1}, 9, v{VL}
        v_cndmask_b32 v{VT+1}, v{VL}, v{VT+1}, vcc
        s_cmp_lt_u32 s50, 4
        s_cbranch_scc0 {name}_pfW
        s_lshl_b32 s63, s61, 2
        s_add_u32 s63, s63, s50
        s_mul_i32 s63, s63, 9
        s_lshl_b32 s60, s60, 10
        s_add_u32 s63, s63, s60
        s_sub_u32 s63, s63, 16
        v_add_u32 v{VT+2}, s63, v{VT+1}
        v_max_i32 v{VT+2}, 0, v{VT+2}
        v_mul_u32_u24 v{VT+2}, 1280, v{VT+2}
        s_mov_b32 s68, s4
        s_and_b32 s69, s5, 0xffff
        s_mov_b32 s70, 2621440
        s_mov_b32 s72, 128
        s_branch {name}_pfgo
        {name}_pfW:
        s_lshl_b32 s63, s61, 1
        s_and_b32 s60, s50, 1
        s_add_u32 s63, s63, s60
        s_cmp_lt_u32 s50, 6
        s_cbranch_scc0 {name}_pfW1
        v_mul_u32_u24 v{VT+2}, 11, v{VT+1}
        v_lshrrev_b32 v{VT+2}, 5, v{VT+2}      ; grp = l9/3
        v_mul_u32_u24 v{VT+3}, 896, v{VT+2}    ; grp*(1280-384)
        v_lshl_add_u32 v{VT+2}, v{VT+1}, 7, v{VT+3}
        s_mul_i32 s60, s62, 320
        s_and_b32 s60, s60, 0xffffff80
        s_mul_i32 s63, s63, 3840
        s_add_u32 s60, s60, s63
        v_add_u32 v{VT+2}, s60, v{VT+2}
        s_mov_b32 s68, s6
        s_and_b32 s69, s7, 0xffff
        s_mov_b32 s70, 2457600
        s_mov_b32 s72, {64*3840}
        s_branch {name}_pfgo
        {name}_pfW1:
        s_mul_i32 s60, s62, 28
        s_lshr_b32 s72, s62, 1
        s_lshl_b32 s72, s72, 1
        s_sub_u32 s60, s60, s72
        s_lshl_b32 s60, s60, 5
        s_and_b32 s60, s60, 0xffffff80
        s_mul_i32 s63, s63, 3456
        s_add_u32 s60, s60, s63
        v_min_u32 v{VT+1}, 7, v{VT+1}
        v_lshlrev_b32 v{VT+2}, 7, v{VT+1}
        v_add_u32 v{VT+2}, s60, v{VT+2}
        s_mov_b32 s68, s12
        s_and_b32 s69, s13, 0xffff
        s_mov_b32 s70, 2211840
        s_mov_b32 s72, {64*3456}
        {name}_pfgo:
        s_mov_b32 s71, 0x20000
        v_mov_b32 v{VT+3}, 0x80000000
        v_add_u32 v{VT+4}, s72, v{VT+2}
        v_cndmask_b32 v{VT+4}, v{VT+2}, v{VT+4}, vcc
        v_cndmask_b32 v{VPF+1}, v{VT+2}, v{VT+3}, vcc
        v_cmp_le_u32 vcc, 18, v{VL}
        v_cndmask_b32 v{VT+4}, v{VT+4}, v{VT+3}, vcc
        s_mul_i32 s73, s72, {PF0}
        buffer_load_dword v{VPF}, v{VT+4}, s[68:71], s73 offen
        s_mul_i32 s73, s72, {PF0 + 2}
        s_mov_b32 s74, {PF0 + 2}
        """)
    A(f"""
    s_mov_b32 s76, 0
    s_mov_b32 s77, 0
    s_mov_b32 s49, {STAGE}
    """)
    classes = {"c4": (4, ()), "c4a": (4, (0, 1)), "c4b": (4, (2, 3)), "c4c": (4, (1,)),
               "c3a": (3, (0, 1)), "c3b": (3, (2,)), "c3": (3, ())}
    amap = {0: "c4", 1: "c4", 2: "c4a", 3: "c4b", 4: "c4b", 5: "c4c", 6: "c3a", 7: "c3b"}
    A(f"""
    s_cmp_eq_u32 s51, 0
    s_cbranch_scc1 {name}_dispA
    s_cmp_eq_u32 s56, 1
    s_cbranch_scc1 {name}_c3
    s_cmp_lt_u32 s58, 2
    s_cbranch_scc1 {name}_c4
    s_branch {name}_c3
    {name}_dispA:
    """)
    for w in range(2, 8):
        A(f"s_cmp_eq_u32 s50, {w}\ns_cbranch_scc1 {name}_{amap[w]}")
    A(f"s_branch {name}_c4")

    def reads(fs, kk, nc, halo):
        out = []
        for j in range(nc):
            b = wfrag(fs, j)
            out.append(f"ds_read_b64_tr_b16 v[{b}:{b+1}], v{VW+j} offset:{kk*15360}")
            out.append(f"ds_read_b64_tr_b16 v[{b+2}:{b+3}], v{VW+j} offset:{kk*15360 + 3840}")
            if j == 0:
                for i in range(4):
                    out.append(f"ds_read_b128 {R(xfrag(fs, i))}, v{VXA+kk} offset:{i*2048}")
        if halo:
            out.append(f"ds_read_b128 {R(xfrag(fs, 4))}, v{VXH+kk}")
        return out

    def mfmas(fs, nc, halo):
        out = []
        for j in range(nc):
            for i in range(4):
                a = ACC + (i * 4 + j) * 4
                out.append(f"v_mfma_f32_16x16x32_bf16 {R(a)}, {R(wfrag(fs, j))}, {R(xfrag(fs, i))}, {R(a)}")
        for hi, j in enumerate(halo):
            a = ACC + (16 + hi) * 4
            out.append(f"v_mfma_f32_16x16x32_bf16 {R(a)}, {R(wfrag(fs, j))}, {R(xfrag(fs, 4))}, {R(a)}")
        return out

    def wdma(slot):
        return [f"s_add_u32 m0, s24, {slot*40960}"] + \
               [f"buffer_load_dwordx4 v{VLANE16}, s[28:31], s23 offen offset:{j*1024}{LD} lds" for j in range(4)] + \
               [f"s_add_u32 m0, s24, {slot*40960 + 4096}", "s_add_u32 s60, s23, 4096",
                f"buffer_load_dwordx4 v{VLANE16}, s[28:31], s60 offen{LD} lds",
                "s_add_u32 s23, s23, 5120", "s_add_u32 s27, s27, 1", "s_cmp_eq_u32 s27, s48",
                "s_cselect_b32 s60, s63, 0", "s_cselect_b32 s27, 0, s27", "s_sub_u32 s23, s23, s60"]

    A(f"""
    {name}_auxg:
    v_lshrrev_b32 v{F1}, 4, v{VL}
    v_lshlrev_b32 v{F1}, 3, v{F1}
    s_lshl_b32 s60, s59, 5
    s_add_u32 s60, s60, {BLDS}
    v_add_u32 v{F1}, s60, v{F1}
    ds_read_b64 v[{VBRAW}:{VBRAW+1}], v{F1}
    ds_read_b64 v[{VBRAW+2}:{VBRAW+3}], v{F1} offset:32
    ds_read_b64 v[{VBRAW+4}:{VBRAW+5}], v{F1} offset:64
    ds_read_b64 v[{VBRAW+6}:{VBRAW+7}], v{F1} offset:96
    s_cmp_eq_u32 s50, 3
    s_cbranch_scc0 {name}_auxret
    v_lshlrev_b32 v{F1}, 2, v{VL}
    v_add_u32 v{F1+1}, {GLDS}, v{F1}
    s_mov_b64 exec, 0xffff
    ds_read_b32 v{F1+2}, v{F1+1}
    s_waitcnt lgkmcnt(0)
    buffer_store_dword v{F1+2}, v{F1}, s[28:31], s43 offen{ST}
    s_mov_b64 exec, -1
    {name}_auxret:
    s_setpc_b64 s[88:89]
    """)
    for cname, (nc, halo) in classes.items():
        A(f"{name}_{cname}:")
        A("s_barrier")
        if stamp:
            A("s_memrealtime s[82:83]")
        for l in reads(F0, 0, nc, halo): A(l)
        lab = f"{name}_{cname}_loop"
        A(f"{lab}:")
        A("s_waitcnt lgkmcnt(0)")
        interleave(A, mfmas(F0, nc, halo), [[l] for l in reads(F1, 1, nc, halo)])
        A(f"""
        s_cmp_eq_u32 s77, {2*STAGE}
        s_cselect_b32 s78, {(-2*STAGE) & 0xffffffff}, s49
        s_add_u32 s77, s77, s78
        s_waitcnt lgkmcnt(0)
        s_barrier
        """)
        fill = [[f"v_add_u32 v{VW}, s78, v{VW}", f"v_add_u32 v{VXA}, s78, v{VXA}"]]
        f2 = [f"v_add_u32 v{VXA+1}, s78, v{VXA+1}"]
        if halo:
            f2.append(f"v_add_u32 v{VXH+1}, s78, v{VXH+1}")
        seq = []
        for l in reads(F0, 0, nc, halo):
            for j in range(1, nc):
                if f"v{VW+j} offset:0" in l and l.endswith("offset:0"):
                    seq.append(f"v_add_u32 v{VW+j}, s78, v{VW+j}")
            if halo and l.endswith(f"v{VXH}"):
                seq.append(f"v_add_u32 v{VXH}, s78, v{VXH}")
            seq.append(l)
        for k in range(0, len(seq), 2):
            fill.append(seq[k:k + 2])
        fill.append(f2)
        if prefetch:
            fill.append([f"buffer_load_dword v{VPF}, v{VPF+1}, s[68:71], s73 offen",
                         "s_add_u32 s73, s73, s72", "s_add_u32 s74, s74, 1", "s_cmp_lt_u32 s74, 10",
                         "s_cselect_b32 s73, s73, 0x80000000"])
        interleave(A, mfmas(F1, nc, halo), fill)
        A(f"""
        s_add_u32 s76, s76, 1
        s_cmp_eq_u32 s76, 9
        s_cbranch_scc0 {lab}_ng
        s_nop 7
        s_call_b64 s[88:89], {name}_auxg
        {lab}_ng:
        """)
        A(f"""
        s_cmp_lt_u32 s76, 10
        s_cbranch_scc1 {lab}
        """)
        A("s_waitcnt lgkmcnt(0)")
        if halo or cname == "c4":
            if cname == "c4":
                A(f"s_cmp_eq_u32 s51, 1\ns_cbranch_scc1 {name}_epiB4")
            A(f"""
            v_and_b32 v{VTA}, 15, v{VL}
            v_lshrrev_b32 v{VTA+1}, 4, v{VL}
            v_mul_u32_u24 v{VTA}, {RSQ}, v{VTA}
            v_lshl_add_u32 v{VTA}, v{VTA+1}, 3, v{VTA}
            s_lshl_b32 s60, s59, 5
            v_add_u32 v{VTA}, s60, v{VTA}
            s_lshl_b32 s60, s57, 2
            s_add_u32 s60, s60, 1
            s_mul_i32 s60, s60, {16*RSQ}
            v_add_u32 v{VTA+1}, s60, v{VTA}
            """)
            k = 0
            for j in range(nc):
                for i in range(4):
                    a = ACC + (i * 4 + j) * 4
                    t = F0 + 2 * k; k += 1
                    A(f"v_cvt_pk_bf16_f32 v{t}, v{a}, v{a+1}")
                    A(f"v_cvt_pk_bf16_f32 v{t+1}, v{a+2}, v{a+3}")
                    A(f"ds_write_b64 v{VTA+1}, v[{t}:{t+1}] offset:{i*16*RSQ + j*32}")
            for hi, j in enumerate(halo):
                a = ACC + (16 + hi) * 4
                t = F0 + 2 * k; k += 1
                A(f"v_cvt_pk_bf16_f32 v{t}, v{a}, v{a+1}")
                A(f"v_cvt_pk_bf16_f32 v{t+1}, v{a+2}, v{a+3}")
                A(f"ds_write_b64 v{VTA}, v[{t}:{t+1}] offset:{j*32}")
            A(f"s_branch {name}_attn")
        else:
            A(f"s_branch {name}_epiB3")

    A(f"{name}_attn:")
    mi, g = VTA, VTA + 1
    vQ, vK0, vK1, vV = VTA + 2, VTA + 3, VTA + 4, VTA + 5
    vmlo, vmhi, vsh = VTA + 6, VTA + 7, VTA + 8
    A(f"""
    v_and_b32 v{mi}, 15, v{VL}
    v_lshrrev_b32 v{g}, 4, v{VL}
    s_mul_i32 s60, s50, {16*RSQ}
    v_mul_u32_u24 v{vK0}, {RSQ}, v{mi}
    v_lshl_add_u32 v{vK0}, v{g}, 4, v{vK0}
    v_add_u32 v{vK0}, s60, v{vK0}
    v_add_u32 v{vQ}, {16*RSQ}, v{vK0}
    v_add_u32 v{vK0}, 160, v{vK0}
    v_add_u32 v{vK1}, 160, v{vQ}
    v_lshrrev_b32 v{VTA+9}, 2, v{mi}
    v_lshl_add_u32 v{VTA+9}, v{g}, 2, v{VTA+9}
    v_mul_u32_u24 v{vV}, {RSQ}, v{VTA+9}
    v_and_b32 v{VTA+9}, 3, v{mi}
    v_lshl_add_u32 v{vV}, v{VTA+9}, 3, v{vV}
    v_add_u32 v{vV}, s60, v{vV}
    v_add_u32 v{vV}, 320, v{vV}
    v_cmp_gt_u32 vcc, 3, v{g}
    v_cndmask_b32 v{vmlo}, 0, -1, vcc
    v_cmp_gt_u32 vcc, 2, v{g}
    v_cndmask_b32 v{vmhi}, 0, -1, vcc
    v_and_b32 v{VTA+9}, 1, v{mi}
    v_lshlrev_b32 v{vsh}, 4, v{VTA+9}
    v_cmp_eq_u32 s[60:61], 1, v{VTA+9}            ; Mpar
    v_lshrrev_b32 v{VTA+9}, 1, v{mi}              ; qe
    v_lshlrev_b32 v{VTA+10}, 1, v{g}
    v_cmp_le_u32 s[62:63], v{VTA+10}, v{VTA+9}
    v_add_u32 v{VTA+10}, 1, v{VTA+10}
    v_cmp_le_u32 s[64:65], v{VTA+10}, v{VTA+9}
    v_cmp_le_u32 s[70:71], 1, v{g}               ; Mg1
    v_cmp_le_u32 s[72:73], 2, v{g}               ; Mg2
    v_cmp_le_u32 s[74:75], 3, v{g}               ; Mg3
    s_add_u32 s76, s52, s50
    s_not_b64 s[66:67], s[62:63]
    s_not_b64 s[68:69], s[64:65]
    s_cmp_eq_u32 s76, 0
    s_cselect_b64 s[66:67], s[66:67], 0          ; Minv0
    s_cselect_b64 s[68:69], s[68:69], 0          ; Minv1
    s_waitcnt lgkmcnt(0)
    s_barrier
    """)
    Q = lambda h: 0 + 4 * h
    K0 = lambda h: 16 + 4 * h
    K1 = lambda h: 32 + 4 * h
    V = lambda b: 48 + 4 * b
    S0 = lambda h: 68 + 4 * h
    S1 = lambda h: 84 + 4 * h
    L = lambda h, t: 100 + 2 * h + t
    M = lambda h: 108 + h
    T = lambda h: 112 + h
    P = lambda h: 116 + 4 * h
    O = lambda n: 0 + 4 * n
    PK = 132
    for h in range(4):
        A(f"ds_read2_b64 {R(Q(h))}, v{vQ} offset0:{h*5} offset1:{h*5+1}")
        A(f"ds_read2_b64 {R(K0(h))}, v{vK0} offset0:{h*5} offset1:{h*5+1}")
        A(f"ds_read2_b64 {R(K1(h))}, v{vK1} offset0:{h*5} offset1:{h*5+1}")
    for h in range(4):
        A(f"s_waitcnt lgkmcnt({9 - 3*h})")
        q = Q(h)
        A(f"""
        v_and_b32 v{q}, v{q}, v{vmlo}
        v_and_b32 v{q+1}, v{q+1}, v{vmlo}
        v_and_b32 v{q+2}, v{q+2}, v{vmhi}
        v_and_b32 v{q+3}, v{q+3}, v{vmhi}
        v_mfma_f32_16x16x32_bf16 {R(S0(h))}, {R(K0(h))}, {R(q)}, 0
        v_mfma_f32_16x16x32_bf16 {R(S1(h))}, {R(K1(h))}, {R(q)}, 0
        """)
    for b in range(5):
        A(f"ds_read_b64_tr_b16 v[{V(b)}:{V(b)+1}], v{vV} offset:{b*32}")
        A(f"ds_read_b64_tr_b16 v[{V(b)+2}:{V(b)+3}], v{vV} offset:{b*32 + 16*RSQ}")
    A(f"s_mov_b32 s77, 0xffff0000")
    A(f"s_mov_b32 s78, {SCALE}")
    A(f"s_mov_b32 s79, 0xce6e6b28")
    A(f"v_mov_b32 v{VTA+11}, s79")
    Mc = ["s[62:63]", "s[64:65]"]; Minv = ["s[66:67]", "s[68:69]"]
    for h in range(4):
        for t in range(2):
            A(f"v_cndmask_b32 v{S0(h)+2*t}, v{S0(h)+2*t}, v{S0(h)+2*t+1}, s[60:61]")
            A(f"v_cndmask_b32 v{S1(h)+2*t}, v{S1(h)+2*t}, v{S1(h)+2*t+1}, s[60:61]")
    for h in range(4):
        for t in range(2):
            A(f"v_cndmask_b32 v{L(h,t)}, v{S0(h)+2*t}, v{S1(h)+2*t}, {Mc[t]}")
    for h in range(4):
        l0, l1, t_ = L(h, 0), L(h, 1), T(h)
        A(f"""
        v_cvt_pk_bf16_f32 v{t_}, v{l0}, v{l1}
        v_lshlrev_b32 v{l0}, 16, v{t_}
        v_and_b32 v{l1}, s77, v{t_}
        v_mul_f32 v{l0}, s78, v{l0}
        v_mul_f32 v{l1}, s78, v{l1}
        v_cvt_pk_bf16_f32 v{t_}, v{l0}, v{l1}
        v_lshlrev_b32 v{l0}, 16, v{t_}
        v_and_b32 v{l1}, s77, v{t_}
        v_cndmask_b32 v{l0}, v{l0}, v{VTA+11}, {Minv[0]}
        v_cndmask_b32 v{l1}, v{l1}, v{VTA+11}, {Minv[1]}
        v_max_f32 v{M(h)}, v{l0}, v{l1}
        """)
    for swap in ("v_permlane16_swap_b32", "v_permlane32_swap_b32"):
        for h in range(4):
            A(f"v_mov_b32 v{T(h)}, v{M(h)}")
        for h in range(4):
            A(f"{swap} v{T(h)}, v{M(h)}")
        for h in range(4):
            A(f"v_max_f32 v{M(h)}, v{M(h)}, v{T(h)}")
    A(f"s_mov_b32 s79, {LOG2E}")
    for h in range(4):
        for t in range(2):
            A(f"v_sub_f32 v{L(h,t)}, v{L(h,t)}, v{M(h)}")
    for h in range(4):
        for t in range(2):
            A(f"v_mul_f32 v{L(h,t)}, s79, v{L(h,t)}")
    for h in range(4):
        for t in range(2):
            A(f"v_exp_f32 v{L(h,t)}, v{L(h,t)}")
    for h in range(4):
        A(f"v_add_f32 v{M(h)}, v{L(h,0)}, v{L(h,1)}")
    for swap in ("v_permlane16_swap_b32", "v_permlane32_swap_b32"):
        for h in range(4):
            A(f"v_mov_b32 v{T(h)}, v{M(h)}")
        for h in range(4):
            A(f"{swap} v{T(h)}, v{M(h)}")
        for h in range(4):
            A(f"v_add_f32 v{M(h)}, v{M(h)}, v{T(h)}")
    for h in range(4):
        A(f"v_rcp_f32 v{M(h)}, v{M(h)}")
    for h in range(4):
        for t in range(2):
            A(f"v_mul_f32 v{L(h,t)}, v{L(h,t)}, v{M(h)}")
    for h in range(4):
        for t in range(2):
            A(f"v_cvt_pk_bf16_f32 v{L(h,t)}, v{L(h,t)}, 0")
    for h in range(4):
        for t in range(2):
            A(f"v_lshlrev_b32 v{L(h,t)}, v{vsh}, v{L(h,t)}")
    for h in range(4):
        for t in range(2):
            A(f"v_cndmask_b32 v{P(h)+t}, v{L(h,t)}, 0, {Mc[t]}")
            A(f"v_cndmask_b32 v{P(h)+2+t}, 0, v{L(h,t)}, {Mc[t]}")
    A("s_waitcnt lgkmcnt(0)")
    for h in range(4):
        for e in range(2):
            A(f"v_mfma_f32_16x16x32_bf16 {R(O(2*h+e))}, {R(V(h+e))}, {R(P(h))}, 0")
    Mg = {1: "s[70:71]", 2: "s[72:73]", 3: "s[74:75]"}
    A(f"""
    s_lshr_b32 s60, s50, 2
    s_lshl_b32 s61, s54, 1
    s_add_u32 s60, s60, s61              ; t
    s_mul_i32 s60, s60, 74
    s_mul_i32 s61, s53, 5
    s_lshr_b32 s61, s61, 1
    s_add_u32 s60, s60, s61              ; t*74 + kb0
    s_lshl_b32 s60, s60, 2
    s_and_b32 s61, s50, 3
    s_add_u32 s60, s60, s61
    s_lshl_b32 s60, s60, 10
    s_add_u32 s61, s60, 4096
    s_add_u32 s62, s60, 8192
    """)
    A(f"v_cvt_pk_bf16_f32 v{PK}, v{O(0)}, v{O(0)+1}")
    A(f"v_cvt_pk_bf16_f32 v{PK+1}, v{O(0)+2}, v{O(0)+3}")
    for b in (1, 2, 3):
        lo, hi = O(2 * (b - 1) + 1), O(2 * b)
        for r in range(4):
            A(f"v_cndmask_b32 v{lo+r}, v{lo+r}, v{hi+r}, {Mg[b]}")
        A(f"v_cvt_pk_bf16_f32 v{PK+2*b}, v{lo}, v{lo+1}")
        A(f"v_cvt_pk_bf16_f32 v{PK+2*b+1}, v{lo+2}, v{lo+3}")
    A(f"v_cvt_pk_bf16_f32 v{PK+8}, v{O(7)}, v{O(7)+1}")
    A(f"v_cvt_pk_bf16_f32 v{PK+9}, v{O(7)+2}, v{O(7)+3}")
    A(f"""
    s_and_b32 s63, s53, 1
    s_cmp_eq_u32 s63, 1
    s_cbranch_scc1 {name}_ostodd
    buffer_store_dwordx4 v[{PK}:{PK+3}], v{VLANE16}, s[28:31], s60 offen{ST}
    buffer_store_dwordx4 v[{PK+4}:{PK+7}], v{VLANE16}, s[28:31], s61 offen{ST}
    buffer_store_dwordx2 v[{PK+8}:{PK+9}], v{VLANE16}, s[28:31], s62 offen{ST}
    s_branch {name}_done
    {name}_ostodd:
    buffer_store_dwordx2 v[{PK}:{PK+1}], v{VLANE16}, s[28:31], s60 offen offset:8{ST}
    buffer_store_dwordx4 v[{PK+2}:{PK+5}], v{VLANE16}, s[28:31], s61 offen{ST}
    buffer_store_dwordx4 v[{PK+6}:{PK+9}], v{VLANE16}, s[28:31], s62 offen{ST}
    s_branch {name}_done
    """)

    def mish_blocks(blks):
        def each(f):
            for (a, bias, dst, t) in blks:
                A(f(a, bias, dst, t))
        each(lambda a, b, d, t: f"v_cvt_pk_bf16_f32 v{t}, v{a}, v{a+1}\nv_cvt_pk_bf16_f32 v{t+1}, v{a+2}, v{a+3}")
        each(lambda a, b, d, t: f"v_lshlrev_b32 v{a}, 16, v{t}\nv_and_b32 v{a+1}, s77, v{t}\n"
                                f"v_lshlrev_b32 v{a+2}, 16, v{t+1}\nv_and_b32 v{a+3}, s77, v{t+1}")
        each(lambda a, b, d, t: f"v_pk_add_f32 v[{a}:{a+1}], v[{a}:{a+1}], v[{b}:{b+1}]\n"
                                f"v_pk_add_f32 v[{a+2}:{a+3}], v[{a+2}:{a+3}], v[{b+2}:{b+3}]")
        each(lambda a, b, d, t: f"v_cvt_pk_bf16_f32 v{t}, v{a}, v{a+1}\nv_cvt_pk_bf16_f32 v{t+1}, v{a+2}, v{a+3}")
        each(lambda a, b, d, t: f"v_lshlrev_b32 v{a}, 16, v{t}\nv_and_b32 v{a+1}, s77, v{t}\n"
                                f"v_lshlrev_b32 v{a+2}, 16, v{t+1}\nv_and_b32 v{a+3}, s77, v{t+1}")
        each(lambda a, b, d, t: f"v_pk_mul_f32 v[{t}:{t+1}], v[{a}:{a+1}], s[78:79]\n"
                                f"v_pk_mul_f32 v[{t+2}:{t+3}], v[{a+2}:{a+3}], s[78:79]")
        each(lambda a, b, d, t: "\n".join(f"v_exp_f32 v{t+r}, v{t+r}" for r in range(4)))
        each(lambda a, b, d, t: f"v_pk_add_f32 v[{t}:{t+1}], v[{t}:{t+1}], s[66:67]\n"
                                f"v_pk_add_f32 v[{t+2}:{t+3}], v[{t+2}:{t+3}], s[66:67]")
        each(lambda a, b, d, t: f"v_pk_fma_f32 v[{t}:{t+1}], v[{t}:{t+1}], v[{t}:{t+1}], s[66:67]\n"
                                f"v_pk_fma_f32 v[{t+2}:{t+3}], v[{t+2}:{t+3}], v[{t+2}:{t+3}], s[66:67]")
        each(lambda a, b, d, t: "\n".join(f"v_rcp_f32 v{t+r}, v{t+r}" for r in range(4)))
        each(lambda a, b, d, t: f"v_pk_fma_f32 v[{t}:{t+1}], v[{t}:{t+1}], v[{VC2}:{VC2+1}], s[66:67]\n"
                                f"v_pk_fma_f32 v[{t+2}:{t+3}], v[{t+2}:{t+3}], v[{VC2}:{VC2+1}], s[66:67]")
        each(lambda a, b, d, t: f"v_pk_mul_f32 v[{t}:{t+1}], v[{t}:{t+1}], v[{a}:{a+1}]\n"
                                f"v_pk_mul_f32 v[{t+2}:{t+3}], v[{t+2}:{t+3}], v[{a+2}:{a+3}]")
        each(lambda a, b, d, t: f"v_cvt_pk_bf16_f32 v{d}, v{t}, v{t+1}\nv_cvt_pk_bf16_f32 v{d+1}, v{t+2}, v{t+3}")

    def epiB_common():
        A(f"""
        s_mov_b32 s77, 0xffff0000
        s_mov_b32 s78, {LOG2E}
        s_mov_b32 s79, {LOG2E}
        s_mov_b32 s66, 1.0
        s_mov_b32 s67, 1.0
        v_mov_b32 v{VC2}, -2.0
        v_mov_b32 v{VC2+1}, -2.0
        s_add_u32 s60, s55, s59            ; fb0
        s_lshl_b32 s61, s54, 1
        s_add_u32 s61, s61, s57            ; t
        s_mul_i32 s61, s61, 74
        s_lshr_b32 s62, s60, 1
        s_add_u32 s61, s61, s62
        s_add_u32 s61, s61, 20
        s_lshl_b32 s61, s61, 12
        s_add_u32 s62, s61, 4096
        """)
        for j in range(4):
            A(f"v_lshlrev_b32 v{VBIAS+4*j}, 16, v{VBRAW+2*j}")
            A(f"v_and_b32 v{VBIAS+4*j+1}, s77, v{VBRAW+2*j}")
            A(f"v_lshlrev_b32 v{VBIAS+4*j+2}, 16, v{VBRAW+2*j+1}")
            A(f"v_and_b32 v{VBIAS+4*j+3}, s77, v{VBRAW+2*j+1}")

    def blk(i, j):
        return ACC + (i * 4 + j) * 4
    A(f"{name}_epiB4:")
    epiB_common()
    for i in range(4):
        d = VDB + 8 * i
        mish_blocks([(blk(i, j), VBIAS + 4 * j, d + 2 * j, VTB + 4 * j + 16 * (i % 2)) for j in range(4)])
        A(f"buffer_store_dwordx4 v[{d}:{d+3}], v{VLANE16}, s[28:31], s61 offen offset:{i*1024}{ST}")
        A(f"buffer_store_dwordx4 v[{d+4}:{d+7}], v{VLANE16}, s[28:31], s62 offen offset:{i*1024}{ST}")
    A(f"s_branch {name}_done")
    A(f"{name}_epiB3:")
    epiB_common()
    A(f"""
    s_and_b32 s63, s60, 1
    s_cmp_eq_u32 s63, 1
    s_cbranch_scc1 {name}_epiB3odd
    """)
    for i in range(4):
        d = VDB + 8 * i
        mish_blocks([(blk(i, j), VBIAS + 4 * j, d + 2 * j, VTB + 4 * j + 16 * (i % 2)) for j in range(3)])
        A(f"buffer_store_dwordx4 v[{d}:{d+3}], v{VLANE16}, s[28:31], s61 offen offset:{i*1024}{ST}")
        A(f"buffer_store_dwordx2 v[{d+4}:{d+5}], v{VLANE16}, s[28:31], s62 offen offset:{i*1024}{ST}")
    A(f"s_branch {name}_done")
    A(f"{name}_epiB3odd:")
    for i in range(4):
        d = VDB + 8 * i
        mish_blocks([(blk(i, j), VBIAS + 4 * j, d + 2 + 2 * j, VTB + 4 * j + 16 * (i % 2)) for j in range(3)])
        A(f"buffer_store_dwordx2 v[{d+2}:{d+3}], v{VLANE16}, s[28:31], s61 offen offset:{i*1024+8}{ST}")
        A(f"buffer_store_dwordx4 v[{d+4}:{d+7}], v{VLANE16}, s[28:31], s62 offen offset:{i*1024}{ST}")


    A(f"{name}_done:")
    if stamp:
        A("s_memrealtime s[86:87]")
    A(f"""
    s_waitcnt vmcnt(0) lgkmcnt(0)
    s_barrier
    """)
    if stamp:
        A("s_memrealtime s[84:85]")
    A(f"""
    s_lshl_b32 s62, s48, 12
    s_mul_i32 s63, s48, 5120
    """)
    for l in wdma(0) + wdma(1): A(l)
    A(f"""
    s_lshr_b32 s60, s20, 1
    s_lshl_b32 s60, s60, 8
    s_add_u32 s60, s60, {WS_FLAG}
    s_cmp_lt_u32 s50, 2
    s_cselect_b32 s61, 0, 8
    v_and_b32 v0, 15, v{VL}
    v_or_b32 v0, s61, v0
    v_lshlrev_b32 v0, 2, v0
    s_mov_b32 s61, 0
    {name}_poll:
    buffer_load_dword v1, v0, s[28:31], s60 offen sc1
    s_waitcnt vmcnt(0)
    v_cmp_ne_u32 vcc, 1, v1
    s_cbranch_vccz {name}_go
    s_add_u32 s61, s61, 1
    s_cmp_gt_u32 s61, 0x40000
    s_cbranch_scc1 {name}_go
    s_sleep 4
    s_branch {name}_poll
    {name}_go:
    """)
    if stamp:
        A("s_memrealtime s[88:89]")
    AB = lambda b, i: (80 + 16 * b if b < 3 else 152) + 4 * i
    WB = lambda j: 128 + 4 * j
    V7, VL16, VA = 148, 149, 150
    V5 = 80
    NB = 4
    A(f"""
    s_lshl_b32 s60, s20, 6
    s_lshr_b32 s61, s50, 1
    s_lshl_b32 s61, s61, 4
    s_add_u32 s60, s60, s61
    v_and_b32 v{V5}, 15, v{VL}
    v_add_u32 v{V5}, s60, v{V5}
    v_lshlrev_b32 v{V7}, 2, v{V5}
    s_mov_b32 s61, {WS_G}
    buffer_load_dword v{V7}, v{V7}, s[28:31], s61 offen
    v_add_u32 v{VA}, s24, v{VLANE16}
    v_mov_b32 v{VL16}, v{VLANE16}
    v_add_u32 v{VA+1}, 0x14000, v{VA}
    s_lshl_b32 s62, s48, 12
    s_mul_i32 s63, s48, 5120
    """)

    def aloads(b):
        return [f"buffer_load_dwordx4 {R(AB(b, i))}, v{VL16}, s[28:31], s22 offen offset:{i*1024}{LD}" for i in range(4)] + \
               ["s_add_u32 s22, s22, 4096", "s_add_u32 s26, s26, 1", "s_cmp_eq_u32 s26, s48",
                "s_cselect_b32 s60, s62, 0", "s_cselect_b32 s26, 0, s26", "s_sub_u32 s22, s22, s60"]

    def body2(n):
        q = VQ()
        for i in range(NB - 1):
            for l in aloads(i): A(l)
            q.add(f"A{i}", 4)
        for i in range(n):
            slot = (i + 2) % 4
            tags = [t for t in (f"A{i}", f"W{i}") if t in q.q]
            last = max(tags, key=lambda t: max(k for k, x in enumerate(q.q) if x == t))
            A(f"s_waitcnt vmcnt({q.wait_for(last)})")
            for j in range(5):
                off = (slot % 2) * 40960 + j * 1024
                A(f"ds_read_b128 {R(WB(j))}, v{VA + slot//2} offset:{off}")
            if i + NB - 1 < n:
                for l in aloads((i + NB - 1) % NB): A(l)
                q.add(f"A{i+NB-1}", 4)
            mf = []
            for j in range(5):
                for ii in range(4):
                    acc = R((ii * 5 + j) * 4)
                    mf.append(f"v_mfma_f32_16x16x32_bf16 {acc}, {R(WB(j))}, {R(AB(i % NB, ii))}, {acc if i else 0}")
            A("s_waitcnt lgkmcnt(0)")
            fill = []
            if i + 4 < n:
                w = [l.replace(f'v{VLANE16},', f'v{VL16},') for l in wdma(slot)]
                fill = [w[0:2], w[2:3], w[3:4], w[4:5], w[5:]]
                q.add(f"W{i+4}", 5)
            interleave(A, mf, fill)

    A(f"""
    s_cmp_lt_u32 s50, 2
    s_cbranch_scc0 {name}_b9
    """)
    body2(10)
    A(f"s_branch {name}_epi2")
    A(f"{name}_b9:")
    body2(9)
    A(f"{name}_epi2:")
    if stamp:
        A("s_memrealtime s[90:91]")
    for i in range(4):
        for j in range(5):
            A(f"ds_write_b128 v{VA + i//2}, {R((i*5+j)*4)} offset:{(i%2)*40960 + j*1024}")
    A(f"""
    s_lshr_b32 s60, s50, 1
    s_mul_i32 s60, s60, 40960
    s_and_b32 s61, s50, 1
    s_mul_i32 s62, s61, 3072
    s_add_u32 s60, s60, s62
    v_add_u32 v{VA}, s60, v{VL16}
    v_lshrrev_b32 v{VL}, 4, v{VL16}
    s_waitcnt lgkmcnt(0)
    s_barrier
    """)
    for jj in range(3):
        if jj == 2:
            A(f"s_cmp_eq_u32 s61, 1\ns_cbranch_scc1 {name}_rd_done")
        for w in range(8):
            b = (jj * 8 + w) * 4
            A(f"ds_read_b128 v[{b}:{b+3}], v{VA} offset:{jj*1024 + w*5120}")
    A(f"{name}_rd_done:")
    V9, V11, VO = 151, 154, 156
    A(f"""
    s_waitcnt vmcnt(0)
    v_sub_f32 v{V9}, 1.0, v{V7}
    v_cvt_pk_bf16_f32 v{V9}, v{V9}, v{V9}
    v_lshlrev_b32 v{V9}, 16, v{V9}
    s_lshl_b32 s60, s20, 6
    s_lshr_b32 s62, s50, 1
    s_lshl_b32 s62, s62, 4
    s_add_u32 s60, s60, s62
    v_and_b32 v{V11}, 15, v{VL}
    v_add_u32 v{V11}, s60, v{V11}
    v_lshrrev_b32 v{VO}, 4, v{VL}
    v_mul_u32_u24 v{V11}, 1280, v{V11}
    v_lshl_add_u32 v{V11}, v{VO}, 3, v{V11}
    s_mul_i32 s60, s21, 160
    s_mul_i32 s62, s61, 96
    s_add_u32 s60, s60, s62
    s_mov_b32 s62, 0xffff0000
    s_waitcnt lgkmcnt(0)
    """)
    for jj in range(3):
        if jj == 2:
            A(f"s_cmp_eq_u32 s61, 1\ns_cbranch_scc1 {name}_fin")
        base = jj * 32
        a0, a1, b1 = base, base + 4, base + 8
        pk = lambda op, d, x, y: A(f"{op} v[{d}:{d+1}], v[{x}:{x+1}], v[{y}:{y+1}]")
        for h in (0, 2):
            pk("v_pk_add_f32", a0 + h, a0 + h, a1 + h)
            pk("v_pk_add_f32", b1 + h, b1 + h, b1 + 4 + h)
            pk("v_pk_add_f32", b1 + 8 + h, b1 + 8 + h, b1 + 12 + h)
            pk("v_pk_add_f32", b1 + 16 + h, b1 + 16 + h, b1 + 20 + h)
        for h in (0, 2):
            pk("v_pk_add_f32", b1 + h, b1 + h, b1 + 8 + h)
        for h in (0, 2):
            pk("v_pk_add_f32", b1 + h, b1 + h, b1 + 16 + h)
        for p in range(2):
            ra, rb = a0 + 2 * p, b1 + 2 * p
            t0, t1 = b1 + 8 + 2 * p, b1 + 12 + 2 * p
            A(f"""
            v_cvt_pk_bf16_f32 v{t0}, v{ra}, v{ra+1}
            v_cvt_pk_bf16_f32 v{t1}, v{rb}, v{rb+1}
            v_lshlrev_b32 v{ra}, 16, v{t0}
            v_and_b32 v{ra+1}, s62, v{t0}
            v_lshlrev_b32 v{rb}, 16, v{t1}
            v_and_b32 v{rb+1}, s62, v{t1}
            v_mul_f32 v{ra}, v{V7}, v{ra}
            v_mul_f32 v{ra+1}, v{V7}, v{ra+1}
            v_mul_f32 v{rb}, v{V9}, v{rb}
            v_mul_f32 v{rb+1}, v{V9}, v{rb+1}
            v_cvt_pk_bf16_f32 v{t0}, v{ra}, v{ra+1}
            v_cvt_pk_bf16_f32 v{t1}, v{rb}, v{rb+1}
            v_lshlrev_b32 v{ra}, 16, v{t0}
            v_and_b32 v{ra+1}, s62, v{t0}
            v_lshlrev_b32 v{rb}, 16, v{t1}
            v_and_b32 v{rb+1}, s62, v{t1}
            v_pk_add_f32 v[{ra}:{ra+1}], v[{ra}:{ra+1}], v[{rb}:{rb+1}]
            v_cvt_pk_bf16_f32 v{VO+2*jj+p}, v{ra}, v{ra+1}
            """)
        A(f"buffer_store_dwordx2 v[{VO+2*jj}:{VO+2*jj+1}], v{V11}, s[36:39], s60 offen offset:{jj*32}")
    A(f"{name}_fin:")
    if stamp:
        A(f"""
        s_waitcnt vmcnt(0)
        s_memrealtime s[94:95]
        s_waitcnt lgkmcnt(0)
        v_mov_b32 v16, s80
        v_mov_b32 v17, s94
        v_mov_b32 v18, s82
        v_mov_b32 v19, s84
        v_mov_b32 v20, s86
        v_mov_b32 v21, s88
        v_mov_b32 v22, s90
        v_mov_b32 v23, 0
        s_lshl_b32 s60, s2, 3
        s_add_u32 s60, s60, s50
        s_lshl_b32 s60, s60, 5
        s_add_u32 s60, s60, {WS_STAMP}
        v_mov_b32 v14, 0
        buffer_store_dwordx4 v[16:19], v14, s[28:31], s60 offen
        buffer_store_dwordx4 v[20:23], v14, s[28:31], s60 offen offset:16
        """)
    A(f"{name}_exit:")
    A("s_endpgm")


def desc(name):
    return f"""
.section .rodata,"a"
.p2align 6
.amdhsa_kernel {name}
  .amdhsa_next_free_vgpr 168
  .amdhsa_next_free_sgpr 102
  .amdhsa_accum_offset 168
  .amdhsa_group_segment_fixed_size 0
  .amdhsa_kernarg_size 88
  .amdhsa_user_sgpr_count 2
  .amdhsa_user_sgpr_kernarg_segment_ptr 1
  .amdhsa_system_sgpr_workgroup_id_x 1
.end_amdhsa_kernel
"""


if __name__ == "__main__":
    import sys
    NAME = "gated_mix__sliding_local_dilated__dense_activation_mish__prompt"
    out = f"cdna_kernels/{NAME}.s"
    for a in sys.argv[1:]:
        if a.endswith(".s"): out = a
    A = Asm()
    A.raw(f"; @launch grid=(256,1,1) block=({NWAVE*64},1,1) lds={P1_LDS}")
    A.raw('.amdgcn_target "amdgcn-amd-amdhsa--gfx950"')
    if "norot" in sys.argv: ROT = 0
    if "notouch" in sys.argv: WTOUCH = 0
    gen_fused(A, NAME + "_kernel", stamp="stamp" in sys.argv, prefetch="pf" in sys.argv)
    open(out, "w").write(A.finish() + desc(NAME + "_kernel"))
    print("wrote", out)
```

```python
from asmlib import Asm

WS_ACT, WS_WF, WS_G = 0, 0xA00000, 0xE00000
WS_SIZE = 0x1000000
WS_STAMP = 0xF00000
WS_FLAG = 0xE80000
WS_FLAG2 = 0xE90000
OUT_BYTES = 2048 * 640 * 2
P1_LDS = 160 * 1024
STAGE = 49152
XREG = 18432
RL_BASE = 3 * STAGE
GLDS = RL_BASE + 15360
BLDS = GLDS + 64
RSQ = 488
LOG2E = 0x3fb8aa3b
SCALE = 0x3e64f92e

ACC = 0
F0 = 72
F1 = 108
VW = 144
VXA = 148
VXH = 150
VLANE16 = 152
VL = 153
VBRAW = 154
VPF = 162
VC2 = 164
VT = 72
VTA = 154
VBIAS = 72
VTB = 88
VDB = 120
VDMA = 4
HT = 8
HF = 100
NWAVE = 12
ROT = 1
ROT2 = 0
COMMON = 0
WTOUCH = 0
PF0 = 2


def xfrag(fs, i):
    return fs + 4 * i
def wfrag(fs, j):
    return fs + 20 + 4 * j
def R(b, n=4):
    return "v[%d:%d]" % (b, b + n - 1)


def interleave(A, mf, fillers):
    n = len(mf)
    for mi, m in enumerate(mf):
        A(m)
        if mi < len(fillers):
            for l in fillers[mi]: A(l)
    for g in fillers[n:]:
        for l in g: A(l)


class VQ:
    def __init__(self): self.q = []
    def add(self, tag, n): self.q += [tag] * n
    def wait_for(self, tag):
        last = max(i for i, t in enumerate(self.q) if t == tag)
        n = len(self.q) - 1 - last
        self.q = self.q[last + 1:]
        return n


def gen_fused(A, name, stamp=False, prefetch=False):
    ST = " sc1"
    LD = ""
    A(f"""
.text
.globl {name}
.p2align 8
.type {name},@function
{name}:
    s_cmp_ge_u32 s2, 256
    s_cbranch_scc1 {name}_exit
    """)
    if stamp:
        A("s_memrealtime s[80:81]")
        A("s_memtime s[92:93]")
    A(f"""
    s_load_dwordx4 s[96:99], s[0:1], 64
    s_load_dwordx4 s[4:7], s[0:1], 0
    s_load_dwordx2 s[8:9], s[0:1], 16
    s_load_dwordx2 s[10:11], s[0:1], 80
    s_load_dwordx4 s[12:15], s[0:1], 32
    s_load_dwordx4 s[16:19], s[0:1], 48
    v_lshrrev_b32 v1, 6, v0
    v_and_b32 v{VL}, 63, v0
    v_readfirstlane_b32 s50, v1
    v_lshlrev_b32 v{VLANE16}, 4, v{VL}
    s_and_b32 s60, s2, 7
    s_lshr_b32 s61, s2, 3
    s_and_b32 s62, s60, 1
    s_lshl_b32 s62, s62, 3
    s_and_b32 s63, s61, 7
    s_add_u32 s54, s62, s63            ; s54 = mt (0..15)
    s_lshl_b32 s52, s54, 7             ; s52 = m0
    s_lshr_b32 s62, s60, 1             ; cq
    s_lshr_b32 s63, s61, 3             ; cl
    s_lshr_b32 s51, s63, 1             ; s51 = type (0=A,1=B)
    s_and_b32 s63, s63, 1
    s_lshl_b32 s62, s62, 1
    s_add_u32 s53, s62, s63
    s_mul_i32 s55, s53, 14
    s_lshr_b32 s62, s53, 2
    s_lshl_b32 s62, s62, 1
    s_sub_u32 s55, s55, s62
    s_and_b32 s62, s53, 3
    s_cmp_eq_u32 s62, 3
    s_cselect_b32 s56, 1, 0
    s_and_b32 s57, s50, 1              ; s57 = mh
    s_lshr_b32 s58, s50, 1             ; s58 = ng
    s_mov_b32 s64, 3456
    s_cmp_eq_u32 s51, 0
    s_cselect_b32 s64, 3840, s64
    s_cselect_b32 s65, 1152, 0
    s_mul_i32 s62, s53, 160
    s_mul_i32 s63, s55, 32
    s_cselect_b32 s66, s62, s63
    s_lshl_b32 s62, s56, 1
    s_sub_u32 s62, 14, s62
    s_cmp_eq_u32 s51, 0
    s_cselect_b32 s67, 64, s62
    s_lshl_b32 s68, s64, 6
    s_lshl_b32 s3, s54, 4
    s_lshl_b32 s60, s51, 3
    s_add_u32 s3, s3, s60
    s_add_u32 s3, s3, s53
    s_cmp_ge_u32 s50, 8
    s_cbranch_scc0 {name}_compute
    s_setprio 3
    v_mov_b32 v{HF}, 0
    s_sub_u32 s50, s50, 8              ; h
    s_lshl_b32 s60, s50, 4
    s_mul_i32 s72, s60, s64
    s_lshl_b32 s61, s64, 1
    s_add_u32 s73, s72, s61            ; +2
    s_lshl_b32 s62, s64, 3
    s_add_u32 s74, s72, s62            ; +8
    s_add_u32 s75, s74, s61            ; +10
    s_lshl_b32 s63, s64, 2
    s_add_u32 s76, s72, s63            ; +4
    s_add_u32 s77, s76, s61            ; +6
    s_add_u32 s78, s74, s63            ; +12
    s_add_u32 s79, s78, s61            ; +14
    s_lshl_b32 s60, s50, 5
    s_add_u32 s60, s60, s52
    s_mul_i32 s20, s60, 1280
    s_sub_u32 s60, s52, 16
    s_lshl_b32 s61, s50, 3
    s_add_u32 s60, s60, s61
    s_mul_i32 s22, s60, 1280
    s_cmp_eq_u32 s52, 0
    s_cselect_b32 s22, 0x80000000, s22
    s_mov_b32 s90, -1
    s_mov_b32 s91, 0x0fffffff
    s_mul_i32 s71, s50, 7680
    s_add_u32 s71, s71, {XREG}
    s_lshl_b32 s23, s50, 12
    s_add_u32 s23, s23, 2048
    s_lshl_b32 s48, s50, 10
    s_lshl_b32 s60, s51, 1
    s_add_u32 s60, s60, s50
    s_cmp_lt_u32 s60, 2
    s_cselect_b32 s70, 1, 0
    s_cmp_eq_u32 s51, 0
    s_cselect_b32 s62, 12, 14
    s_and_b32 s63, s53, 1
    s_cselect_b32 s63, s63, 0
    s_cmp_eq_u32 s51, 0
    s_cselect_b32 s63, s63, 0
    s_lshl_b32 s60, s62, 1
    v_lshrrev_b32 v{HT}, 1, v{VL}                    ; pos
    v_cmp_le_u32 vcc, s62, v{HT}
    v_subrev_u32 v{HT+1}, s62, v{HT}
    v_xor_b32 v{HT+1}, 1, v{HT+1}
    v_cndmask_b32 v{HT+1}, v{HT}, v{HT+1}, vcc
    v_cndmask_b32 v{HT+2}, 0, 1, vcc                 ; parity
    v_lshrrev_b32 v{HT+3}, 2, v{HT+1}
    v_mul_u32_u24 v{HT+3}, s65, v{HT+3}
    v_lshl_add_u32 v{HT+3}, v{HT+1}, 5, v{HT+3}
    s_lshl_b32 s61, s63, 5
    v_add_u32 v{HT+3}, s61, v{HT+3}
    ; singles (type A): q = pos-24 (0..5): parity = q>=3, grp = q%3, e = hgpar?0:4
    v_subrev_u32 v{HT+4}, 24, v{HT}
    v_cmp_le_u32 vcc, 3, v{HT+4}
    v_subrev_u32 v{HT+5}, 3, v{HT+4}
    v_cndmask_b32 v{HT+4}, v{HT+4}, v{HT+5}, vcc
    v_cndmask_b32 v{HT+5}, 0, 1, vcc
    v_mul_u32_u24 v{HT+4}, 1280, v{HT+4}
    s_lshl_b32 s61, s63, 7
    s_sub_u32 s61, 128, s61
    v_add_u32 v{HT+4}, s61, v{HT+4}
    v_cmp_le_u32 vcc, s60, v{HT}
    v_cndmask_b32 v{HT+3}, v{HT+3}, v{HT+4}, vcc
    v_cndmask_b32 v{HT+2}, v{HT+2}, v{HT+5}, vcc
    v_mul_u32_u24 v{HT+2}, s64, v{HT+2}
    v_and_b32 v{HT+4}, 1, v{VL}
    v_lshl_add_u32 v{HT+3}, v{HT+4}, 4, v{HT+3}
    v_add3_u32 v{HT+1}, v{HT+2}, v{HT+3}, s66        ; offset
    s_cmp_eq_u32 s51, 0
    s_cselect_b32 s60, 64, s60
    v_cmp_le_u32 vcc, s60, v{HT}
    v_mov_b32 v{HT+2}, 0x80000000
    v_cndmask_b32 v{HT+1}, v{HT+1}, v{HT+2}, vcc
    v_cmp_le_u32 vcc, s62, v{HT}
    v_subrev_u32 v{HT+4}, s62, v{HT}
    v_cndmask_b32 v{HT+4}, v{HT}, v{HT+4}, vcc
    v_cmp_le_u32 vcc, s67, v{HT+4}
    v_lshrrev_b32 v{HT+3}, 3, v{VL}
    v_cndmask_b32 v{VDMA}, v{HT+1}, v{HT+2}, vcc
    v_mul_u32_u24 v{HT+3}, 1280, v{HT+3}
    v_and_b32 v{HT+1}, 7, v{VL}
    v_lshrrev_b32 v{HT+2}, 4, v{VL}
    v_xor_b32 v{HT+1}, v{HT+1}, v{HT+2}
    v_lshl_add_u32 v{VDMA+1}, v{HT+1}, 4, v{HT+3}
    v_xor_b32 v{VDMA+2}, 64, v{VDMA+1}
    v_mov_b32 v{VDMA+3}, v{VDMA+1}
    s_cmp_eq_u32 s50, 1
    s_cbranch_scc0 {name}_h0
    v_mov_b32 v{VDMA+3}, v{VDMA+2}
    {name}_h0:
    s_waitcnt lgkmcnt(0)
    s_mov_b32 s36, s4
    s_and_b32 s37, s5, 0xffff
    s_mov_b32 s38, 2621440
    s_mov_b32 s39, 0x20000
    s_mov_b32 s26, 2211840
    s_cmp_eq_u32 s51, 0
    s_cselect_b32 s24, s6, s12
    s_cselect_b32 s25, s7, s13
    s_cselect_b32 s26, 2457600, s26
    s_and_b32 s25, s25, 0xffff
    s_mov_b32 s27, 0x20000
    s_mov_b32 s28, s10
    s_and_b32 s29, s11, 0xffff
    s_mov_b32 s30, {WS_SIZE}
    s_mov_b32 s31, 0x20000
    s_mov_b32 s40, s18
    s_and_b32 s41, s19, 0xffff
    s_mov_b32 s42, 1280
    s_mov_b32 s43, 0x20000
    s_mov_b32 s21, 0
    s_lshl_b32 s67, s64, 6
    s_lshr_b32 s60, s2, 6              ; cl
    s_mul_i32 s60, s60, 5
    s_lshr_b32 s60, s60, 1
    s_and_b32 s61, s54, 7
    s_add_u32 s60, s60, s61
    s_lshr_b32 s61, s61, 2
    s_add_u32 s60, s60, s61
    s_sub_u32 s61, s60, {10-COMMON}
    s_cmp_ge_u32 s60, {10-COMMON}
    s_cselect_b32 s60, s61, s60
    s_sub_u32 s61, s60, {10-COMMON}
    s_cmp_ge_u32 s60, {10-COMMON}
    s_cselect_b32 s60, s61, s60
    s_mul_i32 s60, s60, {ROT}
    s_add_u32 s45, s60, {COMMON}
    s_mov_b32 s44, {"0" if COMMON else "s45"}
    s_lshl_b32 s60, s44, 7
    s_add_u32 s20, s20, s60
    s_add_u32 s22, s22, s60
    s_mul_i32 s60, s44, s67
    s_add_u32 s72, s72, s60
    s_add_u32 s73, s73, s60
    s_add_u32 s74, s74, s60
    s_add_u32 s75, s75, s60
    s_add_u32 s76, s76, s60
    s_add_u32 s77, s77, s60
    s_add_u32 s78, s78, s60
    s_add_u32 s79, s79, s60
    s_mov_b32 s66, 0
    s_and_b32 s63, s3, 31
    s_lshl_b32 s60, s50, 5
    s_add_u32 s63, s63, s60                ; kb
    s_mov_b32 s34, 2211840
    s_cmp_lt_u32 s63, 20
    s_cselect_b32 s32, s8, s16
    s_cselect_b32 s33, s9, s17
    s_cselect_b32 s34, 819200, s34
    s_cselect_b32 s60, 0, 20
    s_sub_u32 s60, s63, s60
    s_mul_i32 s60, s60, 40960
    s_lshr_b32 s61, s3, 5
    s_mul_i32 s61, s61, 160
    s_add_u32 s62, s60, s61
    s_cmp_lt_u32 s63, 74
    s_cselect_b32 s62, s62, 0x80000000
    s_lshl_b32 s60, s55, 5
    s_cmp_eq_u32 s50, 3
    s_cselect_b32 s32, s14, s32
    s_cselect_b32 s33, s15, s33
    s_cselect_b32 s34, 3456, s34
    s_cselect_b32 s62, s60, s62
    s_and_b32 s33, s33, 0xffff
    s_mov_b32 s35, 0x20000
    s_lshr_b32 s60, s3, 5
    s_mul_i32 s60, s60, 74
    s_add_u32 s60, s60, s63
    s_mul_i32 s60, s60, 5120
    s_add_u32 s64, s60, {WS_WF}
    s_cmp_lt_u32 s63, 74
    s_cselect_b32 s64, s64, 0x80000000
    s_add_u32 s65, s64, 4096
    s_mul_i32 s63, s50, 5120
    s_add_u32 s63, s63, {RL_BASE + 0}
    s_lshl_b32 s60, s53, 4
    s_add_u32 s60, s60, s52
    s_lshl_b32 s61, s50, 2
    s_add_u32 s49, s60, s61
    s_cmp_eq_u32 s70, 1
    s_cbranch_scc1 {name}_hA
    s_cmp_eq_u32 s51, 0
    s_cbranch_scc1 {name}_hC
    s_branch {name}_hB
    """)

    def dma_sub(halo):
        A(f"{name}_dma{int(halo)}:")
        A(f"""
        s_add_u32 s66, s66, 1
        s_add_u32 s46, s44, 1
        s_cmp_eq_u32 s46, 10
        s_cselect_b32 s46, {COMMON}, s46
        s_cmp_eq_u32 s66, {COMMON}
        s_cselect_b32 s46, s45, s46
        s_sub_u32 s47, s46, s44
        s_mov_b32 s44, s46
        s_mul_i32 s46, s47, s67
        s_lshl_b32 s47, s47, 7
        """)
        A("s_add_u32 s68, s23, s21")
        for i in range(4):
            A(f"""
            s_add_u32 s69, s20, {i*10240}
            s_add_u32 m0, s68, {i*1024}
            buffer_load_dwordx4 v{VDMA+1+(i&1)}, s[36:39], s69 offen lds
            """)
        if halo:
            A(f"""
            s_add_u32 m0, s48, s21
            buffer_load_dwordx4 v{VDMA+3}, s[36:39], s22 offen lds
            s_add_u32 s22, s22, s47
            """)
        A("s_add_u32 s68, s71, s21")
        A("s_mov_b64 exec, s[90:91]")
        for i in range(8):
            A(f"""
            s_add_u32 m0, s68, {i*960}
            buffer_load_dwordx4 v{VDMA}, s[24:27], s{72+i} offen lds
            s_add_u32 s{72+i}, s{72+i}, s46
            """)
        A("s_mov_b64 exec, -1")
        A(f"""
        s_add_u32 s20, s20, s47
        s_add_u32 s21, s21, {STAGE}
        s_cmp_eq_u32 s21, {3*STAGE}
        s_cselect_b32 s21, 0, s21
        s_setpc_b64 s[88:89]
        """)
    dma_sub(False)
    dma_sub(True)

    GX = HT + 8
    G = [HT + 36 + r for r in range(4)]
    T2 = HT + 40

    def early_aux():
        A(f"""
        s_cmp_eq_u32 s50, 3
        s_cbranch_scc1 {{0}}
        """.format(f"{name}_ea3_{early_aux.n}"))
        for i in range(5):
            A(f"""
            v_add_u32 v{HT+1}, {64*i}, v{VL}
            v_mul_u32_u24 v{HT+2}, 205, v{HT+1}
            v_lshrrev_b32 v{HT+2}, 11, v{HT+2}
            v_mul_u32_u24 v{HT+3}, 10, v{HT+2}
            v_sub_u32 v{HT+3}, v{HT+1}, v{HT+3}
            v_mul_u32_u24 v{HT+2}, 1280, v{HT+2}
            v_lshl_add_u32 v{HT+2}, v{HT+3}, 4, v{HT+2}
            s_add_u32 m0, s63, {i*1024}
            buffer_load_dwordx4 v{HT+2}, s[32:35], s62 offen lds
            """)
        A(f"""
        s_branch {name}_ea_end{early_aux.n}
        {name}_ea3_{early_aux.n}:
        s_mov_b32 m0, {BLDS}
        s_mov_b64 exec, 0xffffffff
        buffer_load_dwordx4 v{VLANE16}, s[32:35], s62 offen lds
        s_lshr_b32 s60, s3, 4
        s_lshl_b32 s60, s60, 8
        s_and_b32 s61, s3, 15
        s_lshl_b32 s61, s61, 2
        s_add_u32 s60, s60, s61
        s_add_u32 s60, s60, {WS_FLAG}
        v_mov_b32 v{HT+1}, 0
        s_mov_b64 exec, 1
        buffer_store_dword v{HT+1}, v{HT+1}, s[28:31], s60 offen sc1
        s_lshl_b32 s60, s3, 2
        s_add_u32 s60, s60, {WS_FLAG2}
        buffer_store_dword v{HT+1}, v{HT+1}, s[28:31], s60 offen sc1
        buffer_store_dword v{HT+1}, v{HT+1}, s[28:31], s64 offen
        buffer_store_dword v{HT+1}, v{HT+1}, s[28:31], s64 offen
        s_mov_b64 exec, -1
        {name}_ea_end{early_aux.n}:
        """)
        early_aux.n += 1
        return 5
    early_aux.n = 0

    def rl_store(tag):
        A(f"""
        v_lshrrev_b32 v{HT}, 2, v{VL}
        v_mul_u32_u24 v{HT}, 160, v{HT}
        v_and_b32 v{HT+1}, 3, v{VL}
        v_lshl_add_u32 v{HT}, v{HT+1}, 3, v{HT}
        v_add_u32 v{HT}, s63, v{HT}
        """)
        for j in range(5):
            b = HT + 64 + 4 * j
            A(f"ds_read_b64_tr_b16 v[{b}:{b+1}], v{HT} offset:{j*32}")
            A(f"ds_read_b64_tr_b16 v[{b+2}:{b+3}], v{HT} offset:{j*32 + 2560}")
        A("s_waitcnt lgkmcnt(0)")
        for j in range(5):
            b = HT + 64 + 4 * j
            if j < 4:
                A(f"buffer_store_dwordx4 v[{b}:{b+3}], v{VLANE16}, s[28:31], s64 offen offset:{j*1024}{ST}")
            else:
                A(f"buffer_store_dwordx4 v[{b}:{b+3}], v{VLANE16}, s[28:31], s65 offen{ST}")
        return 5

    def aux_loads(rl):
        A(f"""
        s_mul_i32 s61, s49, 1280
        s_add_u32 s60, s61, 2560
        v_lshlrev_b32 v{HT}, 2, v{VL}
        """)
        for r in range(4):
            so = "s61" if r < 2 else "s60"
            A(f"buffer_load_dwordx4 v[{GX+4*r}:{GX+4*r+3}], v{VLANE16}, s[36:39], {so} offen offset:{(r%2)*1280}")
            A(f"buffer_load_dword v{GX+20+r}, v{HT}, s[36:39], {so} offen offset:{(r%2)*1280 + 1024}")
        A(f"""
        buffer_load_dwordx4 v[{GX+16}:{GX+19}], v{VLANE16}, s[40:43], 0 offen
        buffer_load_dword v{GX+24}, v{HT}, s[40:43], 0 offen offset:1024
        """)
        return 10

    def aux_proc(rl):
        A("s_mov_b32 s68, 0xffff0000")
        for r in range(4):
            for i in range(5):
                x = GX + 4 * r + i if i < 4 else GX + 20 + r
                gw = GX + 16 + i if i < 4 else GX + 24
                t = T2 + 4 * i
                A(f"""
                v_lshlrev_b32 v{t}, 16, v{x}
                v_and_b32 v{t+1}, s68, v{x}
                v_lshlrev_b32 v{t+2}, 16, v{gw}
                v_and_b32 v{t+3}, s68, v{gw}
                v_pk_mul_f32 v[{t}:{t+1}], v[{t}:{t+1}], v[{t+2}:{t+3}]
                v_cvt_pk_bf16_f32 v{t}, v{t}, v{t+1}
                v_and_b32 v{t+1}, s68, v{t}
                v_lshlrev_b32 v{t}, 16, v{t}
                """)
            A(f"""
            v_pk_add_f32 v[{T2}:{T2+1}], v[{T2}:{T2+1}], v[{T2+4}:{T2+5}]
            v_pk_add_f32 v[{T2+8}:{T2+9}], v[{T2+8}:{T2+9}], v[{T2+12}:{T2+13}]
            v_pk_add_f32 v[{T2}:{T2+1}], v[{T2}:{T2+1}], v[{T2+16}:{T2+17}]
            v_pk_add_f32 v[{T2}:{T2+1}], v[{T2}:{T2+1}], v[{T2+8}:{T2+9}]
            v_add_f32 v{G[r]}, v{T2}, v{T2+1}
            """)
        for sh in (1, 2, 4, 8):
            for r in range(4):
                A(f"v_add_f32_dpp v{G[r]}, v{G[r]}, v{G[r]} row_ror:{sh} row_mask:0xf bank_mask:0xf")
        for swap in ("v_permlane16_swap_b32", "v_permlane32_swap_b32"):
            for r in range(4):
                A(f"v_mov_b32 v{T2+r}, v{G[r]}")
            for r in range(4):
                A(f"{swap} v{T2+r}, v{G[r]}")
            for r in range(4):
                A(f"v_add_f32 v{G[r]}, v{G[r]}, v{T2+r}")
        for op in ("v_cvt_pk_bf16_f32 v{0}, v{0}, v{0}", "v_lshlrev_b32 v{0}, 16, v{0}", "v_mul_f32 v{0}, 0xbfb8aa3b, v{0}",
                   "v_exp_f32 v{0}, v{0}", "v_add_f32 v{0}, 1.0, v{0}", "v_rcp_f32 v{0}, v{0}",
                   "v_cvt_pk_bf16_f32 v{0}, v{0}, v{0}", "v_lshlrev_b32 v{0}, 16, v{0}"):
            for r in range(4):
                A(op.format(G[r]))
        A(f"""
        s_lshl_b32 s60, s50, 4
        s_add_u32 s60, s60, {GLDS}
        v_mov_b32 v{HT}, s60
        s_mov_b64 exec, 1
        ds_write_b128 v{HT}, v[{G[0]}:{G[3]}]
        s_mov_b64 exec, -1
        s_waitcnt lgkmcnt(0)
        """)

    for var, halo, gate in (("hA", True, False), ("hC", False, False), ("hB", False, True)):
        nd = 13 if halo else 12
        q = VQ()
        A(f"{name}_{var}:")
        def D(k):
            A(f"s_call_b64 s[88:89], {name}_dma{int(halo)}")
            q.add(f"D{k}", nd)
        def B(k):
            A(f"s_waitcnt vmcnt({q.wait_for(f'D{k}')})")
            A("s_barrier")
        D(0); D(1); B(0)
        D(2); q.add("ea", early_aux()); B(1)
        D(3); B(2)
        D(4); B(3)
        if not halo:
            A(f"""
            s_cmp_eq_u32 s50, 3
            s_cbranch_scc0 {name}_nordy{var}
            s_mov_b32 s32, s98
            s_and_b32 s33, s99, 0xffff
            s_mov_b32 s34, 256
            s_mov_b32 s35, 0x20000
            v_mov_b32 v{HT+1}, 1
            v_mov_b32 v{HT+2}, 0
            s_mov_b64 exec, 1
            buffer_store_byte v{HT+1}, v{HT+2}, s[32:35], s3 offen sc1
            s_mov_b64 exec, -1
            {name}_nordy{var}:
            """)
        D(5); q.add("rs", rl_store(var)); B(4)
        D(6)
        if gate: q.add("aux", aux_loads(False))
        B(5)
        D(7); B(6)
        A(f"""
        s_cmp_eq_u32 s50, 1
        s_cbranch_scc0 {name}_nowf{var}
        v_mov_b32 v{HT+1}, 1
        v_mov_b32 v{HT+2}, 0
        s_lshl_b32 s60, s3, 2
        s_add_u32 s60, s60, {WS_FLAG2}
        s_mov_b64 exec, 1
        buffer_store_dword v{HT+1}, v{HT+2}, s[28:31], s60 offen sc1
        s_mov_b64 exec, -1
        {name}_nowf{var}:
        """)
        D(8)
        A(f"""
        s_cmp_eq_u32 s50, 0
        s_cbranch_scc0 {name}_nodbg{var}
        s_mov_b32 s32, s98
        s_and_b32 s33, s99, 0xffff
        s_mov_b32 s34, 256
        s_mov_b32 s35, 0x20000
        s_and_b32 s60, s2, 7
        s_lshr_b32 s61, s2, 3
        s_lshl_b32 s56, s60, 2
        s_lshr_b32 s62, s61, 3
        s_add_u32 s56, s56, s62                ; t2
        s_and_b32 s57, s61, 7                  ; u2
        s_lshr_b32 s58, s56, 1
        s_lshl_b32 s60, s58, 4
        s_lshl_b32 s61, s57, 5
        s_sub_u32 s61, s61, 16
        v_min_u32 v{HF+2}, 11, v{VL}
        v_lshlrev_b32 v{HF}, 2, v{HF+2}
        v_cmp_gt_u32 vcc, 4, v{HF+2}
        v_mov_b32 v{HF+3}, s61
        v_mov_b32 v{HF+4}, s60
        v_cndmask_b32 v{HF+3}, v{HF+3}, v{HF+4}, vcc
        v_add_u32 v{HF}, v{HF}, v{HF+3}
        buffer_load_dword v{HF+1}, v{HF}, s[32:35], 0 offen sc1
    
        {name}_nodbg{var}:
        """)
        A(f"s_waitcnt vmcnt({q.wait_for('D7')})")
        A("s_barrier")
        D(9)
        if gate: aux_proc(False)
        B(8)
        A(f"""
        s_cmp_eq_u32 s50, 0
        s_cbranch_scc1 {name}_htail
        s_waitcnt vmcnt(0)
        s_barrier
        s_endpgm
        """)
    def hw(tag, slot0, i0):
        A(f"""
        s_mov_b32 s73, 0
        s_mov_b32 s74, s72
        s_mov_b32 s75, {slot0*40960}
        {name}_hw{tag}:
        s_cmp_lt_u32 s73, 2
        s_cselect_b32 s76, 10, 9
        """)
        for un in range(2):
            A(f"""
            s_add_u32 s77, s59, {i0 + un}
            s_sub_u32 s78, s77, s76
            s_cmp_ge_u32 s77, s76
            s_cselect_b32 s77, s78, s77
            s_mul_i32 s77, s77, 5120
            s_add_u32 s69, s74, s77
            s_add_u32 m0, s75, {un*40960}
            """)
            for j in range(4):
                A(f"buffer_load_dwordx4 v{VLANE16}, s[28:31], s69 offen offset:{j*1024} lds")
            A(f"""
            s_add_u32 m0, s75, {un*40960 + 4096}
            s_add_u32 s69, s69, 4096
            buffer_load_dwordx4 v{VLANE16}, s[28:31], s69 offen lds
            """)
        A(f"""
        s_add_u32 s75, s75, 5120
        s_mul_i32 s77, s76, 5120
        s_add_u32 s74, s74, s77
        s_add_u32 s73, s73, 1
        s_cmp_lt_u32 s73, 8
        s_cbranch_scc1 {name}_hw{tag}
        """)
    A(f"""
    {name}_htail:
    s_setprio 0
    s_waitcnt vmcnt(0)
    s_barrier                              ; B9
    v_and_b32 v{HT+5}, 31, v{VL}
    v_lshlrev_b32 v{HT+5}, 2, v{HT+5}
    s_lshl_b32 s23, s57, 7
    s_add_u32 s23, s23, {WS_FLAG2}
    buffer_load_dword v{HT+6}, v{HT+5}, s[28:31], s23 offen sc1
    s_mul_i32 s72, s57, {74*5120}
    s_add_u32 s72, s72, {WS_WF}
    s_and_b32 s60, s57, 3
    s_lshl_b32 s60, s60, 1
    s_and_b32 s61, s56, 7
    s_add_u32 s60, s60, s61
    s_sub_u32 s61, s60, 9
    s_cmp_ge_u32 s60, 9
    s_cselect_b32 s59, s61, s60
    s_mul_i32 s59, s59, {ROT2}
    s_mov_b32 s26, 0x01010101
    s_barrier                              ; B10
    s_cmp_eq_u32 s51, 0
    s_cbranch_scc0 {name}_hnoattn
    s_barrier
    {name}_hnoattn:
    s_mov_b32 s27, 0
    {name}_hwf:
    s_waitcnt vmcnt(0)
    v_and_b32 v{HF+1}, s26, v{HF+1}
    v_cmp_ne_u32 vcc, s26, v{HF+1}
    s_cbranch_vccnz {name}_hretry
    v_cmp_ne_u32 vcc, 1, v{HT+6}
    s_cbranch_vccz {name}_hwfok
    {name}_hretry:
    s_add_u32 s27, s27, 1
    s_cmp_gt_u32 s27, 0x8000
    s_cbranch_scc1 {name}_hwfok
    s_sleep 8
    buffer_load_dword v{HF+1}, v{HF}, s[32:35], 0 offen sc1
    s_waitcnt vmcnt(0)
    buffer_load_dword v{HT+6}, v{HT+5}, s[28:31], s23 offen sc1
    s_branch {name}_hwf
    {name}_hwfok:
    """)
    hw("a", 2, 0)
    A(f"""
    v_mov_b32 v{HT+3}, 1
    v_mov_b32 v{HT+2}, 0
    s_lshr_b32 s60, s3, 4
    s_lshl_b32 s60, s60, 8
    s_and_b32 s61, s3, 15
    s_lshl_b32 s61, s61, 2
    s_add_u32 s60, s60, s61
    s_add_u32 s60, s60, {WS_FLAG}
    s_waitcnt vmcnt(0)
    s_setprio 3
    s_barrier
    s_mov_b64 exec, 1
    buffer_store_dword v{HT+3}, v{HT+2}, s[28:31], s60 offen sc1
    s_endpgm
    """)

    A(f"""
    {name}_compute:
    s_lshl_b32 s60, s58, 2
    s_cmp_eq_u32 s58, 3
    s_cselect_b32 s61, 10, s60
    s_cmp_eq_u32 s56, 1
    s_cselect_b32 s60, s61, s60
    s_and_b32 s61, s58, 1
    s_lshl_b32 s61, s61, 3
    s_lshr_b32 s62, s58, 1
    s_lshl_b32 s62, s62, 2
    s_add_u32 s61, s61, s62
    s_cmp_eq_u32 s51, 0
    s_cselect_b32 s59, s61, s60
    """)
    A(f"""
    v_and_b32 v{VT}, 15, v{VL}                 ; mi
    v_lshrrev_b32 v{VT+1}, 4, v{VL}            ; g
    v_lshrrev_b32 v{VT+2}, 1, v{VT}            ; mi>>1
    v_xor_b32 v{VT+3}, v{VT+1}, v{VT+2}
    v_lshlrev_b32 v{VT+3}, 4, v{VT+3}
    v_lshl_add_u32 v{VXH}, v{VT}, 7, v{VT+3}
    v_xor_b32 v{VXH+1}, 64, v{VXH}
    s_lshl_b32 s60, s57, 13
    s_add_u32 s60, s60, 2048
    v_add_u32 v{VXA}, s60, v{VXH}
    v_add_u32 v{VXA+1}, s60, v{VXH+1}
    v_lshrrev_b32 v{VT+2}, 1, v{VT+1}          ; g1
    v_and_b32 v{VT+3}, 1, v{VT+1}              ; g0
    v_lshrrev_b32 v{VT+4}, 3, v{VT}            ; rr>>1
    v_lshl_add_u32 v{VT+4}, v{VT+3}, 1, v{VT+4}
    v_lshl_add_u32 v{VT+4}, v{VT+2}, 3, v{VT+4}    ; slot>>1
    v_mul_u32_u24 v{VT+4}, 960, v{VT+4}
    v_and_b32 v{VT+5}, 3, v{VT}
    v_lshl_add_u32 v{VT+4}, v{VT+5}, 3, v{VT+4}
    v_add_u32 v{VT+4}, {XREG}, v{VT+4}
    v_bfe_u32 v{VT+5}, v{VT}, 2, 1
    v_cmp_eq_u32 vcc, 1, v{VT+5}
    s_cmp_eq_u32 s51, 0
    s_cselect_b32 s62, 12, 14
    s_and_b32 s63, s53, 1
    s_cmp_eq_u32 s51, 0
    s_cselect_b32 s63, s63, 0
    """)
    for j in range(4):
        A(f"""
        s_add_u32 s69, s59, {j}
        s_mul_i32 s60, s69, 13
        s_lshr_b32 s60, s60, 6
        s_mul_i32 s61, s60, 5
        s_sub_u32 s61, s69, s61                ; e
        s_sub_u32 s61, s61, s63
        s_lshl_b32 s78, s60, 2
        s_add_u32 s78, s78, s61
        s_cmp_eq_u32 s51, 0
        s_cselect_b32 s78, s78, s69
        s_cselect_b32 s79, s61, 0
        s_xor_b32 s77, s78, 1
        s_add_u32 s77, s77, s62
        s_add_u32 s76, s60, 24
        s_add_u32 s69, s60, 27
        s_cmp_gt_u32 s79, 3
        s_cselect_b32 s78, s76, s78
        s_cselect_b32 s77, s69, s77
        s_lshl_b32 s78, s78, 5
        s_lshl_b32 s77, s77, 5
        v_mov_b32 v{VT+6}, s78
        v_mov_b32 v{VT+7}, s77
        v_cndmask_b32 v{VT+6}, v{VT+6}, v{VT+7}, vcc
        v_add_u32 v{VW+j}, v{VT+6}, v{VT+4}
        """)
    for i in range(72):
        A(f"v_mov_b32 v{ACC+i}, 0")
    A(f"""
    s_waitcnt lgkmcnt(0)
    s_mov_b32 s28, s10
    s_and_b32 s29, s11, 0xffff
    s_mov_b32 s30, {WS_SIZE}
    s_mov_b32 s31, 0x20000
    s_mov_b32 s44, s14
    s_and_b32 s45, s15, 0xffff
    s_mov_b32 s46, 3456
    s_mov_b32 s47, 0x20000
    """)
    A(f"""
    s_mov_b32 s32, s98
    s_and_b32 s33, s99, 0xffff
    s_mov_b32 s34, 256
    s_mov_b32 s35, 0x20000
    s_mov_b32 s36, s96
    s_and_b32 s37, s97, 0xffff
    s_mov_b32 s38, {OUT_BYTES}
    s_mov_b32 s39, 0x20000
    s_and_b32 s60, s2, 7
    s_lshr_b32 s61, s2, 3
    s_lshl_b32 s20, s60, 2
    s_lshr_b32 s62, s61, 3
    s_add_u32 s20, s20, s62                ; t2
    s_and_b32 s21, s61, 7                  ; u2
    s_mul_i32 s60, s50, 9
    s_add_u32 s60, s60, 2
    s_mul_i32 s61, s50, 10
    s_cmp_lt_u32 s50, 2
    s_cselect_b32 s60, s61, s60            ; kb0
    s_mul_i32 s22, s20, 74
    s_add_u32 s22, s22, s60
    s_lshl_b32 s22, s22, 12
    s_mul_i32 s23, s21, 74
    s_add_u32 s23, s23, s60
    s_mul_i32 s23, s23, 5120
    s_add_u32 s23, s23, {WS_WF}
    s_and_b32 s60, s21, 3
    s_lshl_b32 s60, s60, 1
    s_and_b32 s61, s20, 7
    s_add_u32 s60, s60, s61
    s_sub_u32 s61, s60, 9
    s_cmp_ge_u32 s60, 9
    s_cselect_b32 s26, s61, s60
    s_mul_i32 s26, s26, {ROT2}
    s_cmp_lt_u32 s50, 2
    s_cselect_b32 s48, 10, 9
    s_add_u32 s27, s26, 2
    s_sub_u32 s60, s27, s48
    s_cmp_ge_u32 s27, s48
    s_cselect_b32 s27, s60, s27
    s_lshl_b32 s60, s26, 12
    s_add_u32 s22, s22, s60
    s_mul_i32 s60, s27, 5120
    s_add_u32 s23, s23, s60
    s_mul_i32 s24, s50, 5120
    s_cmp_eq_u32 s50, 0
    s_cselect_b32 s25, 7, 99
    s_lshr_b32 s60, s3, 5
    s_and_b32 s61, s3, 31
    s_lshl_b32 s62, s50, 5
    s_add_u32 s61, s61, s62
    s_mul_i32 s60, s60, 74
    s_add_u32 s60, s60, s61
    s_mul_i32 s60, s60, 5120
    s_add_u32 s40, s60, {WS_WF}
    s_cmp_lt_u32 s61, 74
    s_cselect_b32 s40, s40, 0x80000000
    s_add_u32 s41, s40, 4096
    s_mul_i32 s42, s50, 5120
    s_add_u32 s42, s42, {RL_BASE}
    s_lshl_b32 s60, s53, 4
    s_add_u32 s60, s60, s52
    s_lshl_b32 s60, s60, 2
    s_add_u32 s43, s60, {WS_G}
    s_cmp_eq_u32 s51, 1
    s_cselect_b32 s43, s43, 0x80000000
    """)
    if prefetch:
        A(f"""
        s_and_b32 s60, s2, 7
        s_lshr_b32 s61, s2, 3                  ; idx
        s_lshr_b32 s62, s60, 1                 ; cq
        s_and_b32 s60, s60, 1                  ; M half
        v_cmp_le_u32 vcc, 9, v{VL}
        v_subrev_u32 v{VT+1}, 9, v{VL}
        v_cndmask_b32 v{VT+1}, v{VL}, v{VT+1}, vcc
        s_cmp_lt_u32 s50, 4
        s_cbranch_scc0 {name}_pfW
        s_lshl_b32 s63, s61, 2
        s_add_u32 s63, s63, s50
        s_mul_i32 s63, s63, 9
        s_lshl_b32 s60, s60, 10
        s_add_u32 s63, s63, s60
        s_sub_u32 s63, s63, 16
        v_add_u32 v{VT+2}, s63, v{VT+1}
        v_max_i32 v{VT+2}, 0, v{VT+2}
        v_mul_u32_u24 v{VT+2}, 1280, v{VT+2}
        s_mov_b32 s68, s4
        s_and_b32 s69, s5, 0xffff
        s_mov_b32 s70, 2621440
        s_mov_b32 s72, 128
        s_branch {name}_pfgo
        {name}_pfW:
        s_lshl_b32 s63, s61, 1
        s_and_b32 s60, s50, 1
        s_add_u32 s63, s63, s60
        s_cmp_lt_u32 s50, 6
        s_cbranch_scc0 {name}_pfW1
        v_mul_u32_u24 v{VT+2}, 11, v{VT+1}
        v_lshrrev_b32 v{VT+2}, 5, v{VT+2}      ; grp = l9/3
        v_mul_u32_u24 v{VT+3}, 896, v{VT+2}    ; grp*(1280-384)
        v_lshl_add_u32 v{VT+2}, v{VT+1}, 7, v{VT+3}
        s_mul_i32 s60, s62, 320
        s_and_b32 s60, s60, 0xffffff80
        s_mul_i32 s63, s63, 3840
        s_add_u32 s60, s60, s63
        v_add_u32 v{VT+2}, s60, v{VT+2}
        s_mov_b32 s68, s6
        s_and_b32 s69, s7, 0xffff
        s_mov_b32 s70, 2457600
        s_mov_b32 s72, {64*3840}
        s_branch {name}_pfgo
        {name}_pfW1:
        s_mul_i32 s60, s62, 28
        s_lshr_b32 s72, s62, 1
        s_lshl_b32 s72, s72, 1
        s_sub_u32 s60, s60, s72
        s_lshl_b32 s60, s60, 5
        s_and_b32 s60, s60, 0xffffff80
        s_mul_i32 s63, s63, 3456
        s_add_u32 s60, s60, s63
        v_min_u32 v{VT+1}, 7, v{VT+1}
        v_lshlrev_b32 v{VT+2}, 7, v{VT+1}
        v_add_u32 v{VT+2}, s60, v{VT+2}
        s_mov_b32 s68, s12
        s_and_b32 s69, s13, 0xffff
        s_mov_b32 s70, 2211840
        s_mov_b32 s72, {64*3456}
        {name}_pfgo:
        s_mov_b32 s71, 0x20000
        v_mov_b32 v{VT+3}, 0x80000000
        v_add_u32 v{VT+4}, s72, v{VT+2}
        v_cndmask_b32 v{VT+4}, v{VT+2}, v{VT+4}, vcc
        v_cndmask_b32 v{VPF+1}, v{VT+2}, v{VT+3}, vcc
        v_cmp_le_u32 vcc, 18, v{VL}
        v_cndmask_b32 v{VT+4}, v{VT+4}, v{VT+3}, vcc
        s_mul_i32 s73, s72, {PF0}
        buffer_load_dword v{VPF}, v{VT+4}, s[68:71], s73 offen
        s_mul_i32 s73, s72, {PF0 + 2}
        s_mov_b32 s74, {PF0 + 2}
        """)
    A(f"""
    s_mov_b32 s76, 0
    s_mov_b32 s77, 0
    s_mov_b32 s49, {STAGE}
    """)
    classes = {"c4": (4, ()), "c4a": (4, (0, 1)), "c4b": (4, (2, 3)), "c4c": (4, (1,)),
               "c3a": (3, (0, 1)), "c3b": (3, (2,)), "c3": (2, ())}
    amap = {0: "c4", 1: "c4", 2: "c4a", 3: "c4b", 4: "c4b", 5: "c4c", 6: "c3a", 7: "c3b"}
    A(f"""
    s_cmp_eq_u32 s51, 0
    s_cbranch_scc1 {name}_dispA
    s_add_u32 s60, s58, s56
    s_cmp_lt_u32 s60, 3
    s_cbranch_scc1 {name}_c4
    s_branch {name}_c3
    {name}_dispA:
    """)
    for w in range(2, 8):
        A(f"s_cmp_eq_u32 s50, {w}\ns_cbranch_scc1 {name}_{amap[w]}")
    A(f"s_branch {name}_c4")

    def reads(fs, kk, nc, halo):
        out = []
        for j in range(nc):
            b = wfrag(fs, j)
            out.append(f"ds_read_b64_tr_b16 v[{b}:{b+1}], v{VW+j} offset:{kk*15360}")
            out.append(f"ds_read_b64_tr_b16 v[{b+2}:{b+3}], v{VW+j} offset:{kk*15360 + 3840}")
            if j == 0:
                for i in range(4):
                    out.append(f"ds_read_b128 {R(xfrag(fs, i))}, v{VXA+kk} offset:{i*2048}")
        if halo:
            out.append(f"ds_read_b128 {R(xfrag(fs, 4))}, v{VXH+kk}")
        return out

    def mfmas(fs, nc, halo):
        out = []
        for j in range(nc):
            for i in range(4):
                a = ACC + (i * 4 + j) * 4
                out.append(f"v_mfma_f32_16x16x32_bf16 {R(a)}, {R(wfrag(fs, j))}, {R(xfrag(fs, i))}, {R(a)}")
        for hi, j in enumerate(halo):
            a = ACC + (16 + hi) * 4
            out.append(f"v_mfma_f32_16x16x32_bf16 {R(a)}, {R(wfrag(fs, j))}, {R(xfrag(fs, 4))}, {R(a)}")
        return out

    def wdma(slot):
        return [f"s_add_u32 m0, s24, {slot*40960}"] + \
               [f"buffer_load_dwordx4 v{VLANE16}, s[28:31], s23 offen offset:{j*1024}{LD} lds" for j in range(4)] + \
               [f"s_add_u32 m0, s24, {slot*40960 + 4096}", "s_add_u32 s60, s23, 4096",
                f"buffer_load_dwordx4 v{VLANE16}, s[28:31], s60 offen{LD} lds",
                "s_add_u32 s23, s23, 5120", "s_add_u32 s27, s27, 1", "s_cmp_eq_u32 s27, s48",
                "s_cselect_b32 s60, s63, 0", "s_cselect_b32 s27, 0, s27", "s_sub_u32 s23, s23, s60"]

    A(f"""
    {name}_auxg:
    v_lshrrev_b32 v{F1}, 4, v{VL}
    v_lshlrev_b32 v{F1}, 3, v{F1}
    s_lshl_b32 s60, s59, 5
    s_add_u32 s60, s60, {BLDS}
    v_add_u32 v{F1}, s60, v{F1}
    ds_read_b64 v[{VBRAW}:{VBRAW+1}], v{F1}
    ds_read_b64 v[{VBRAW+2}:{VBRAW+3}], v{F1} offset:32
    ds_read_b64 v[{VBRAW+4}:{VBRAW+5}], v{F1} offset:64
    ds_read_b64 v[{VBRAW+6}:{VBRAW+7}], v{F1} offset:96
    s_cmp_eq_u32 s50, 3
    s_cbranch_scc0 {name}_auxret
    v_lshlrev_b32 v{F1}, 2, v{VL}
    v_add_u32 v{F1+1}, {GLDS}, v{F1}
    s_mov_b64 exec, 0xffff
    ds_read_b32 v{F1+2}, v{F1+1}
    s_waitcnt lgkmcnt(0)
    buffer_store_dword v{F1+2}, v{F1}, s[28:31], s43 offen{ST}
    s_mov_b64 exec, -1
    {name}_auxret:
    s_setpc_b64 s[88:89]
    """)
    for cname, (nc, halo) in classes.items():
        A(f"{name}_{cname}:")
        A("s_barrier")
        if stamp:
            A("s_memrealtime s[82:83]")
        for l in reads(F0, 0, nc, halo): A(l)
        lab = f"{name}_{cname}_loop"
        A(f"{lab}:")
        A("s_waitcnt lgkmcnt(0)")
        interleave(A, mfmas(F0, nc, halo), [[l] for l in reads(F1, 1, nc, halo)])
        A(f"""
        s_cmp_eq_u32 s77, {2*STAGE}
        s_cselect_b32 s78, {(-2*STAGE) & 0xffffffff}, s49
        s_add_u32 s77, s77, s78
        s_waitcnt lgkmcnt(0)
        s_barrier
        """)
        fill = [[f"v_add_u32 v{VW}, s78, v{VW}", f"v_add_u32 v{VXA}, s78, v{VXA}"]]
        f2 = [f"v_add_u32 v{VXA+1}, s78, v{VXA+1}"]
        if halo:
            f2.append(f"v_add_u32 v{VXH+1}, s78, v{VXH+1}")
        seq = []
        for l in reads(F0, 0, nc, halo):
            for j in range(1, nc):
                if f"v{VW+j} offset:0" in l and l.endswith("offset:0"):
                    seq.append(f"v_add_u32 v{VW+j}, s78, v{VW+j}")
            if halo and l.endswith(f"v{VXH}"):
                seq.append(f"v_add_u32 v{VXH}, s78, v{VXH}")
            seq.append(l)
        for k in range(0, len(seq), 2):
            fill.append(seq[k:k + 2])
        fill.append(f2)
        if prefetch:
            fill.append([f"buffer_load_dword v{VPF}, v{VPF+1}, s[68:71], s73 offen",
                         "s_add_u32 s73, s73, s72", "s_add_u32 s74, s74, 1", "s_cmp_lt_u32 s74, 10",
                         "s_cselect_b32 s73, s73, 0x80000000"])
        interleave(A, mfmas(F1, nc, halo), fill)
        A(f"""
        s_add_u32 s76, s76, 1
        s_cmp_eq_u32 s76, 9
        s_cbranch_scc0 {lab}_ng
        s_nop 7
        s_call_b64 s[88:89], {name}_auxg
        {lab}_ng:
        """)
        A(f"""
        s_cmp_lt_u32 s76, 10
        s_cbranch_scc1 {lab}
        """)
        A("s_waitcnt lgkmcnt(0)")
        A("s_setprio 2")
        if halo or cname == "c4":
            if cname == "c4":
                A(f"s_cmp_eq_u32 s51, 1\ns_cbranch_scc1 {name}_epiB4")
            A(f"""
            v_and_b32 v{VTA}, 15, v{VL}
            v_lshrrev_b32 v{VTA+1}, 4, v{VL}
            v_mul_u32_u24 v{VTA}, {RSQ}, v{VTA}
            v_lshl_add_u32 v{VTA}, v{VTA+1}, 3, v{VTA}
            s_lshl_b32 s60, s59, 5
            v_add_u32 v{VTA}, s60, v{VTA}
            s_lshl_b32 s60, s57, 2
            s_add_u32 s60, s60, 1
            s_mul_i32 s60, s60, {16*RSQ}
            v_add_u32 v{VTA+1}, s60, v{VTA}
            """)
            k = 0
            for j in range(nc):
                for i in range(4):
                    a = ACC + (i * 4 + j) * 4
                    t = F0 + 2 * k; k += 1
                    A(f"v_cvt_pk_bf16_f32 v{t}, v{a}, v{a+1}")
                    A(f"v_cvt_pk_bf16_f32 v{t+1}, v{a+2}, v{a+3}")
                    A(f"ds_write_b64 v{VTA+1}, v[{t}:{t+1}] offset:{i*16*RSQ + j*32}")
            for hi, j in enumerate(halo):
                a = ACC + (16 + hi) * 4
                t = F0 + 2 * k; k += 1
                A(f"v_cvt_pk_bf16_f32 v{t}, v{a}, v{a+1}")
                A(f"v_cvt_pk_bf16_f32 v{t+1}, v{a+2}, v{a+3}")
                A(f"ds_write_b64 v{VTA}, v[{t}:{t+1}] offset:{j*32}")
            A(f"s_branch {name}_attn")
        else:
            A(f"s_branch {name}_epiB3")

    A(f"{name}_attn:")
    mi, g = VTA, VTA + 1
    vQ, vK0, vK1, vV = VTA + 2, VTA + 3, VTA + 4, VTA + 5
    vmlo, vmhi, vsh = VTA + 6, VTA + 7, VTA + 8
    A(f"""
    v_and_b32 v{mi}, 15, v{VL}
    v_lshrrev_b32 v{g}, 4, v{VL}
    s_mul_i32 s60, s50, {16*RSQ}
    v_mul_u32_u24 v{vK0}, {RSQ}, v{mi}
    v_lshl_add_u32 v{vK0}, v{g}, 4, v{vK0}
    v_add_u32 v{vK0}, s60, v{vK0}
    v_add_u32 v{vQ}, {16*RSQ}, v{vK0}
    v_add_u32 v{vK0}, 160, v{vK0}
    v_add_u32 v{vK1}, 160, v{vQ}
    v_lshrrev_b32 v{VTA+9}, 2, v{mi}
    v_lshl_add_u32 v{VTA+9}, v{g}, 2, v{VTA+9}
    v_mul_u32_u24 v{vV}, {RSQ}, v{VTA+9}
    v_and_b32 v{VTA+9}, 3, v{mi}
    v_lshl_add_u32 v{vV}, v{VTA+9}, 3, v{vV}
    v_add_u32 v{vV}, s60, v{vV}
    v_add_u32 v{vV}, 320, v{vV}
    v_cmp_gt_u32 vcc, 3, v{g}
    v_cndmask_b32 v{vmlo}, 0, -1, vcc
    v_cmp_gt_u32 vcc, 2, v{g}
    v_cndmask_b32 v{vmhi}, 0, -1, vcc
    v_and_b32 v{VTA+9}, 1, v{mi}
    v_lshlrev_b32 v{vsh}, 4, v{VTA+9}
    v_cmp_eq_u32 s[60:61], 1, v{VTA+9}            ; Mpar
    v_lshrrev_b32 v{VTA+9}, 1, v{mi}              ; qe
    v_lshlrev_b32 v{VTA+10}, 1, v{g}
    v_cmp_le_u32 s[62:63], v{VTA+10}, v{VTA+9}
    v_add_u32 v{VTA+10}, 1, v{VTA+10}
    v_cmp_le_u32 s[64:65], v{VTA+10}, v{VTA+9}
    v_cmp_le_u32 s[70:71], 1, v{g}               ; Mg1
    v_cmp_le_u32 s[72:73], 2, v{g}               ; Mg2
    v_cmp_le_u32 s[74:75], 3, v{g}               ; Mg3
    s_add_u32 s76, s52, s50
    s_not_b64 s[66:67], s[62:63]
    s_not_b64 s[68:69], s[64:65]
    s_cmp_eq_u32 s76, 0
    s_cselect_b64 s[66:67], s[66:67], 0          ; Minv0
    s_cselect_b64 s[68:69], s[68:69], 0          ; Minv1
    s_waitcnt lgkmcnt(0)
    s_barrier
    """)
    Q = lambda h: 0 + 4 * h
    K0 = lambda h: 16 + 4 * h
    K1 = lambda h: 32 + 4 * h
    V = lambda b: 48 + 4 * b
    S0 = lambda h: 68 + 4 * h
    S1 = lambda h: 84 + 4 * h
    L = lambda h, t: 100 + 2 * h + t
    M = lambda h: 108 + h
    T = lambda h: 112 + h
    P = lambda h: 116 + 4 * h
    O = lambda n: 0 + 4 * n
    PK = 132
    for h in range(4):
        A(f"ds_read2_b64 {R(Q(h))}, v{vQ} offset0:{h*5} offset1:{h*5+1}")
        A(f"ds_read2_b64 {R(K0(h))}, v{vK0} offset0:{h*5} offset1:{h*5+1}")
        A(f"ds_read2_b64 {R(K1(h))}, v{vK1} offset0:{h*5} offset1:{h*5+1}")
    for h in range(4):
        A(f"s_waitcnt lgkmcnt({9 - 3*h})")
        q = Q(h)
        A(f"""
        v_and_b32 v{q}, v{q}, v{vmlo}
        v_and_b32 v{q+1}, v{q+1}, v{vmlo}
        v_and_b32 v{q+2}, v{q+2}, v{vmhi}
        v_and_b32 v{q+3}, v{q+3}, v{vmhi}
        v_mfma_f32_16x16x32_bf16 {R(S0(h))}, {R(K0(h))}, {R(q)}, 0
        v_mfma_f32_16x16x32_bf16 {R(S1(h))}, {R(K1(h))}, {R(q)}, 0
        """)
    for b in range(5):
        A(f"ds_read_b64_tr_b16 v[{V(b)}:{V(b)+1}], v{vV} offset:{b*32}")
        A(f"ds_read_b64_tr_b16 v[{V(b)+2}:{V(b)+3}], v{vV} offset:{b*32 + 16*RSQ}")
    A(f"s_mov_b32 s77, 0xffff0000")
    A(f"s_mov_b32 s78, {SCALE}")
    A(f"s_mov_b32 s79, 0xce6e6b28")
    A(f"v_mov_b32 v{VTA+11}, s79")
    Mc = ["s[62:63]", "s[64:65]"]; Minv = ["s[66:67]", "s[68:69]"]
    for h in range(4):
        for t in range(2):
            A(f"v_cndmask_b32 v{S0(h)+2*t}, v{S0(h)+2*t}, v{S0(h)+2*t+1}, s[60:61]")
            A(f"v_cndmask_b32 v{S1(h)+2*t}, v{S1(h)+2*t}, v{S1(h)+2*t+1}, s[60:61]")
    for h in range(4):
        for t in range(2):
            A(f"v_cndmask_b32 v{L(h,t)}, v{S0(h)+2*t}, v{S1(h)+2*t}, {Mc[t]}")
    for h in range(4):
        l0, l1, t_ = L(h, 0), L(h, 1), T(h)
        A(f"""
        v_cvt_pk_bf16_f32 v{t_}, v{l0}, v{l1}
        v_lshlrev_b32 v{l0}, 16, v{t_}
        v_and_b32 v{l1}, s77, v{t_}
        v_mul_f32 v{l0}, s78, v{l0}
        v_mul_f32 v{l1}, s78, v{l1}
        v_cvt_pk_bf16_f32 v{t_}, v{l0}, v{l1}
        v_lshlrev_b32 v{l0}, 16, v{t_}
        v_and_b32 v{l1}, s77, v{t_}
        v_cndmask_b32 v{l0}, v{l0}, v{VTA+11}, {Minv[0]}
        v_cndmask_b32 v{l1}, v{l1}, v{VTA+11}, {Minv[1]}
        v_max_f32 v{M(h)}, v{l0}, v{l1}
        """)
    for swap in ("v_permlane16_swap_b32", "v_permlane32_swap_b32"):
        for h in range(4):
            A(f"v_mov_b32 v{T(h)}, v{M(h)}")
        for h in range(4):
            A(f"{swap} v{T(h)}, v{M(h)}")
        for h in range(4):
            A(f"v_max_f32 v{M(h)}, v{M(h)}, v{T(h)}")
    A(f"s_mov_b32 s79, {LOG2E}")
    for h in range(4):
        for t in range(2):
            A(f"v_sub_f32 v{L(h,t)}, v{L(h,t)}, v{M(h)}")
    for h in range(4):
        for t in range(2):
            A(f"v_mul_f32 v{L(h,t)}, s79, v{L(h,t)}")
    for h in range(4):
        for t in range(2):
            A(f"v_exp_f32 v{L(h,t)}, v{L(h,t)}")
    for h in range(4):
        A(f"v_add_f32 v{M(h)}, v{L(h,0)}, v{L(h,1)}")
    for swap in ("v_permlane16_swap_b32", "v_permlane32_swap_b32"):
        for h in range(4):
            A(f"v_mov_b32 v{T(h)}, v{M(h)}")
        for h in range(4):
            A(f"{swap} v{T(h)}, v{M(h)}")
        for h in range(4):
            A(f"v_add_f32 v{M(h)}, v{M(h)}, v{T(h)}")
    for h in range(4):
        A(f"v_rcp_f32 v{M(h)}, v{M(h)}")
    for h in range(4):
        for t in range(2):
            A(f"v_mul_f32 v{L(h,t)}, v{L(h,t)}, v{M(h)}")
    for h in range(4):
        for t in range(2):
            A(f"v_cvt_pk_bf16_f32 v{L(h,t)}, v{L(h,t)}, 0")
    for h in range(4):
        for t in range(2):
            A(f"v_lshlrev_b32 v{L(h,t)}, v{vsh}, v{L(h,t)}")
    for h in range(4):
        for t in range(2):
            A(f"v_cndmask_b32 v{P(h)+t}, v{L(h,t)}, 0, {Mc[t]}")
            A(f"v_cndmask_b32 v{P(h)+2+t}, 0, v{L(h,t)}, {Mc[t]}")
    A("s_waitcnt lgkmcnt(0)")
    for h in range(4):
        for e in range(2):
            A(f"v_mfma_f32_16x16x32_bf16 {R(O(2*h+e))}, {R(V(h+e))}, {R(P(h))}, 0")
    Mg = {1: "s[70:71]", 2: "s[72:73]", 3: "s[74:75]"}
    A(f"""
    s_lshr_b32 s60, s50, 2
    s_lshl_b32 s61, s54, 1
    s_add_u32 s60, s60, s61              ; t
    s_mul_i32 s60, s60, 74
    s_mul_i32 s61, s53, 5
    s_lshr_b32 s61, s61, 1
    s_add_u32 s60, s60, s61              ; t*74 + kb0
    s_lshl_b32 s60, s60, 2
    s_and_b32 s61, s50, 3
    s_add_u32 s60, s60, s61
    s_lshl_b32 s60, s60, 10
    s_add_u32 s61, s60, 4096
    s_add_u32 s62, s60, 8192
    """)
    A(f"v_cvt_pk_bf16_f32 v{PK}, v{O(0)}, v{O(0)+1}")
    A(f"v_cvt_pk_bf16_f32 v{PK+1}, v{O(0)+2}, v{O(0)+3}")
    for b in (1, 2, 3):
        lo, hi = O(2 * (b - 1) + 1), O(2 * b)
        for r in range(4):
            A(f"v_cndmask_b32 v{lo+r}, v{lo+r}, v{hi+r}, {Mg[b]}")
        A(f"v_cvt_pk_bf16_f32 v{PK+2*b}, v{lo}, v{lo+1}")
        A(f"v_cvt_pk_bf16_f32 v{PK+2*b+1}, v{lo+2}, v{lo+3}")
    A(f"v_cvt_pk_bf16_f32 v{PK+8}, v{O(7)}, v{O(7)+1}")
    A(f"v_cvt_pk_bf16_f32 v{PK+9}, v{O(7)+2}, v{O(7)+3}")
    A(f"""
    v_lshlrev_b32 v{VTA}, 3, v{VL}
    s_and_b32 s63, s53, 1
    s_cmp_eq_u32 s63, 1
    s_cbranch_scc1 {name}_ostodd
    buffer_store_dwordx4 v[{PK}:{PK+3}], v{VLANE16}, s[28:31], s60 offen{ST}
    buffer_store_dwordx4 v[{PK+4}:{PK+7}], v{VLANE16}, s[28:31], s61 offen{ST}
    buffer_store_dwordx2 v[{PK+8}:{PK+9}], v{VTA}, s[28:31], s62 offen{ST}
    s_branch {name}_done
    {name}_ostodd:
    buffer_store_dwordx2 v[{PK}:{PK+1}], v{VTA}, s[28:31], s60 offen offset:512{ST}
    buffer_store_dwordx4 v[{PK+2}:{PK+5}], v{VLANE16}, s[28:31], s61 offen{ST}
    buffer_store_dwordx4 v[{PK+6}:{PK+9}], v{VLANE16}, s[28:31], s62 offen{ST}
    s_branch {name}_done
    """)

    def mish_blocks(blks):
        def each(f):
            for (a, bias, dst, t, h) in blks:
                A(f(a, bias, dst, t, h))
        A("s_set_gpr_idx_on s63, gpr_idx(SRC0)")
        each(lambda a, b, d, t, h: f"v_pk_add_f32 v[{h}:{h+1}], v[{a}:{a+1}], v[{b}:{b+1}]\n"
                                   f"v_pk_add_f32 v[{h+2}:{h+3}], v[{a+2}:{a+3}], v[{b+2}:{b+3}]")
        A("s_set_gpr_idx_off")
        each(lambda a, b, d, t, h: f"v_pk_mul_f32 v[{t}:{t+1}], v[{h}:{h+1}], s[78:79]\n"
                                   f"v_pk_mul_f32 v[{t+2}:{t+3}], v[{h+2}:{h+3}], s[78:79]")
        each(lambda a, b, d, t, h: "\n".join(f"v_exp_f32 v{t+r}, v{t+r}" for r in range(4)))
        each(lambda a, b, d, t, h: f"v_pk_add_f32 v[{t}:{t+1}], v[{t}:{t+1}], s[66:67]\n"
                                   f"v_pk_add_f32 v[{t+2}:{t+3}], v[{t+2}:{t+3}], s[66:67]")
        each(lambda a, b, d, t, h: f"v_pk_fma_f32 v[{t}:{t+1}], v[{t}:{t+1}], v[{t}:{t+1}], s[66:67]\n"
                                   f"v_pk_fma_f32 v[{t+2}:{t+3}], v[{t+2}:{t+3}], v[{t+2}:{t+3}], s[66:67]")
        each(lambda a, b, d, t, h: "\n".join(f"v_rcp_f32 v{t+r}, v{t+r}" for r in range(4)))
        each(lambda a, b, d, t, h: f"v_pk_fma_f32 v[{t}:{t+1}], v[{t}:{t+1}], v[{VC2}:{VC2+1}], s[66:67]\n"
                                   f"v_pk_fma_f32 v[{t+2}:{t+3}], v[{t+2}:{t+3}], v[{VC2}:{VC2+1}], s[66:67]")
        each(lambda a, b, d, t, h: f"v_pk_mul_f32 v[{t}:{t+1}], v[{t}:{t+1}], v[{h}:{h+1}]\n"
                                   f"v_pk_mul_f32 v[{t+2}:{t+3}], v[{t+2}:{t+3}], v[{h+2}:{h+3}]")
        each(lambda a, b, d, t, h: f"v_cvt_pk_bf16_f32 v{d}, v{t}, v{t+1}\nv_cvt_pk_bf16_f32 v{d+1}, v{t+2}, v{t+3}")

    def epiB_common():
        A(f"""
        s_mov_b32 s77, 0xffff0000
        s_mov_b32 s78, {LOG2E}
        s_mov_b32 s79, {LOG2E}
        s_mov_b32 s66, 1.0
        s_mov_b32 s67, 1.0
        v_mov_b32 v{VC2}, -2.0
        v_mov_b32 v{VC2+1}, -2.0
        s_add_u32 s60, s55, s59            ; fb0
        s_lshl_b32 s61, s54, 1
        s_add_u32 s61, s61, s57            ; t
        s_mul_i32 s61, s61, 74
        s_lshr_b32 s62, s60, 1
        s_add_u32 s61, s61, s62
        s_add_u32 s61, s61, 20
        s_lshl_b32 s61, s61, 12
        s_add_u32 s62, s61, 4096
        """)
        for j in range(4):
            A(f"v_lshlrev_b32 v{VBIAS+4*j}, 16, v{VBRAW+2*j}")
            A(f"v_and_b32 v{VBIAS+4*j+1}, s77, v{VBRAW+2*j}")
            A(f"v_lshlrev_b32 v{VBIAS+4*j+2}, 16, v{VBRAW+2*j+1}")
            A(f"v_and_b32 v{VBIAS+4*j+3}, s77, v{VBRAW+2*j+1}")

    def blk(i, j):
        return ACC + (i * 4 + j) * 4
    def mloop(tag, nc, doff, stores):
        d = VDB
        A(f"s_mov_b32 s63, 0\n{name}_ml{tag}:")
        mish_blocks([(blk(0, j), VBIAS + 4 * j, d + doff + 2 * j, VTB + 4 * j, VTB + 16 + 4 * j) for j in range(nc)])
        for l in stores(d): A(l)
        A(f"""
        s_add_u32 s61, s61, 1024
        s_add_u32 s62, s62, 1024
        s_add_u32 s63, s63, 16
        s_cmp_lt_u32 s63, 64
        s_cbranch_scc1 {name}_ml{tag}
        s_branch {name}_done
        """)
    A(f"{name}_epiB4:")
    epiB_common()
    mloop("4", 4, 0, lambda d: [f"buffer_store_dwordx4 v[{d}:{d+3}], v{VLANE16}, s[28:31], s61 offen{ST}",
                                f"buffer_store_dwordx4 v[{d+4}:{d+7}], v{VLANE16}, s[28:31], s62 offen{ST}"])
    A(f"{name}_epiB3:")
    epiB_common()
    mloop("2", 2, 0, lambda d: [f"buffer_store_dwordx4 v[{d}:{d+3}], v{VLANE16}, s[28:31], s61 offen{ST}"])

    A(f"{name}_done:")
    if stamp:
        A("s_memrealtime s[86:87]")
    A(f"""
    s_waitcnt vmcnt(0) lgkmcnt(0)
    s_setprio 0
    s_barrier
    """)
    if stamp:
        A("s_memrealtime s[84:85]")
    A(f"""
    s_lshl_b32 s62, s48, 12
    s_mul_i32 s63, s48, 5120
    """)
    A(f"""
    s_lshr_b32 s25, s20, 1
    s_lshl_b32 s25, s25, 8
    s_add_u32 s25, s25, {WS_FLAG}
    s_cmp_lt_u32 s50, 2
    s_cselect_b32 s61, 0, 8
    v_and_b32 v0, 15, v{VL}
    v_or_b32 v0, s61, v0
    v_lshlrev_b32 v0, 2, v0
    """)
    for l in wdma(0): A(l)
    A("buffer_load_dword v1, v0, s[28:31], s25 offen sc1")
    for l in wdma(1): A(l)
    A(f"""
    s_waitcnt vmcnt(5)
    s_mov_b32 s61, 0
    {name}_poll:
    v_cmp_ne_u32 vcc, 1, v1
    s_cbranch_vccz {name}_go
    s_add_u32 s61, s61, 1
    s_cmp_gt_u32 s61, 0x8000
    s_cbranch_scc1 {name}_go
    s_sleep 2
    buffer_load_dword v1, v0, s[28:31], s25 offen sc1
    s_waitcnt vmcnt(0)
    s_branch {name}_poll
    {name}_go:
    """)
    if stamp:
        A("s_memrealtime s[88:89]")
    AB = lambda b, i: (80 + 16 * b if b < 3 else 152) + 4 * i
    WB = lambda j: 128 + 4 * j
    V7, VL16, VA = 148, 149, 150
    V5 = 80
    NB = 4
    A(f"""
    s_lshl_b32 s60, s20, 6
    s_lshr_b32 s61, s50, 1
    s_lshl_b32 s61, s61, 4
    s_add_u32 s60, s60, s61
    v_and_b32 v{V5}, 15, v{VL}
    v_add_u32 v{V5}, s60, v{V5}
    v_lshlrev_b32 v{V7}, 2, v{V5}
    s_mov_b32 s61, {WS_G}
    buffer_load_dword v{V7}, v{V7}, s[28:31], s61 offen
    v_add_u32 v{VA}, s24, v{VLANE16}
    v_mov_b32 v{VL16}, v{VLANE16}
    v_add_u32 v{VA+1}, 0x14000, v{VA}
    s_lshl_b32 s62, s48, 12
    s_mul_i32 s63, s48, 5120
    """)

    def aloads(b, split=False):
        if split:
            ld = [f"v_lshrrev_b32 v{AB(b,i)}, 1, v{VL16}\n"
                  f"buffer_load_dwordx2 v[{AB(b,i)+2}:{AB(b,i)+3}], v{AB(b,i)}, s[28:31], s22 offen offset:{i*1024+512}\n"
                  f"buffer_load_dwordx2 v[{AB(b,i)}:{AB(b,i)+1}], v{AB(b,i)}, s[28:31], s22 offen offset:{i*1024}" for i in range(4)]
        else:
            ld = [f"buffer_load_dwordx4 {R(AB(b, i))}, v{VL16}, s[28:31], s22 offen offset:{i*1024}{LD}" for i in range(4)]
        return ld + \
               ["s_add_u32 s22, s22, 4096", "s_add_u32 s26, s26, 1", "s_cmp_eq_u32 s26, s48",
                "s_cselect_b32 s60, s62, 0", "s_cselect_b32 s26, 0, s26", "s_sub_u32 s22, s22, s60"]

    def body2(n):
        q = VQ()
        sp = lambda u: n == 10 and u % 5 == 2
        for i in range(NB - 1):
            for l in aloads(i, sp(i)): A(l)
            q.add(f"A{i}", 8 if sp(i) else 4)
        for i in range(n):
            slot = (i + 2) % 4
            tags = [t for t in (f"A{i}", f"W{i}") if t in q.q]
            last = max(tags, key=lambda t: max(k for k, x in enumerate(q.q) if x == t))
            A(f"s_waitcnt vmcnt({q.wait_for(last)})")
            for j in range(5):
                off = (slot % 2) * 40960 + j * 1024
                A(f"ds_read_b128 {R(WB(j))}, v{VA + slot//2} offset:{off}")
            mf = []
            for j in range(5):
                for ii in range(4):
                    acc = R((ii * 5 + j) * 4)
                    mf.append(f"v_mfma_f32_16x16x32_bf16 {acc}, {R(WB(j))}, {R(AB(i % NB, ii))}, {acc if i else 0}")
            A("s_waitcnt lgkmcnt(0)")
            fill = [[]]
            if i + NB - 1 < n:
                al = aloads((i + NB - 1) % NB, sp(i + NB - 1))
                fill += [al[0:1], [], al[1:2], [], al[2:3], [], al[3:], []]
                q.add(f"A{i+NB-1}", 8 if sp(i + NB - 1) else 4)
            if i + 4 < n:
                w = [l.replace(f'v{VLANE16},', f'v{VL16},') for l in wdma(slot)]
                fill += [w[0:2], [], w[2:3], [], w[3:4], [], w[4:5], [], w[5:]]
                q.add(f"W{i+4}", 5)
            interleave(A, mf, fill)

    A(f"""
    s_cmp_lt_u32 s50, 2
    s_cbranch_scc0 {name}_b9
    """)
    body2(10)
    A(f"s_branch {name}_epi2")
    A(f"{name}_b9:")
    body2(9)
    A(f"{name}_epi2:")
    if stamp:
        A("s_memrealtime s[90:91]")
    for i in range(4):
        for j in range(5):
            A(f"ds_write_b128 v{VA + i//2}, {R((i*5+j)*4)} offset:{(i%2)*40960 + j*1024}")
    A(f"""
    s_lshr_b32 s60, s50, 1
    s_mul_i32 s60, s60, 40960
    s_and_b32 s61, s50, 1
    s_mul_i32 s62, s61, 3072
    s_add_u32 s60, s60, s62
    v_add_u32 v{VA}, s60, v{VL16}
    v_lshrrev_b32 v{VL}, 4, v{VL16}
    s_waitcnt lgkmcnt(0)
    s_barrier
    """)
    for jj in range(3):
        if jj == 2:
            A(f"s_cmp_eq_u32 s61, 1\ns_cbranch_scc1 {name}_rd_done")
        for w in range(8):
            b = (jj * 8 + w) * 4
            A(f"ds_read_b128 v[{b}:{b+3}], v{VA} offset:{jj*1024 + w*5120}")
    A(f"{name}_rd_done:")
    V9, V11, VO = 151, 154, 156
    A(f"""
    s_waitcnt vmcnt(0)
    v_sub_f32 v{V9}, 1.0, v{V7}
    v_cvt_pk_bf16_f32 v{V9}, v{V9}, v{V9}
    v_lshlrev_b32 v{V9}, 16, v{V9}
    s_lshl_b32 s60, s20, 6
    s_lshr_b32 s62, s50, 1
    s_lshl_b32 s62, s62, 4
    s_add_u32 s60, s60, s62
    v_and_b32 v{V11}, 15, v{VL}
    v_add_u32 v{V11}, s60, v{V11}
    v_lshrrev_b32 v{VO}, 4, v{VL}
    v_mul_u32_u24 v{V11}, 1280, v{V11}
    v_lshl_add_u32 v{V11}, v{VO}, 3, v{V11}
    s_mul_i32 s60, s21, 160
    s_mul_i32 s62, s61, 96
    s_add_u32 s60, s60, s62
    s_mov_b32 s62, 0xffff0000
    s_waitcnt lgkmcnt(0)
    """)
    for jj in range(3):
        if jj == 2:
            A(f"s_cmp_eq_u32 s61, 1\ns_cbranch_scc1 {name}_fin")
        base = jj * 32
        a0, a1, b1 = base, base + 4, base + 8
        pk = lambda op, d, x, y: A(f"{op} v[{d}:{d+1}], v[{x}:{x+1}], v[{y}:{y+1}]")
        for h in (0, 2):
            pk("v_pk_add_f32", a0 + h, a0 + h, a1 + h)
            pk("v_pk_add_f32", b1 + h, b1 + h, b1 + 4 + h)
            pk("v_pk_add_f32", b1 + 8 + h, b1 + 8 + h, b1 + 12 + h)
            pk("v_pk_add_f32", b1 + 16 + h, b1 + 16 + h, b1 + 20 + h)
        for h in (0, 2):
            pk("v_pk_add_f32", b1 + h, b1 + h, b1 + 8 + h)
        for h in (0, 2):
            pk("v_pk_add_f32", b1 + h, b1 + h, b1 + 16 + h)
        for p in range(2):
            ra, rb = a0 + 2 * p, b1 + 2 * p
            t0, t1 = b1 + 8 + 2 * p, b1 + 12 + 2 * p
            A(f"""
            v_cvt_pk_bf16_f32 v{t0}, v{ra}, v{ra+1}
            v_cvt_pk_bf16_f32 v{t1}, v{rb}, v{rb+1}
            v_lshlrev_b32 v{ra}, 16, v{t0}
            v_and_b32 v{ra+1}, s62, v{t0}
            v_lshlrev_b32 v{rb}, 16, v{t1}
            v_and_b32 v{rb+1}, s62, v{t1}
            v_mul_f32 v{ra}, v{V7}, v{ra}
            v_mul_f32 v{ra+1}, v{V7}, v{ra+1}
            v_fmac_f32 v{ra}, v{V9}, v{rb}
            v_fmac_f32 v{ra+1}, v{V9}, v{rb+1}
            v_cvt_pk_bf16_f32 v{VO+2*jj+p}, v{ra}, v{ra+1}
            """)
        A(f"buffer_store_dwordx2 v[{VO+2*jj}:{VO+2*jj+1}], v{V11}, s[36:39], s60 offen offset:{jj*32}")
    A(f"{name}_fin:")
    if stamp:
        A(f"""
        s_waitcnt vmcnt(0)
        s_memrealtime s[94:95]
        s_waitcnt lgkmcnt(0)
        v_mov_b32 v16, s80
        v_mov_b32 v17, s94
        v_mov_b32 v18, s82
        v_mov_b32 v19, s84
        v_mov_b32 v20, s86
        v_mov_b32 v21, s88
        v_mov_b32 v22, s90
        v_mov_b32 v23, 0
        s_lshl_b32 s60, s2, 3
        s_add_u32 s60, s60, s50
        s_lshl_b32 s60, s60, 5
        s_add_u32 s60, s60, {WS_STAMP}
        v_mov_b32 v14, 0
        buffer_store_dwordx4 v[16:19], v14, s[28:31], s60 offen
        buffer_store_dwordx4 v[20:23], v14, s[28:31], s60 offen offset:16
        """)
    A(f"{name}_exit:")
    A("s_endpgm")


def desc(name):
    return f"""
.section .rodata,"a"
.p2align 6
.amdhsa_kernel {name}
  .amdhsa_next_free_vgpr 168
  .amdhsa_next_free_sgpr 102
  .amdhsa_accum_offset 168
  .amdhsa_group_segment_fixed_size 0
  .amdhsa_kernarg_size 88
  .amdhsa_user_sgpr_count 2
  .amdhsa_user_sgpr_kernarg_segment_ptr 1
  .amdhsa_system_sgpr_workgroup_id_x 1
.end_amdhsa_kernel
"""


if __name__ == "__main__":
    import sys
    NAME = "gated_mix__sliding_local_dilated__dense_activation_mish__prompt"
    out = f"cdna_kernels/{NAME}.s"
    for a in sys.argv[1:]:
        if a.endswith(".s"): out = a
    A = Asm()
    A.raw(f"; @launch grid=(256,1,1) block=({NWAVE*64},1,1) lds={P1_LDS}")
    A.raw('.amdgcn_target "amdgcn-amd-amdhsa--gfx950"')
    if "norot" in sys.argv: ROT = 0
    for a in sys.argv:
        if a.startswith("common="): COMMON = int(a[7:])
    if "notouch" in sys.argv: WTOUCH = 0
    gen_fused(A, NAME + "_kernel", stamp="stamp" in sys.argv, prefetch="pf" in sys.argv)
    open(out, "w").write(A.finish() + desc(NAME + "_kernel"))
    print("wrote", out)
```

```python
from asmlib import Asm

WS_ACT, WS_WF, WS_G = 0, 0xA00000, 0xE00000
WS_SIZE = 0x1000000
WS_STAMP = 0xF00000
WS_FLAG = 0xE80000
WS_FLAG2 = 0xE90000
OUT_BYTES = 2048 * 640 * 2
P1_LDS = 160 * 1024
STAGE = 49152
XREG = 18432
RL_BASE = 3 * STAGE
GLDS = RL_BASE + 15360
BLDS = GLDS + 64
RSQ = 488
LOG2E = 0x3fb8aa3b
SCALE = 0x3e64f92e

ACC = 0
F0 = 72
F1 = 108
VW = 144
VXA = 148
VXH = 150
VLANE16 = 152
VL = 153
VBRAW = 154
VPF = 162
VC2 = 164
VT = 72
VTA = 154
VBIAS = 72
VTB = 88
VDB = 120
VDMA = 4
HT = 8
HF = 100
NWAVE = 12
ROT = 1
ROT2 = 0
COMMON = 0
WTOUCH = 0
PF0 = 2


def xfrag(fs, i):
    return fs + 4 * i
def wfrag(fs, j):
    return fs + 20 + 4 * j
def R(b, n=4):
    return "v[%d:%d]" % (b, b + n - 1)


def interleave(A, mf, fillers):
    n = len(mf)
    for mi, m in enumerate(mf):
        A(m)
        if mi < len(fillers):
            for l in fillers[mi]: A(l)
    for g in fillers[n:]:
        for l in g: A(l)


class VQ:
    def __init__(self): self.q = []
    def add(self, tag, n): self.q += [tag] * n
    def wait_for(self, tag):
        last = max(i for i, t in enumerate(self.q) if t == tag)
        n = len(self.q) - 1 - last
        self.q = self.q[last + 1:]
        return n


def gen_fused(A, name, stamp=False, prefetch=False):
    ST = " sc1"
    LD = ""
    A(f"""
.text
.globl {name}
.p2align 8
.type {name},@function
{name}:
    s_cmp_ge_u32 s2, 256
    s_cbranch_scc1 {name}_exit
    """)
    if stamp:
        A("s_memrealtime s[80:81]")
        A("s_memtime s[92:93]")
    A(f"""
    s_load_dwordx4 s[96:99], s[0:1], 64
    s_load_dwordx4 s[4:7], s[0:1], 0
    s_load_dwordx2 s[8:9], s[0:1], 16
    s_load_dwordx2 s[10:11], s[0:1], 80
    s_load_dwordx4 s[12:15], s[0:1], 32
    s_load_dwordx4 s[16:19], s[0:1], 48
    v_lshrrev_b32 v1, 6, v0
    v_and_b32 v{VL}, 63, v0
    v_readfirstlane_b32 s50, v1
    v_lshlrev_b32 v{VLANE16}, 4, v{VL}
    s_and_b32 s60, s2, 7
    s_lshr_b32 s61, s2, 3
    s_and_b32 s62, s60, 1
    s_lshl_b32 s62, s62, 3
    s_and_b32 s63, s61, 7
    s_add_u32 s54, s62, s63            ; s54 = mt (0..15)
    s_lshl_b32 s52, s54, 7             ; s52 = m0
    s_lshr_b32 s62, s60, 1             ; cq
    s_lshr_b32 s63, s61, 3             ; cl
    s_lshr_b32 s51, s63, 1             ; s51 = type (0=A,1=B)
    s_and_b32 s63, s63, 1
    s_lshl_b32 s62, s62, 1
    s_add_u32 s53, s62, s63
    s_mul_i32 s55, s53, 14
    s_lshr_b32 s62, s53, 2
    s_lshl_b32 s62, s62, 1
    s_sub_u32 s55, s55, s62
    s_and_b32 s62, s53, 3
    s_cmp_eq_u32 s62, 3
    s_cselect_b32 s56, 1, 0
    s_and_b32 s57, s50, 1              ; s57 = mh
    s_lshr_b32 s58, s50, 1             ; s58 = ng
    s_mov_b32 s64, 3456
    s_cmp_eq_u32 s51, 0
    s_cselect_b32 s64, 3840, s64
    s_cselect_b32 s65, 1152, 0
    s_mul_i32 s62, s53, 160
    s_mul_i32 s63, s55, 32
    s_cselect_b32 s66, s62, s63
    s_lshl_b32 s62, s56, 1
    s_sub_u32 s62, 14, s62
    s_cmp_eq_u32 s51, 0
    s_cselect_b32 s67, 64, s62
    s_lshl_b32 s68, s64, 6
    s_lshl_b32 s3, s54, 4
    s_lshl_b32 s60, s51, 3
    s_add_u32 s3, s3, s60
    s_add_u32 s3, s3, s53
    s_cmp_ge_u32 s50, 4
    s_cbranch_scc1 {name}_compute
    s_setprio 3
    v_mov_b32 v{HF}, 0
    s_lshl_b32 s60, s50, 4
    s_mul_i32 s72, s60, s64
    s_lshl_b32 s61, s64, 1
    s_add_u32 s73, s72, s61            ; +2
    s_lshl_b32 s62, s64, 3
    s_add_u32 s74, s72, s62            ; +8
    s_add_u32 s75, s74, s61            ; +10
    s_lshl_b32 s63, s64, 2
    s_add_u32 s76, s72, s63            ; +4
    s_add_u32 s77, s76, s61            ; +6
    s_add_u32 s78, s74, s63            ; +12
    s_add_u32 s79, s78, s61            ; +14
    s_lshl_b32 s60, s50, 5
    s_add_u32 s60, s60, s52
    s_mul_i32 s20, s60, 1280
    s_sub_u32 s60, s52, 16
    s_lshl_b32 s61, s50, 3
    s_add_u32 s60, s60, s61
    s_mul_i32 s22, s60, 1280
    s_cmp_eq_u32 s52, 0
    s_cselect_b32 s22, 0x80000000, s22
    s_mov_b32 s90, -1
    s_mov_b32 s91, 0x0fffffff
    s_mul_i32 s71, s50, 7680
    s_add_u32 s71, s71, {XREG}
    s_lshl_b32 s23, s50, 12
    s_add_u32 s23, s23, 2048
    s_lshl_b32 s48, s50, 10
    s_lshl_b32 s60, s51, 1
    s_add_u32 s60, s60, s50
    s_cmp_lt_u32 s60, 2
    s_cselect_b32 s70, 1, 0
    s_cmp_eq_u32 s51, 0
    s_cselect_b32 s62, 12, 14
    s_and_b32 s63, s53, 1
    s_cselect_b32 s63, s63, 0
    s_cmp_eq_u32 s51, 0
    s_cselect_b32 s63, s63, 0
    s_lshl_b32 s60, s62, 1
    v_lshrrev_b32 v{HT}, 1, v{VL}                    ; pos
    v_cmp_le_u32 vcc, s62, v{HT}
    v_subrev_u32 v{HT+1}, s62, v{HT}
    v_xor_b32 v{HT+1}, 1, v{HT+1}
    v_cndmask_b32 v{HT+1}, v{HT}, v{HT+1}, vcc
    v_cndmask_b32 v{HT+2}, 0, 1, vcc                 ; parity
    v_lshrrev_b32 v{HT+3}, 2, v{HT+1}
    v_mul_u32_u24 v{HT+3}, s65, v{HT+3}
    v_lshl_add_u32 v{HT+3}, v{HT+1}, 5, v{HT+3}
    s_lshl_b32 s61, s63, 5
    v_add_u32 v{HT+3}, s61, v{HT+3}
    ; singles (type A): q = pos-24 (0..5): parity = q>=3, grp = q%3, e = hgpar?0:4
    v_subrev_u32 v{HT+4}, 24, v{HT}
    v_cmp_le_u32 vcc, 3, v{HT+4}
    v_subrev_u32 v{HT+5}, 3, v{HT+4}
    v_cndmask_b32 v{HT+4}, v{HT+4}, v{HT+5}, vcc
    v_cndmask_b32 v{HT+5}, 0, 1, vcc
    v_mul_u32_u24 v{HT+4}, 1280, v{HT+4}
    s_lshl_b32 s61, s63, 7
    s_sub_u32 s61, 128, s61
    v_add_u32 v{HT+4}, s61, v{HT+4}
    v_cmp_le_u32 vcc, s60, v{HT}
    v_cndmask_b32 v{HT+3}, v{HT+3}, v{HT+4}, vcc
    v_cndmask_b32 v{HT+2}, v{HT+2}, v{HT+5}, vcc
    v_mul_u32_u24 v{HT+2}, s64, v{HT+2}
    v_and_b32 v{HT+4}, 1, v{VL}
    v_lshl_add_u32 v{HT+3}, v{HT+4}, 4, v{HT+3}
    v_add3_u32 v{HT+1}, v{HT+2}, v{HT+3}, s66        ; offset
    s_cmp_eq_u32 s51, 0
    s_cselect_b32 s60, 64, s60
    v_cmp_le_u32 vcc, s60, v{HT}
    v_mov_b32 v{HT+2}, 0x80000000
    v_cndmask_b32 v{HT+1}, v{HT+1}, v{HT+2}, vcc
    v_cmp_le_u32 vcc, s62, v{HT}
    v_subrev_u32 v{HT+4}, s62, v{HT}
    v_cndmask_b32 v{HT+4}, v{HT}, v{HT+4}, vcc
    v_cmp_le_u32 vcc, s67, v{HT+4}
    v_lshrrev_b32 v{HT+3}, 3, v{VL}
    v_cndmask_b32 v{VDMA}, v{HT+1}, v{HT+2}, vcc
    v_mul_u32_u24 v{HT+3}, 1280, v{HT+3}
    v_and_b32 v{HT+1}, 7, v{VL}
    v_lshrrev_b32 v{HT+2}, 4, v{VL}
    v_xor_b32 v{HT+1}, v{HT+1}, v{HT+2}
    v_lshl_add_u32 v{VDMA+1}, v{HT+1}, 4, v{HT+3}
    v_xor_b32 v{VDMA+2}, 64, v{VDMA+1}
    v_mov_b32 v{VDMA+3}, v{VDMA+1}
    s_cmp_eq_u32 s50, 1
    s_cbranch_scc0 {name}_h0
    v_mov_b32 v{VDMA+3}, v{VDMA+2}
    {name}_h0:
    s_waitcnt lgkmcnt(0)
    s_mov_b32 s36, s4
    s_and_b32 s37, s5, 0xffff
    s_mov_b32 s38, 2621440
    s_mov_b32 s39, 0x20000
    s_mov_b32 s26, 2211840
    s_cmp_eq_u32 s51, 0
    s_cselect_b32 s24, s6, s12
    s_cselect_b32 s25, s7, s13
    s_cselect_b32 s26, 2457600, s26
    s_and_b32 s25, s25, 0xffff
    s_mov_b32 s27, 0x20000
    s_mov_b32 s28, s10
    s_and_b32 s29, s11, 0xffff
    s_mov_b32 s30, {WS_SIZE}
    s_mov_b32 s31, 0x20000
    s_mov_b32 s40, s18
    s_and_b32 s41, s19, 0xffff
    s_mov_b32 s42, 1280
    s_mov_b32 s43, 0x20000
    s_mov_b32 s21, 0
    s_lshl_b32 s67, s64, 6
    s_lshr_b32 s60, s2, 6              ; cl
    s_mul_i32 s60, s60, 5
    s_lshr_b32 s60, s60, 1
    s_and_b32 s61, s54, 7
    s_add_u32 s60, s60, s61
    s_lshr_b32 s61, s61, 2
    s_add_u32 s60, s60, s61
    s_sub_u32 s61, s60, {10-COMMON}
    s_cmp_ge_u32 s60, {10-COMMON}
    s_cselect_b32 s60, s61, s60
    s_sub_u32 s61, s60, {10-COMMON}
    s_cmp_ge_u32 s60, {10-COMMON}
    s_cselect_b32 s60, s61, s60
    s_mul_i32 s60, s60, {ROT}
    s_add_u32 s45, s60, {COMMON}
    s_mov_b32 s44, {"0" if COMMON else "s45"}
    s_lshl_b32 s60, s44, 7
    s_add_u32 s20, s20, s60
    s_add_u32 s22, s22, s60
    s_mul_i32 s60, s44, s67
    s_add_u32 s72, s72, s60
    s_add_u32 s73, s73, s60
    s_add_u32 s74, s74, s60
    s_add_u32 s75, s75, s60
    s_add_u32 s76, s76, s60
    s_add_u32 s77, s77, s60
    s_add_u32 s78, s78, s60
    s_add_u32 s79, s79, s60
    s_mov_b32 s66, 0
    s_and_b32 s63, s3, 31
    s_lshl_b32 s60, s50, 5
    s_add_u32 s63, s63, s60                ; kb
    s_mov_b32 s34, 2211840
    s_cmp_lt_u32 s63, 20
    s_cselect_b32 s32, s8, s16
    s_cselect_b32 s33, s9, s17
    s_cselect_b32 s34, 819200, s34
    s_cselect_b32 s60, 0, 20
    s_sub_u32 s60, s63, s60
    s_mul_i32 s60, s60, 40960
    s_lshr_b32 s61, s3, 5
    s_mul_i32 s61, s61, 160
    s_add_u32 s62, s60, s61
    s_cmp_lt_u32 s63, 74
    s_cselect_b32 s62, s62, 0x80000000
    s_lshl_b32 s60, s55, 5
    s_cmp_eq_u32 s50, 3
    s_cselect_b32 s32, s14, s32
    s_cselect_b32 s33, s15, s33
    s_cselect_b32 s34, 3456, s34
    s_cselect_b32 s62, s60, s62
    s_and_b32 s33, s33, 0xffff
    s_mov_b32 s35, 0x20000
    s_lshr_b32 s60, s3, 5
    s_mul_i32 s60, s60, 74
    s_add_u32 s60, s60, s63
    s_mul_i32 s60, s60, 5120
    s_add_u32 s64, s60, {WS_WF}
    s_cmp_lt_u32 s63, 74
    s_cselect_b32 s64, s64, 0x80000000
    s_add_u32 s65, s64, 4096
    s_mul_i32 s63, s50, 5120
    s_add_u32 s63, s63, {RL_BASE + 0}
    s_lshl_b32 s60, s53, 4
    s_add_u32 s60, s60, s52
    s_lshl_b32 s61, s50, 2
    s_add_u32 s49, s60, s61
    s_cmp_eq_u32 s70, 1
    s_cbranch_scc1 {name}_hA
    s_cmp_eq_u32 s51, 0
    s_cbranch_scc1 {name}_hC
    s_branch {name}_hB
    """)

    def dma_sub(halo):
        A(f"{name}_dma{int(halo)}:")
        A(f"""
        s_add_u32 s66, s66, 1
        s_add_u32 s46, s44, 1
        s_cmp_eq_u32 s46, 10
        s_cselect_b32 s46, {COMMON}, s46
        s_cmp_eq_u32 s66, {COMMON}
        s_cselect_b32 s46, s45, s46
        s_sub_u32 s47, s46, s44
        s_mov_b32 s44, s46
        s_mul_i32 s46, s47, s67
        s_lshl_b32 s47, s47, 7
        """)
        A("s_add_u32 s68, s23, s21")
        for i in range(4):
            A(f"""
            s_add_u32 s69, s20, {i*10240}
            s_add_u32 m0, s68, {i*1024}
            buffer_load_dwordx4 v{VDMA+1+(i&1)}, s[36:39], s69 offen lds
            """)
        if halo:
            A(f"""
            s_add_u32 m0, s48, s21
            buffer_load_dwordx4 v{VDMA+3}, s[36:39], s22 offen lds
            s_add_u32 s22, s22, s47
            """)
        A("s_add_u32 s68, s71, s21")
        A("s_mov_b64 exec, s[90:91]")
        for i in range(8):
            A(f"""
            s_add_u32 m0, s68, {i*960}
            buffer_load_dwordx4 v{VDMA}, s[24:27], s{72+i} offen lds
            s_add_u32 s{72+i}, s{72+i}, s46
            """)
        A("s_mov_b64 exec, -1")
        A(f"""
        s_add_u32 s20, s20, s47
        s_add_u32 s21, s21, {STAGE}
        s_cmp_eq_u32 s21, {3*STAGE}
        s_cselect_b32 s21, 0, s21
        s_setpc_b64 s[88:89]
        """)
    dma_sub(False)
    dma_sub(True)

    GX = HT + 8
    G = [HT + 36 + r for r in range(4)]
    T2 = HT + 40

    def early_aux():
        A(f"""
        s_cmp_eq_u32 s50, 3
        s_cbranch_scc1 {{0}}
        """.format(f"{name}_ea3_{early_aux.n}"))
        for i in range(5):
            A(f"""
            v_add_u32 v{HT+1}, {64*i}, v{VL}
            v_mul_u32_u24 v{HT+2}, 205, v{HT+1}
            v_lshrrev_b32 v{HT+2}, 11, v{HT+2}
            v_mul_u32_u24 v{HT+3}, 10, v{HT+2}
            v_sub_u32 v{HT+3}, v{HT+1}, v{HT+3}
            v_mul_u32_u24 v{HT+2}, 1280, v{HT+2}
            v_lshl_add_u32 v{HT+2}, v{HT+3}, 4, v{HT+2}
            s_add_u32 m0, s63, {i*1024}
            buffer_load_dwordx4 v{HT+2}, s[32:35], s62 offen lds
            """)
        A(f"""
        s_branch {name}_ea_end{early_aux.n}
        {name}_ea3_{early_aux.n}:
        s_mov_b32 m0, {BLDS}
        s_mov_b64 exec, 0xffffffff
        buffer_load_dwordx4 v{VLANE16}, s[32:35], s62 offen lds
        s_lshr_b32 s60, s3, 4
        s_lshl_b32 s60, s60, 8
        s_and_b32 s61, s3, 15
        s_lshl_b32 s61, s61, 2
        s_add_u32 s60, s60, s61
        s_add_u32 s60, s60, {WS_FLAG}
        v_mov_b32 v{HT+1}, 0
        s_mov_b64 exec, 1
        buffer_store_dword v{HT+1}, v{HT+1}, s[28:31], s60 offen sc1
        s_lshl_b32 s60, s3, 2
        s_add_u32 s60, s60, {WS_FLAG2}
        buffer_store_dword v{HT+1}, v{HT+1}, s[28:31], s60 offen sc1
        buffer_store_dword v{HT+1}, v{HT+1}, s[28:31], s64 offen
        buffer_store_dword v{HT+1}, v{HT+1}, s[28:31], s64 offen
        s_mov_b64 exec, -1
        {name}_ea_end{early_aux.n}:
        """)
        early_aux.n += 1
        return 5
    early_aux.n = 0

    def rl_store(tag):
        A(f"""
        v_lshrrev_b32 v{HT}, 2, v{VL}
        v_mul_u32_u24 v{HT}, 160, v{HT}
        v_and_b32 v{HT+1}, 3, v{VL}
        v_lshl_add_u32 v{HT}, v{HT+1}, 3, v{HT}
        v_add_u32 v{HT}, s63, v{HT}
        """)
        for j in range(5):
            b = HT + 64 + 4 * j
            A(f"ds_read_b64_tr_b16 v[{b}:{b+1}], v{HT} offset:{j*32}")
            A(f"ds_read_b64_tr_b16 v[{b+2}:{b+3}], v{HT} offset:{j*32 + 2560}")
        A("s_waitcnt lgkmcnt(0)")
        for j in range(5):
            b = HT + 64 + 4 * j
            if j < 4:
                A(f"buffer_store_dwordx4 v[{b}:{b+3}], v{VLANE16}, s[28:31], s64 offen offset:{j*1024}{ST}")
            else:
                A(f"buffer_store_dwordx4 v[{b}:{b+3}], v{VLANE16}, s[28:31], s65 offen{ST}")
        return 5

    def aux_loads(rl):
        A(f"""
        s_mul_i32 s61, s49, 1280
        s_add_u32 s60, s61, 2560
        v_lshlrev_b32 v{HT}, 2, v{VL}
        """)
        for r in range(4):
            so = "s61" if r < 2 else "s60"
            A(f"buffer_load_dwordx4 v[{GX+4*r}:{GX+4*r+3}], v{VLANE16}, s[36:39], {so} offen offset:{(r%2)*1280}")
            A(f"buffer_load_dword v{GX+20+r}, v{HT}, s[36:39], {so} offen offset:{(r%2)*1280 + 1024}")
        A(f"""
        buffer_load_dwordx4 v[{GX+16}:{GX+19}], v{VLANE16}, s[40:43], 0 offen
        buffer_load_dword v{GX+24}, v{HT}, s[40:43], 0 offen offset:1024
        """)
        return 10

    def aux_proc(rl):
        A("s_mov_b32 s68, 0xffff0000")
        for r in range(4):
            for i in range(5):
                x = GX + 4 * r + i if i < 4 else GX + 20 + r
                gw = GX + 16 + i if i < 4 else GX + 24
                t = T2 + 4 * i
                A(f"""
                v_lshlrev_b32 v{t}, 16, v{x}
                v_and_b32 v{t+1}, s68, v{x}
                v_lshlrev_b32 v{t+2}, 16, v{gw}
                v_and_b32 v{t+3}, s68, v{gw}
                v_pk_mul_f32 v[{t}:{t+1}], v[{t}:{t+1}], v[{t+2}:{t+3}]
                v_cvt_pk_bf16_f32 v{t}, v{t}, v{t+1}
                v_and_b32 v{t+1}, s68, v{t}
                v_lshlrev_b32 v{t}, 16, v{t}
                """)
            A(f"""
            v_pk_add_f32 v[{T2}:{T2+1}], v[{T2}:{T2+1}], v[{T2+4}:{T2+5}]
            v_pk_add_f32 v[{T2+8}:{T2+9}], v[{T2+8}:{T2+9}], v[{T2+12}:{T2+13}]
            v_pk_add_f32 v[{T2}:{T2+1}], v[{T2}:{T2+1}], v[{T2+16}:{T2+17}]
            v_pk_add_f32 v[{T2}:{T2+1}], v[{T2}:{T2+1}], v[{T2+8}:{T2+9}]
            v_add_f32 v{G[r]}, v{T2}, v{T2+1}
            """)
        for sh in (1, 2, 4, 8):
            for r in range(4):
                A(f"v_add_f32_dpp v{G[r]}, v{G[r]}, v{G[r]} row_ror:{sh} row_mask:0xf bank_mask:0xf")
        for swap in ("v_permlane16_swap_b32", "v_permlane32_swap_b32"):
            for r in range(4):
                A(f"v_mov_b32 v{T2+r}, v{G[r]}")
            for r in range(4):
                A(f"{swap} v{T2+r}, v{G[r]}")
            for r in range(4):
                A(f"v_add_f32 v{G[r]}, v{G[r]}, v{T2+r}")
        for op in ("v_cvt_pk_bf16_f32 v{0}, v{0}, v{0}", "v_lshlrev_b32 v{0}, 16, v{0}", "v_mul_f32 v{0}, 0xbfb8aa3b, v{0}",
                   "v_exp_f32 v{0}, v{0}", "v_add_f32 v{0}, 1.0, v{0}", "v_rcp_f32 v{0}, v{0}",
                   "v_cvt_pk_bf16_f32 v{0}, v{0}, v{0}", "v_lshlrev_b32 v{0}, 16, v{0}"):
            for r in range(4):
                A(op.format(G[r]))
        A(f"""
        s_lshl_b32 s60, s50, 4
        s_add_u32 s60, s60, {GLDS}
        v_mov_b32 v{HT}, s60
        s_mov_b64 exec, 1
        ds_write_b128 v{HT}, v[{G[0]}:{G[3]}]
        s_mov_b64 exec, -1
        s_waitcnt lgkmcnt(0)
        """)

    for var, halo, gate in (("hA", True, False), ("hC", False, False), ("hB", False, True)):
        nd = 13 if halo else 12
        q = VQ()
        A(f"{name}_{var}:")
        def D(k):
            A(f"s_call_b64 s[88:89], {name}_dma{int(halo)}")
            q.add(f"D{k}", nd)
        def B(k):
            A(f"s_waitcnt vmcnt({q.wait_for(f'D{k}')})")
            A("s_barrier")
        D(0); D(1); B(0)
        D(2); q.add("ea", early_aux()); B(1)
        D(3); B(2)
        D(4); B(3)
        if not halo:
            A(f"""
            s_cmp_eq_u32 s50, 3
            s_cbranch_scc0 {name}_nordy{var}
            s_mov_b32 s32, s98
            s_and_b32 s33, s99, 0xffff
            s_mov_b32 s34, 256
            s_mov_b32 s35, 0x20000
            v_mov_b32 v{HT+1}, 1
            v_mov_b32 v{HT+2}, 0
            s_mov_b64 exec, 1
            buffer_store_byte v{HT+1}, v{HT+2}, s[32:35], s3 offen sc1
            s_mov_b64 exec, -1
            {name}_nordy{var}:
            """)
        D(5); q.add("rs", rl_store(var)); B(4)
        D(6)
        if gate: q.add("aux", aux_loads(False))
        B(5)
        D(7); B(6)
        A(f"""
        s_cmp_eq_u32 s50, 1
        s_cbranch_scc0 {name}_nowf{var}
        v_mov_b32 v{HT+1}, 1
        v_mov_b32 v{HT+2}, 0
        s_lshl_b32 s60, s3, 2
        s_add_u32 s60, s60, {WS_FLAG2}
        s_mov_b64 exec, 1
        buffer_store_dword v{HT+1}, v{HT+2}, s[28:31], s60 offen sc1
        s_mov_b64 exec, -1
        {name}_nowf{var}:
        """)
        D(8)
        A(f"""
        s_cmp_eq_u32 s50, 0
        s_cbranch_scc0 {name}_nodbg{var}
        s_mov_b32 s32, s98
        s_and_b32 s33, s99, 0xffff
        s_mov_b32 s34, 256
        s_mov_b32 s35, 0x20000
        s_and_b32 s60, s2, 7
        s_lshr_b32 s61, s2, 3
        s_lshl_b32 s56, s60, 2
        s_lshr_b32 s62, s61, 3
        s_add_u32 s56, s56, s62                ; t2
        s_and_b32 s57, s61, 7                  ; u2
        s_lshr_b32 s58, s56, 1
        s_lshl_b32 s60, s58, 4
        s_lshl_b32 s61, s57, 5
        s_sub_u32 s61, s61, 16
        v_min_u32 v{HF+2}, 11, v{VL}
        v_lshlrev_b32 v{HF}, 2, v{HF+2}
        v_cmp_gt_u32 vcc, 4, v{HF+2}
        v_mov_b32 v{HF+3}, s61
        v_mov_b32 v{HF+4}, s60
        v_cndmask_b32 v{HF+3}, v{HF+3}, v{HF+4}, vcc
        v_add_u32 v{HF}, v{HF}, v{HF+3}
        buffer_load_dword v{HF+1}, v{HF}, s[32:35], 0 offen sc1
    
        {name}_nodbg{var}:
        """)
        A(f"s_waitcnt vmcnt({q.wait_for('D7')})")
        A("s_barrier")
        D(9)
        if gate: aux_proc(False)
        B(8)
        A(f"""
        s_cmp_eq_u32 s50, 0
        s_cbranch_scc1 {name}_htail
        s_waitcnt vmcnt(0)
        s_barrier
        s_endpgm
        """)
    def hw(tag, slot0, i0):
        A(f"""
        s_mov_b32 s73, 0
        s_mov_b32 s74, s72
        s_mov_b32 s75, {slot0*40960}
        {name}_hw{tag}:
        s_cmp_lt_u32 s73, 2
        s_cselect_b32 s76, 10, 9
        """)
        for un in range(2):
            A(f"""
            s_add_u32 s77, s59, {i0 + un}
            s_sub_u32 s78, s77, s76
            s_cmp_ge_u32 s77, s76
            s_cselect_b32 s77, s78, s77
            s_mul_i32 s77, s77, 5120
            s_add_u32 s69, s74, s77
            s_add_u32 m0, s75, {un*40960}
            """)
            for j in range(4):
                A(f"buffer_load_dwordx4 v{VLANE16}, s[28:31], s69 offen offset:{j*1024} lds")
            A(f"""
            s_add_u32 m0, s75, {un*40960 + 4096}
            s_add_u32 s69, s69, 4096
            buffer_load_dwordx4 v{VLANE16}, s[28:31], s69 offen lds
            """)
        A(f"""
        s_add_u32 s75, s75, 5120
        s_mul_i32 s77, s76, 5120
        s_add_u32 s74, s74, s77
        s_add_u32 s73, s73, 1
        s_cmp_lt_u32 s73, 8
        s_cbranch_scc1 {name}_hw{tag}
        """)
    A(f"""
    {name}_htail:
    s_setprio 0
    s_waitcnt vmcnt(0)
    s_barrier                              ; B9
    v_and_b32 v{HT+5}, 31, v{VL}
    v_lshlrev_b32 v{HT+5}, 2, v{HT+5}
    s_lshl_b32 s23, s57, 7
    s_add_u32 s23, s23, {WS_FLAG2}
    buffer_load_dword v{HT+6}, v{HT+5}, s[28:31], s23 offen sc1
    s_mul_i32 s72, s57, {74*5120}
    s_add_u32 s72, s72, {WS_WF}
    s_and_b32 s60, s57, 3
    s_lshl_b32 s60, s60, 1
    s_and_b32 s61, s56, 7
    s_add_u32 s60, s60, s61
    s_sub_u32 s61, s60, 9
    s_cmp_ge_u32 s60, 9
    s_cselect_b32 s59, s61, s60
    s_mul_i32 s59, s59, {ROT2}
    s_mov_b32 s26, 0x01010101
    s_barrier                              ; B10
    s_cmp_eq_u32 s51, 0
    s_cbranch_scc0 {name}_hnoattn
    s_barrier
    {name}_hnoattn:
    s_mov_b32 s27, 0
    {name}_hwf:
    s_waitcnt vmcnt(0)
    v_and_b32 v{HF+1}, s26, v{HF+1}
    v_cmp_ne_u32 vcc, s26, v{HF+1}
    s_cbranch_vccnz {name}_hretry
    v_cmp_ne_u32 vcc, 1, v{HT+6}
    s_cbranch_vccz {name}_hwfok
    {name}_hretry:
    s_add_u32 s27, s27, 1
    s_cmp_gt_u32 s27, 0x8000
    s_cbranch_scc1 {name}_hwfok
    s_sleep 8
    buffer_load_dword v{HF+1}, v{HF}, s[32:35], 0 offen sc1
    s_waitcnt vmcnt(0)
    buffer_load_dword v{HT+6}, v{HT+5}, s[28:31], s23 offen sc1
    s_branch {name}_hwf
    {name}_hwfok:
    """)
    hw("a", 2, 0)
    A(f"""
    v_mov_b32 v{HT+3}, 1
    v_mov_b32 v{HT+2}, 0
    s_lshr_b32 s60, s3, 4
    s_lshl_b32 s60, s60, 8
    s_and_b32 s61, s3, 15
    s_lshl_b32 s61, s61, 2
    s_add_u32 s60, s60, s61
    s_add_u32 s60, s60, {WS_FLAG}
    s_waitcnt vmcnt(0)
    s_setprio 3
    s_barrier
    s_mov_b64 exec, 1
    buffer_store_dword v{HT+3}, v{HT+2}, s[28:31], s60 offen sc1
    s_endpgm
    """)

    A(f"""
    {name}_compute:
    s_sub_u32 s50, s50, 4
    s_and_b32 s57, s50, 1              ; s57 = mh
    s_lshr_b32 s58, s50, 1             ; s58 = ng
    s_lshl_b32 s60, s58, 2
    s_cmp_eq_u32 s58, 3
    s_cselect_b32 s61, 10, s60
    s_cmp_eq_u32 s56, 1
    s_cselect_b32 s60, s61, s60
    s_and_b32 s61, s58, 1
    s_lshl_b32 s61, s61, 3
    s_lshr_b32 s62, s58, 1
    s_lshl_b32 s62, s62, 2
    s_add_u32 s61, s61, s62
    s_cmp_eq_u32 s51, 0
    s_cselect_b32 s59, s61, s60
    """)
    A(f"""
    v_and_b32 v{VT}, 15, v{VL}                 ; mi
    v_lshrrev_b32 v{VT+1}, 4, v{VL}            ; g
    v_lshrrev_b32 v{VT+2}, 1, v{VT}            ; mi>>1
    v_xor_b32 v{VT+3}, v{VT+1}, v{VT+2}
    v_lshlrev_b32 v{VT+3}, 4, v{VT+3}
    v_lshl_add_u32 v{VXH}, v{VT}, 7, v{VT+3}
    v_xor_b32 v{VXH+1}, 64, v{VXH}
    s_lshl_b32 s60, s57, 13
    s_add_u32 s60, s60, 2048
    v_add_u32 v{VXA}, s60, v{VXH}
    v_add_u32 v{VXA+1}, s60, v{VXH+1}
    v_lshrrev_b32 v{VT+2}, 1, v{VT+1}          ; g1
    v_and_b32 v{VT+3}, 1, v{VT+1}              ; g0
    v_lshrrev_b32 v{VT+4}, 3, v{VT}            ; rr>>1
    v_lshl_add_u32 v{VT+4}, v{VT+3}, 1, v{VT+4}
    v_lshl_add_u32 v{VT+4}, v{VT+2}, 3, v{VT+4}    ; slot>>1
    v_mul_u32_u24 v{VT+4}, 960, v{VT+4}
    v_and_b32 v{VT+5}, 3, v{VT}
    v_lshl_add_u32 v{VT+4}, v{VT+5}, 3, v{VT+4}
    v_add_u32 v{VT+4}, {XREG}, v{VT+4}
    v_bfe_u32 v{VT+5}, v{VT}, 2, 1
    v_cmp_eq_u32 vcc, 1, v{VT+5}
    s_cmp_eq_u32 s51, 0
    s_cselect_b32 s62, 12, 14
    s_and_b32 s63, s53, 1
    s_cmp_eq_u32 s51, 0
    s_cselect_b32 s63, s63, 0
    """)
    for j in range(4):
        A(f"""
        s_add_u32 s69, s59, {j}
        s_mul_i32 s60, s69, 13
        s_lshr_b32 s60, s60, 6
        s_mul_i32 s61, s60, 5
        s_sub_u32 s61, s69, s61                ; e
        s_sub_u32 s61, s61, s63
        s_lshl_b32 s78, s60, 2
        s_add_u32 s78, s78, s61
        s_cmp_eq_u32 s51, 0
        s_cselect_b32 s78, s78, s69
        s_cselect_b32 s79, s61, 0
        s_xor_b32 s77, s78, 1
        s_add_u32 s77, s77, s62
        s_add_u32 s76, s60, 24
        s_add_u32 s69, s60, 27
        s_cmp_gt_u32 s79, 3
        s_cselect_b32 s78, s76, s78
        s_cselect_b32 s77, s69, s77
        s_lshl_b32 s78, s78, 5
        s_lshl_b32 s77, s77, 5
        v_mov_b32 v{VT+6}, s78
        v_mov_b32 v{VT+7}, s77
        v_cndmask_b32 v{VT+6}, v{VT+6}, v{VT+7}, vcc
        v_add_u32 v{VW+j}, v{VT+6}, v{VT+4}
        """)
    for i in range(72):
        A(f"v_mov_b32 v{ACC+i}, 0")
    A(f"""
    s_waitcnt lgkmcnt(0)
    s_mov_b32 s28, s10
    s_and_b32 s29, s11, 0xffff
    s_mov_b32 s30, {WS_SIZE}
    s_mov_b32 s31, 0x20000
    s_mov_b32 s44, s14
    s_and_b32 s45, s15, 0xffff
    s_mov_b32 s46, 3456
    s_mov_b32 s47, 0x20000
    """)
    A(f"""
    s_mov_b32 s32, s98
    s_and_b32 s33, s99, 0xffff
    s_mov_b32 s34, 256
    s_mov_b32 s35, 0x20000
    s_mov_b32 s36, s96
    s_and_b32 s37, s97, 0xffff
    s_mov_b32 s38, {OUT_BYTES}
    s_mov_b32 s39, 0x20000
    s_and_b32 s60, s2, 7
    s_lshr_b32 s61, s2, 3
    s_lshl_b32 s20, s60, 2
    s_lshr_b32 s62, s61, 3
    s_add_u32 s20, s20, s62                ; t2
    s_and_b32 s21, s61, 7                  ; u2
    s_mul_i32 s60, s50, 9
    s_add_u32 s60, s60, 2
    s_mul_i32 s61, s50, 10
    s_cmp_lt_u32 s50, 2
    s_cselect_b32 s60, s61, s60            ; kb0
    s_mul_i32 s22, s20, 74
    s_add_u32 s22, s22, s60
    s_lshl_b32 s22, s22, 12
    s_mul_i32 s23, s21, 74
    s_add_u32 s23, s23, s60
    s_mul_i32 s23, s23, 5120
    s_add_u32 s23, s23, {WS_WF}
    s_and_b32 s60, s21, 3
    s_lshl_b32 s60, s60, 1
    s_and_b32 s61, s20, 7
    s_add_u32 s60, s60, s61
    s_sub_u32 s61, s60, 9
    s_cmp_ge_u32 s60, 9
    s_cselect_b32 s26, s61, s60
    s_mul_i32 s26, s26, {ROT2}
    s_cmp_lt_u32 s50, 2
    s_cselect_b32 s48, 10, 9
    s_add_u32 s27, s26, 2
    s_sub_u32 s60, s27, s48
    s_cmp_ge_u32 s27, s48
    s_cselect_b32 s27, s60, s27
    s_lshl_b32 s60, s26, 12
    s_add_u32 s22, s22, s60
    s_mul_i32 s60, s27, 5120
    s_add_u32 s23, s23, s60
    s_mul_i32 s24, s50, 5120
    s_cmp_eq_u32 s50, 0
    s_cselect_b32 s25, 7, 99
    s_lshr_b32 s60, s3, 5
    s_and_b32 s61, s3, 31
    s_lshl_b32 s62, s50, 5
    s_add_u32 s61, s61, s62
    s_mul_i32 s60, s60, 74
    s_add_u32 s60, s60, s61
    s_mul_i32 s60, s60, 5120
    s_add_u32 s40, s60, {WS_WF}
    s_cmp_lt_u32 s61, 74
    s_cselect_b32 s40, s40, 0x80000000
    s_add_u32 s41, s40, 4096
    s_mul_i32 s42, s50, 5120
    s_add_u32 s42, s42, {RL_BASE}
    s_lshl_b32 s60, s53, 4
    s_add_u32 s60, s60, s52
    s_lshl_b32 s60, s60, 2
    s_add_u32 s43, s60, {WS_G}
    s_cmp_eq_u32 s51, 1
    s_cselect_b32 s43, s43, 0x80000000
    """)
    if prefetch:
        A(f"""
        s_and_b32 s60, s2, 7
        s_lshr_b32 s61, s2, 3                  ; idx
        s_lshr_b32 s62, s60, 1                 ; cq
        s_and_b32 s60, s60, 1                  ; M half
        v_cmp_le_u32 vcc, 9, v{VL}
        v_subrev_u32 v{VT+1}, 9, v{VL}
        v_cndmask_b32 v{VT+1}, v{VL}, v{VT+1}, vcc
        s_cmp_lt_u32 s50, 4
        s_cbranch_scc0 {name}_pfW
        s_lshl_b32 s63, s61, 2
        s_add_u32 s63, s63, s50
        s_mul_i32 s63, s63, 9
        s_lshl_b32 s60, s60, 10
        s_add_u32 s63, s63, s60
        s_sub_u32 s63, s63, 16
        v_add_u32 v{VT+2}, s63, v{VT+1}
        v_max_i32 v{VT+2}, 0, v{VT+2}
        v_mul_u32_u24 v{VT+2}, 1280, v{VT+2}
        s_mov_b32 s68, s4
        s_and_b32 s69, s5, 0xffff
        s_mov_b32 s70, 2621440
        s_mov_b32 s72, 128
        s_branch {name}_pfgo
        {name}_pfW:
        s_lshl_b32 s63, s61, 1
        s_and_b32 s60, s50, 1
        s_add_u32 s63, s63, s60
        s_cmp_lt_u32 s50, 6
        s_cbranch_scc0 {name}_pfW1
        v_mul_u32_u24 v{VT+2}, 11, v{VT+1}
        v_lshrrev_b32 v{VT+2}, 5, v{VT+2}      ; grp = l9/3
        v_mul_u32_u24 v{VT+3}, 896, v{VT+2}    ; grp*(1280-384)
        v_lshl_add_u32 v{VT+2}, v{VT+1}, 7, v{VT+3}
        s_mul_i32 s60, s62, 320
        s_and_b32 s60, s60, 0xffffff80
        s_mul_i32 s63, s63, 3840
        s_add_u32 s60, s60, s63
        v_add_u32 v{VT+2}, s60, v{VT+2}
        s_mov_b32 s68, s6
        s_and_b32 s69, s7, 0xffff
        s_mov_b32 s70, 2457600
        s_mov_b32 s72, {64*3840}
        s_branch {name}_pfgo
        {name}_pfW1:
        s_mul_i32 s60, s62, 28
        s_lshr_b32 s72, s62, 1
        s_lshl_b32 s72, s72, 1
        s_sub_u32 s60, s60, s72
        s_lshl_b32 s60, s60, 5
        s_and_b32 s60, s60, 0xffffff80
        s_mul_i32 s63, s63, 3456
        s_add_u32 s60, s60, s63
        v_min_u32 v{VT+1}, 7, v{VT+1}
        v_lshlrev_b32 v{VT+2}, 7, v{VT+1}
        v_add_u32 v{VT+2}, s60, v{VT+2}
        s_mov_b32 s68, s12
        s_and_b32 s69, s13, 0xffff
        s_mov_b32 s70, 2211840
        s_mov_b32 s72, {64*3456}
        {name}_pfgo:
        s_mov_b32 s71, 0x20000
        v_mov_b32 v{VT+3}, 0x80000000
        v_add_u32 v{VT+4}, s72, v{VT+2}
        v_cndmask_b32 v{VT+4}, v{VT+2}, v{VT+4}, vcc
        v_cndmask_b32 v{VPF+1}, v{VT+2}, v{VT+3}, vcc
        v_cmp_le_u32 vcc, 18, v{VL}
        v_cndmask_b32 v{VT+4}, v{VT+4}, v{VT+3}, vcc
        s_mul_i32 s73, s72, {PF0}
        buffer_load_dword v{VPF}, v{VT+4}, s[68:71], s73 offen
        s_mul_i32 s73, s72, {PF0 + 2}
        s_mov_b32 s74, {PF0 + 2}
        """)
    A(f"""
    s_mov_b32 s76, 0
    s_mov_b32 s77, 0
    s_mov_b32 s49, {STAGE}
    """)
    classes = {"c4": (4, ()), "c4a": (4, (0, 1)), "c4b": (4, (2, 3)), "c4c": (4, (1,)),
               "c3a": (3, (0, 1)), "c3b": (3, (2,)), "c3": (2, ())}
    amap = {0: "c4", 1: "c4", 2: "c4a", 3: "c4b", 4: "c4b", 5: "c4c", 6: "c3a", 7: "c3b"}
    A(f"""
    s_cmp_eq_u32 s51, 0
    s_cbranch_scc1 {name}_dispA
    s_add_u32 s60, s58, s56
    s_cmp_lt_u32 s60, 3
    s_cbranch_scc1 {name}_c4
    s_branch {name}_c3
    {name}_dispA:
    """)
    for w in range(2, 8):
        A(f"s_cmp_eq_u32 s50, {w}\ns_cbranch_scc1 {name}_{amap[w]}")
    A(f"s_branch {name}_c4")

    def reads(fs, kk, nc, halo):
        out = []
        for j in range(nc):
            b = wfrag(fs, j)
            out.append(f"ds_read_b64_tr_b16 v[{b}:{b+1}], v{VW+j} offset:{kk*15360}")
            out.append(f"ds_read_b64_tr_b16 v[{b+2}:{b+3}], v{VW+j} offset:{kk*15360 + 3840}")
            if j == 0:
                for i in range(4):
                    out.append(f"ds_read_b128 {R(xfrag(fs, i))}, v{VXA+kk} offset:{i*2048}")
        if halo:
            out.append(f"ds_read_b128 {R(xfrag(fs, 4))}, v{VXH+kk}")
        return out

    def mfmas(fs, nc, halo):
        out = []
        for j in range(nc):
            for i in range(4):
                a = ACC + (i * 4 + j) * 4
                out.append(f"v_mfma_f32_16x16x32_bf16 {R(a)}, {R(wfrag(fs, j))}, {R(xfrag(fs, i))}, {R(a)}")
        for hi, j in enumerate(halo):
            a = ACC + (16 + hi) * 4
            out.append(f"v_mfma_f32_16x16x32_bf16 {R(a)}, {R(wfrag(fs, j))}, {R(xfrag(fs, 4))}, {R(a)}")
        return out

    def wdma(slot):
        return [f"s_add_u32 m0, s24, {slot*40960}"] + \
               [f"buffer_load_dwordx4 v{VLANE16}, s[28:31], s23 offen offset:{j*1024}{LD} lds" for j in range(4)] + \
               [f"s_add_u32 m0, s24, {slot*40960 + 4096}", "s_add_u32 s60, s23, 4096",
                f"buffer_load_dwordx4 v{VLANE16}, s[28:31], s60 offen{LD} lds",
                "s_add_u32 s23, s23, 5120", "s_add_u32 s27, s27, 1", "s_cmp_eq_u32 s27, s48",
                "s_cselect_b32 s60, s63, 0", "s_cselect_b32 s27, 0, s27", "s_sub_u32 s23, s23, s60"]

    A(f"""
    {name}_auxg:
    v_lshrrev_b32 v{F1}, 4, v{VL}
    v_lshlrev_b32 v{F1}, 3, v{F1}
    s_lshl_b32 s60, s59, 5
    s_add_u32 s60, s60, {BLDS}
    v_add_u32 v{F1}, s60, v{F1}
    ds_read_b64 v[{VBRAW}:{VBRAW+1}], v{F1}
    ds_read_b64 v[{VBRAW+2}:{VBRAW+3}], v{F1} offset:32
    ds_read_b64 v[{VBRAW+4}:{VBRAW+5}], v{F1} offset:64
    ds_read_b64 v[{VBRAW+6}:{VBRAW+7}], v{F1} offset:96
    s_cmp_eq_u32 s50, 3
    s_cbranch_scc0 {name}_auxret
    v_lshlrev_b32 v{F1}, 2, v{VL}
    v_add_u32 v{F1+1}, {GLDS}, v{F1}
    s_mov_b64 exec, 0xffff
    ds_read_b32 v{F1+2}, v{F1+1}
    s_waitcnt lgkmcnt(0)
    buffer_store_dword v{F1+2}, v{F1}, s[28:31], s43 offen{ST}
    s_mov_b64 exec, -1
    {name}_auxret:
    s_setpc_b64 s[88:89]
    """)
    for cname, (nc, halo) in classes.items():
        A(f"{name}_{cname}:")
        A("s_barrier")
        if stamp:
            A("s_memrealtime s[82:83]")
        for l in reads(F0, 0, nc, halo): A(l)
        lab = f"{name}_{cname}_loop"
        A(f"{lab}:")
        A("s_waitcnt lgkmcnt(0)")
        interleave(A, mfmas(F0, nc, halo), [[l] for l in reads(F1, 1, nc, halo)])
        A(f"""
        s_cmp_eq_u32 s77, {2*STAGE}
        s_cselect_b32 s78, {(-2*STAGE) & 0xffffffff}, s49
        s_add_u32 s77, s77, s78
        s_waitcnt lgkmcnt(0)
        s_barrier
        """)
        fill = [[f"v_add_u32 v{VW}, s78, v{VW}", f"v_add_u32 v{VXA}, s78, v{VXA}"]]
        f2 = [f"v_add_u32 v{VXA+1}, s78, v{VXA+1}"]
        if halo:
            f2.append(f"v_add_u32 v{VXH+1}, s78, v{VXH+1}")
        seq = []
        for l in reads(F0, 0, nc, halo):
            for j in range(1, nc):
                if f"v{VW+j} offset:0" in l and l.endswith("offset:0"):
                    seq.append(f"v_add_u32 v{VW+j}, s78, v{VW+j}")
            if halo and l.endswith(f"v{VXH}"):
                seq.append(f"v_add_u32 v{VXH}, s78, v{VXH}")
            seq.append(l)
        for k in range(0, len(seq), 2):
            fill.append(seq[k:k + 2])
        fill.append(f2)
        if prefetch:
            fill.append([f"buffer_load_dword v{VPF}, v{VPF+1}, s[68:71], s73 offen",
                         "s_add_u32 s73, s73, s72", "s_add_u32 s74, s74, 1", "s_cmp_lt_u32 s74, 10",
                         "s_cselect_b32 s73, s73, 0x80000000"])
        interleave(A, mfmas(F1, nc, halo), fill)
        A(f"""
        s_add_u32 s76, s76, 1
        s_cmp_eq_u32 s76, 9
        s_cbranch_scc0 {lab}_ng
        s_nop 7
        s_call_b64 s[88:89], {name}_auxg
        {lab}_ng:
        """)
        A(f"""
        s_cmp_lt_u32 s76, 10
        s_cbranch_scc1 {lab}
        """)
        A("s_waitcnt lgkmcnt(0)")
        A("s_setprio 2")
        if halo or cname == "c4":
            if cname == "c4":
                A(f"s_cmp_eq_u32 s51, 1\ns_cbranch_scc1 {name}_epiB4")
            A(f"""
            v_and_b32 v{VTA}, 15, v{VL}
            v_lshrrev_b32 v{VTA+1}, 4, v{VL}
            v_mul_u32_u24 v{VTA}, {RSQ}, v{VTA}
            v_lshl_add_u32 v{VTA}, v{VTA+1}, 3, v{VTA}
            s_lshl_b32 s60, s59, 5
            v_add_u32 v{VTA}, s60, v{VTA}
            s_lshl_b32 s60, s57, 2
            s_add_u32 s60, s60, 1
            s_mul_i32 s60, s60, {16*RSQ}
            v_add_u32 v{VTA+1}, s60, v{VTA}
            """)
            k = 0
            for j in range(nc):
                for i in range(4):
                    a = ACC + (i * 4 + j) * 4
                    t = F0 + 2 * k; k += 1
                    A(f"v_cvt_pk_bf16_f32 v{t}, v{a}, v{a+1}")
                    A(f"v_cvt_pk_bf16_f32 v{t+1}, v{a+2}, v{a+3}")
                    A(f"ds_write_b64 v{VTA+1}, v[{t}:{t+1}] offset:{i*16*RSQ + j*32}")
            for hi, j in enumerate(halo):
                a = ACC + (16 + hi) * 4
                t = F0 + 2 * k; k += 1
                A(f"v_cvt_pk_bf16_f32 v{t}, v{a}, v{a+1}")
                A(f"v_cvt_pk_bf16_f32 v{t+1}, v{a+2}, v{a+3}")
                A(f"ds_write_b64 v{VTA}, v[{t}:{t+1}] offset:{j*32}")
            A(f"s_branch {name}_attn")
        else:
            A(f"s_branch {name}_epiB3")

    A(f"{name}_attn:")
    mi, g = VTA, VTA + 1
    vQ, vK0, vK1, vV = VTA + 2, VTA + 3, VTA + 4, VTA + 5
    vmlo, vmhi, vsh = VTA + 6, VTA + 7, VTA + 8
    A(f"""
    v_and_b32 v{mi}, 15, v{VL}
    v_lshrrev_b32 v{g}, 4, v{VL}
    s_mul_i32 s60, s50, {16*RSQ}
    v_mul_u32_u24 v{vK0}, {RSQ}, v{mi}
    v_lshl_add_u32 v{vK0}, v{g}, 4, v{vK0}
    v_add_u32 v{vK0}, s60, v{vK0}
    v_add_u32 v{vQ}, {16*RSQ}, v{vK0}
    v_add_u32 v{vK0}, 160, v{vK0}
    v_add_u32 v{vK1}, 160, v{vQ}
    v_lshrrev_b32 v{VTA+9}, 2, v{mi}
    v_lshl_add_u32 v{VTA+9}, v{g}, 2, v{VTA+9}
    v_mul_u32_u24 v{vV}, {RSQ}, v{VTA+9}
    v_and_b32 v{VTA+9}, 3, v{mi}
    v_lshl_add_u32 v{vV}, v{VTA+9}, 3, v{vV}
    v_add_u32 v{vV}, s60, v{vV}
    v_add_u32 v{vV}, 320, v{vV}
    v_cmp_gt_u32 vcc, 3, v{g}
    v_cndmask_b32 v{vmlo}, 0, -1, vcc
    v_cmp_gt_u32 vcc, 2, v{g}
    v_cndmask_b32 v{vmhi}, 0, -1, vcc
    v_and_b32 v{VTA+9}, 1, v{mi}
    v_lshlrev_b32 v{vsh}, 4, v{VTA+9}
    v_cmp_eq_u32 s[60:61], 1, v{VTA+9}            ; Mpar
    v_lshrrev_b32 v{VTA+9}, 1, v{mi}              ; qe
    v_lshlrev_b32 v{VTA+10}, 1, v{g}
    v_cmp_le_u32 s[62:63], v{VTA+10}, v{VTA+9}
    v_add_u32 v{VTA+10}, 1, v{VTA+10}
    v_cmp_le_u32 s[64:65], v{VTA+10}, v{VTA+9}
    v_cmp_le_u32 s[70:71], 1, v{g}               ; Mg1
    v_cmp_le_u32 s[72:73], 2, v{g}               ; Mg2
    v_cmp_le_u32 s[74:75], 3, v{g}               ; Mg3
    s_add_u32 s76, s52, s50
    s_not_b64 s[66:67], s[62:63]
    s_not_b64 s[68:69], s[64:65]
    s_cmp_eq_u32 s76, 0
    s_cselect_b64 s[66:67], s[66:67], 0          ; Minv0
    s_cselect_b64 s[68:69], s[68:69], 0          ; Minv1
    s_waitcnt lgkmcnt(0)
    s_barrier
    """)
    Q = lambda h: 0 + 4 * h
    K0 = lambda h: 16 + 4 * h
    K1 = lambda h: 32 + 4 * h
    V = lambda b: 48 + 4 * b
    S0 = lambda h: 68 + 4 * h
    S1 = lambda h: 84 + 4 * h
    L = lambda h, t: 100 + 2 * h + t
    M = lambda h: 108 + h
    T = lambda h: 112 + h
    P = lambda h: 116 + 4 * h
    O = lambda n: 0 + 4 * n
    PK = 132
    for h in range(4):
        A(f"ds_read2_b64 {R(Q(h))}, v{vQ} offset0:{h*5} offset1:{h*5+1}")
        A(f"ds_read2_b64 {R(K0(h))}, v{vK0} offset0:{h*5} offset1:{h*5+1}")
        A(f"ds_read2_b64 {R(K1(h))}, v{vK1} offset0:{h*5} offset1:{h*5+1}")
    for h in range(4):
        A(f"s_waitcnt lgkmcnt({9 - 3*h})")
        q = Q(h)
        A(f"""
        v_and_b32 v{q}, v{q}, v{vmlo}
        v_and_b32 v{q+1}, v{q+1}, v{vmlo}
        v_and_b32 v{q+2}, v{q+2}, v{vmhi}
        v_and_b32 v{q+3}, v{q+3}, v{vmhi}
        v_mfma_f32_16x16x32_bf16 {R(S0(h))}, {R(K0(h))}, {R(q)}, 0
        v_mfma_f32_16x16x32_bf16 {R(S1(h))}, {R(K1(h))}, {R(q)}, 0
        """)
    for b in range(5):
        A(f"ds_read_b64_tr_b16 v[{V(b)}:{V(b)+1}], v{vV} offset:{b*32}")
        A(f"ds_read_b64_tr_b16 v[{V(b)+2}:{V(b)+3}], v{vV} offset:{b*32 + 16*RSQ}")
    A(f"s_mov_b32 s77, 0xffff0000")
    A(f"s_mov_b32 s78, {SCALE}")
    A(f"s_mov_b32 s79, 0xce6e6b28")
    A(f"v_mov_b32 v{VTA+11}, s79")
    Mc = ["s[62:63]", "s[64:65]"]; Minv = ["s[66:67]", "s[68:69]"]
    for h in range(4):
        for t in range(2):
            A(f"v_cndmask_b32 v{S0(h)+2*t}, v{S0(h)+2*t}, v{S0(h)+2*t+1}, s[60:61]")
            A(f"v_cndmask_b32 v{S1(h)+2*t}, v{S1(h)+2*t}, v{S1(h)+2*t+1}, s[60:61]")
    for h in range(4):
        for t in range(2):
            A(f"v_cndmask_b32 v{L(h,t)}, v{S0(h)+2*t}, v{S1(h)+2*t}, {Mc[t]}")
    for h in range(4):
        l0, l1, t_ = L(h, 0), L(h, 1), T(h)
        A(f"""
        v_cvt_pk_bf16_f32 v{t_}, v{l0}, v{l1}
        v_lshlrev_b32 v{l0}, 16, v{t_}
        v_and_b32 v{l1}, s77, v{t_}
        v_mul_f32 v{l0}, s78, v{l0}
        v_mul_f32 v{l1}, s78, v{l1}
        v_cvt_pk_bf16_f32 v{t_}, v{l0}, v{l1}
        v_lshlrev_b32 v{l0}, 16, v{t_}
        v_and_b32 v{l1}, s77, v{t_}
        v_cndmask_b32 v{l0}, v{l0}, v{VTA+11}, {Minv[0]}
        v_cndmask_b32 v{l1}, v{l1}, v{VTA+11}, {Minv[1]}
        v_max_f32 v{M(h)}, v{l0}, v{l1}
        """)
    for swap in ("v_permlane16_swap_b32", "v_permlane32_swap_b32"):
        for h in range(4):
            A(f"v_mov_b32 v{T(h)}, v{M(h)}")
        for h in range(4):
            A(f"{swap} v{T(h)}, v{M(h)}")
        for h in range(4):
            A(f"v_max_f32 v{M(h)}, v{M(h)}, v{T(h)}")
    A(f"s_mov_b32 s79, {LOG2E}")
    for h in range(4):
        for t in range(2):
            A(f"v_sub_f32 v{L(h,t)}, v{L(h,t)}, v{M(h)}")
    for h in range(4):
        for t in range(2):
            A(f"v_mul_f32 v{L(h,t)}, s79, v{L(h,t)}")
    for h in range(4):
        for t in range(2):
            A(f"v_exp_f32 v{L(h,t)}, v{L(h,t)}")
    for h in range(4):
        A(f"v_add_f32 v{M(h)}, v{L(h,0)}, v{L(h,1)}")
    for swap in ("v_permlane16_swap_b32", "v_permlane32_swap_b32"):
        for h in range(4):
            A(f"v_mov_b32 v{T(h)}, v{M(h)}")
        for h in range(4):
            A(f"{swap} v{T(h)}, v{M(h)}")
        for h in range(4):
            A(f"v_add_f32 v{M(h)}, v{M(h)}, v{T(h)}")
    for h in range(4):
        A(f"v_rcp_f32 v{M(h)}, v{M(h)}")
    for h in range(4):
        for t in range(2):
            A(f"v_mul_f32 v{L(h,t)}, v{L(h,t)}, v{M(h)}")
    for h in range(4):
        for t in range(2):
            A(f"v_cvt_pk_bf16_f32 v{L(h,t)}, v{L(h,t)}, 0")
    for h in range(4):
        for t in range(2):
            A(f"v_lshlrev_b32 v{L(h,t)}, v{vsh}, v{L(h,t)}")
    for h in range(4):
        for t in range(2):
            A(f"v_cndmask_b32 v{P(h)+t}, v{L(h,t)}, 0, {Mc[t]}")
            A(f"v_cndmask_b32 v{P(h)+2+t}, 0, v{L(h,t)}, {Mc[t]}")
    A("s_waitcnt lgkmcnt(0)")
    for h in range(4):
        for e in range(2):
            A(f"v_mfma_f32_16x16x32_bf16 {R(O(2*h+e))}, {R(V(h+e))}, {R(P(h))}, 0")
    Mg = {1: "s[70:71]", 2: "s[72:73]", 3: "s[74:75]"}
    A(f"""
    s_lshr_b32 s60, s50, 2
    s_lshl_b32 s61, s54, 1
    s_add_u32 s60, s60, s61              ; t
    s_mul_i32 s60, s60, 74
    s_mul_i32 s61, s53, 5
    s_lshr_b32 s61, s61, 1
    s_add_u32 s60, s60, s61              ; t*74 + kb0
    s_lshl_b32 s60, s60, 2
    s_and_b32 s61, s50, 3
    s_add_u32 s60, s60, s61
    s_lshl_b32 s60, s60, 10
    s_add_u32 s61, s60, 4096
    s_add_u32 s62, s60, 8192
    """)
    A(f"v_cvt_pk_bf16_f32 v{PK}, v{O(0)}, v{O(0)+1}")
    A(f"v_cvt_pk_bf16_f32 v{PK+1}, v{O(0)+2}, v{O(0)+3}")
    for b in (1, 2, 3):
        lo, hi = O(2 * (b - 1) + 1), O(2 * b)
        for r in range(4):
            A(f"v_cndmask_b32 v{lo+r}, v{lo+r}, v{hi+r}, {Mg[b]}")
        A(f"v_cvt_pk_bf16_f32 v{PK+2*b}, v{lo}, v{lo+1}")
        A(f"v_cvt_pk_bf16_f32 v{PK+2*b+1}, v{lo+2}, v{lo+3}")
    A(f"v_cvt_pk_bf16_f32 v{PK+8}, v{O(7)}, v{O(7)+1}")
    A(f"v_cvt_pk_bf16_f32 v{PK+9}, v{O(7)+2}, v{O(7)+3}")
    A(f"""
    v_lshlrev_b32 v{VTA}, 3, v{VL}
    s_and_b32 s63, s53, 1
    s_cmp_eq_u32 s63, 1
    s_cbranch_scc1 {name}_ostodd
    buffer_store_dwordx4 v[{PK}:{PK+3}], v{VLANE16}, s[28:31], s60 offen{ST}
    buffer_store_dwordx4 v[{PK+4}:{PK+7}], v{VLANE16}, s[28:31], s61 offen{ST}
    buffer_store_dwordx2 v[{PK+8}:{PK+9}], v{VTA}, s[28:31], s62 offen{ST}
    s_branch {name}_done
    {name}_ostodd:
    buffer_store_dwordx2 v[{PK}:{PK+1}], v{VTA}, s[28:31], s60 offen offset:512{ST}
    buffer_store_dwordx4 v[{PK+2}:{PK+5}], v{VLANE16}, s[28:31], s61 offen{ST}
    buffer_store_dwordx4 v[{PK+6}:{PK+9}], v{VLANE16}, s[28:31], s62 offen{ST}
    s_branch {name}_done
    """)

    def mish_blocks(blks):
        def each(f):
            for (a, bias, dst, t, h) in blks:
                A(f(a, bias, dst, t, h))
        A("s_set_gpr_idx_on s63, gpr_idx(SRC0)\ns_nop 1")
        each(lambda a, b, d, t, h: f"v_pk_add_f32 v[{h}:{h+1}], v[{a}:{a+1}], v[{b}:{b+1}]\n"
                                   f"v_pk_add_f32 v[{h+2}:{h+3}], v[{a+2}:{a+3}], v[{b+2}:{b+3}]")
        A("s_set_gpr_idx_off\ns_nop 1")
        each(lambda a, b, d, t, h: f"v_pk_mul_f32 v[{t}:{t+1}], v[{h}:{h+1}], s[78:79]\n"
                                   f"v_pk_mul_f32 v[{t+2}:{t+3}], v[{h+2}:{h+3}], s[78:79]")
        each(lambda a, b, d, t, h: "\n".join(f"v_exp_f32 v{t+r}, v{t+r}" for r in range(4)))
        each(lambda a, b, d, t, h: f"v_pk_add_f32 v[{t}:{t+1}], v[{t}:{t+1}], s[66:67]\n"
                                   f"v_pk_add_f32 v[{t+2}:{t+3}], v[{t+2}:{t+3}], s[66:67]")
        each(lambda a, b, d, t, h: f"v_pk_fma_f32 v[{t}:{t+1}], v[{t}:{t+1}], v[{t}:{t+1}], s[66:67]\n"
                                   f"v_pk_fma_f32 v[{t+2}:{t+3}], v[{t+2}:{t+3}], v[{t+2}:{t+3}], s[66:67]")
        each(lambda a, b, d, t, h: "\n".join(f"v_rcp_f32 v{t+r}, v{t+r}" for r in range(4)))
        each(lambda a, b, d, t, h: f"v_pk_fma_f32 v[{t}:{t+1}], v[{t}:{t+1}], v[{VC2}:{VC2+1}], s[66:67]\n"
                                   f"v_pk_fma_f32 v[{t+2}:{t+3}], v[{t+2}:{t+3}], v[{VC2}:{VC2+1}], s[66:67]")
        each(lambda a, b, d, t, h: f"v_pk_mul_f32 v[{t}:{t+1}], v[{t}:{t+1}], v[{h}:{h+1}]\n"
                                   f"v_pk_mul_f32 v[{t+2}:{t+3}], v[{t+2}:{t+3}], v[{h+2}:{h+3}]")
        each(lambda a, b, d, t, h: f"v_cvt_pk_bf16_f32 v{d}, v{t}, v{t+1}\nv_cvt_pk_bf16_f32 v{d+1}, v{t+2}, v{t+3}")

    def epiB_common():
        A(f"""
        s_mov_b32 s77, 0xffff0000
        s_mov_b32 s78, {LOG2E}
        s_mov_b32 s79, {LOG2E}
        s_mov_b32 s66, 1.0
        s_mov_b32 s67, 1.0
        v_mov_b32 v{VC2}, -2.0
        v_mov_b32 v{VC2+1}, -2.0
        s_add_u32 s60, s55, s59            ; fb0
        s_lshl_b32 s61, s54, 1
        s_add_u32 s61, s61, s57            ; t
        s_mul_i32 s61, s61, 74
        s_lshr_b32 s62, s60, 1
        s_add_u32 s61, s61, s62
        s_add_u32 s61, s61, 20
        s_lshl_b32 s61, s61, 12
        s_add_u32 s62, s61, 4096
        """)
        for j in range(4):
            A(f"v_lshlrev_b32 v{VBIAS+4*j}, 16, v{VBRAW+2*j}")
            A(f"v_and_b32 v{VBIAS+4*j+1}, s77, v{VBRAW+2*j}")
            A(f"v_lshlrev_b32 v{VBIAS+4*j+2}, 16, v{VBRAW+2*j+1}")
            A(f"v_and_b32 v{VBIAS+4*j+3}, s77, v{VBRAW+2*j+1}")

    def blk(i, j):
        return ACC + (i * 4 + j) * 4
    def mloop(tag, nc, doff, stores):
        d = VDB
        A(f"s_mov_b32 s63, 0\n{name}_ml{tag}:")
        mish_blocks([(blk(0, j), VBIAS + 4 * j, d + doff + 2 * j, VTB + 4 * j, VTB + 16 + 4 * j) for j in range(nc)])
        for l in stores(d): A(l)
        A(f"""
        s_add_u32 s61, s61, 1024
        s_add_u32 s62, s62, 1024
        s_add_u32 s63, s63, 16
        s_cmp_lt_u32 s63, 64
        s_cbranch_scc1 {name}_ml{tag}
        s_branch {name}_done
        """)
    A(f"{name}_epiB4:")
    epiB_common()
    mloop("4", 4, 0, lambda d: [f"buffer_store_dwordx4 v[{d}:{d+3}], v{VLANE16}, s[28:31], s61 offen{ST}",
                                f"buffer_store_dwordx4 v[{d+4}:{d+7}], v{VLANE16}, s[28:31], s62 offen{ST}"])
    A(f"{name}_epiB3:")
    epiB_common()
    mloop("2", 2, 0, lambda d: [f"buffer_store_dwordx4 v[{d}:{d+3}], v{VLANE16}, s[28:31], s61 offen{ST}"])

    A(f"{name}_done:")
    if stamp:
        A("s_memrealtime s[86:87]")
    A(f"""
    s_waitcnt vmcnt(0) lgkmcnt(0)
    s_setprio 0
    s_barrier
    """)
    if stamp:
        A("s_memrealtime s[84:85]")
    A(f"""
    s_lshl_b32 s62, s48, 12
    s_mul_i32 s63, s48, 5120
    """)
    A(f"""
    s_lshr_b32 s25, s20, 1
    s_lshl_b32 s25, s25, 8
    s_add_u32 s25, s25, {WS_FLAG}
    s_cmp_lt_u32 s50, 2
    s_cselect_b32 s61, 0, 8
    v_and_b32 v0, 15, v{VL}
    v_or_b32 v0, s61, v0
    v_lshlrev_b32 v0, 2, v0
    """)
    for l in wdma(0): A(l)
    A("buffer_load_dword v1, v0, s[28:31], s25 offen sc1")
    for l in wdma(1): A(l)
    A(f"""
    s_waitcnt vmcnt(5)
    s_mov_b32 s61, 0
    {name}_poll:
    v_cmp_ne_u32 vcc, 1, v1
    s_cbranch_vccz {name}_go
    s_add_u32 s61, s61, 1
    s_cmp_gt_u32 s61, 0x8000
    s_cbranch_scc1 {name}_go
    s_sleep 5
    buffer_load_dword v1, v0, s[28:31], s25 offen sc1
    s_waitcnt vmcnt(0)
    s_branch {name}_poll
    {name}_go:
    """)
    if stamp:
        A("s_memrealtime s[88:89]")
    AB = lambda b, i: (80 + 16 * b if b < 3 else 152) + 4 * i
    WB = lambda j: 128 + 4 * j
    V7, VL16, VA = 148, 149, 150
    V5 = 80
    NB = 4
    A(f"""
    s_lshl_b32 s60, s20, 6
    s_lshr_b32 s61, s50, 1
    s_lshl_b32 s61, s61, 4
    s_add_u32 s60, s60, s61
    v_and_b32 v{V5}, 15, v{VL}
    v_add_u32 v{V5}, s60, v{V5}
    v_lshlrev_b32 v{V7}, 2, v{V5}
    s_mov_b32 s61, {WS_G}
    buffer_load_dword v{V7}, v{V7}, s[28:31], s61 offen
    v_add_u32 v{VA}, s24, v{VLANE16}
    v_mov_b32 v{VL16}, v{VLANE16}
    v_add_u32 v{VA+1}, 0x14000, v{VA}
    s_lshl_b32 s62, s48, 12
    s_mul_i32 s63, s48, 5120
    """)

    def aloads(b, split=False):
        if split:
            ld = [f"v_lshrrev_b32 v{AB(b,i)}, 1, v{VL16}\n"
                  f"buffer_load_dwordx2 v[{AB(b,i)+2}:{AB(b,i)+3}], v{AB(b,i)}, s[28:31], s22 offen offset:{i*1024+512}\n"
                  f"buffer_load_dwordx2 v[{AB(b,i)}:{AB(b,i)+1}], v{AB(b,i)}, s[28:31], s22 offen offset:{i*1024}" for i in range(4)]
        else:
            ld = [f"buffer_load_dwordx4 {R(AB(b, i))}, v{VL16}, s[28:31], s22 offen offset:{i*1024}{LD}" for i in range(4)]
        return ld + \
               ["s_add_u32 s22, s22, 4096", "s_add_u32 s26, s26, 1", "s_cmp_eq_u32 s26, s48",
                "s_cselect_b32 s60, s62, 0", "s_cselect_b32 s26, 0, s26", "s_sub_u32 s22, s22, s60"]

    def body2(n):
        q = VQ()
        sp = lambda u: n == 10 and u % 5 == 2
        for i in range(NB - 1):
            for l in aloads(i, sp(i)): A(l)
            q.add(f"A{i}", 8 if sp(i) else 4)
        def wread(u, j):
            sl = (u + 2) % 4
            return f"ds_read_b128 {R(WB(j))}, v{VA + sl//2} offset:{(sl % 2) * 40960 + j * 1024}"
        for j in range(5): A(wread(0, j))
        for i in range(n):
            slot = (i + 2) % 4
            tags = [t for t in (f"A{i}", f"W{i+1}") if t in q.q]
            last = max(tags, key=lambda t: max(k for k, x in enumerate(q.q) if x == t))
            A(f"s_waitcnt vmcnt({q.wait_for(last)}) lgkmcnt(1)")
            al = []
            if i + NB - 1 < n:
                al = aloads((i + NB - 1) % NB, sp(i + NB - 1))
                al = [al[0:1], al[1:2], al[2:3], al[3:]]
                q.add(f"A{i+NB-1}", 8 if sp(i + NB - 1) else 4)
            wd = []
            if i + 4 < n:
                w = [l.replace(f'v{VLANE16},', f'v{VL16},') for l in wdma(slot)]
                wd = [w[0:2], w[2:3], w[3:4], w[4:5], w[5:]]
                q.add(f"W{i+4}", 5)
            for j in range(5):
                if j == 4:
                    A(f"s_waitcnt lgkmcnt({4 if i + 1 < n else 0})")
                for ii in range(4):
                    acc = R((ii * 5 + j) * 4)
                    A(f"v_mfma_f32_16x16x32_bf16 {acc}, {R(WB(j))}, {R(AB(i % NB, ii))}, {acc if i else 0}")
                    if j < 4 and ii == 1 and al:
                        for l in al[j]: A(l)
                    if j == 4 and wd:
                        for l in wd[ii]: A(l)
                if i + 1 < n:
                    A(wread(i + 1, j))
            if wd:
                for l in wd[4]: A(l)

    A(f"""
    s_cmp_lt_u32 s50, 2
    s_cbranch_scc0 {name}_b9
    """)
    body2(10)
    A(f"s_branch {name}_epi2")
    A(f"{name}_b9:")
    body2(9)
    A(f"{name}_epi2:")
    if stamp:
        A("s_memrealtime s[90:91]")
    for i in range(4):
        for j in range(5):
            A(f"ds_write_b128 v{VA + i//2}, {R((i*5+j)*4)} offset:{(i%2)*40960 + j*1024}")
    A(f"""
    s_lshr_b32 s60, s50, 1
    s_mul_i32 s60, s60, 40960
    s_and_b32 s61, s50, 1
    s_mul_i32 s62, s61, 3072
    s_add_u32 s60, s60, s62
    v_add_u32 v{VA}, s60, v{VL16}
    v_lshrrev_b32 v{VL}, 4, v{VL16}
    s_waitcnt lgkmcnt(0)
    s_barrier
    """)
    for jj in range(3):
        if jj == 2:
            A(f"s_cmp_eq_u32 s61, 1\ns_cbranch_scc1 {name}_rd_done")
        for w in range(8):
            b = (jj * 8 + w) * 4
            A(f"ds_read_b128 v[{b}:{b+3}], v{VA} offset:{jj*1024 + w*5120}")
    A(f"{name}_rd_done:")
    V9, V11, VO = 151, 154, 156
    A(f"""
    s_waitcnt vmcnt(0)
    v_sub_f32 v{V9}, 1.0, v{V7}
    v_cvt_pk_bf16_f32 v{V9}, v{V9}, v{V9}
    v_lshlrev_b32 v{V9}, 16, v{V9}
    s_lshl_b32 s60, s20, 6
    s_lshr_b32 s62, s50, 1
    s_lshl_b32 s62, s62, 4
    s_add_u32 s60, s60, s62
    v_and_b32 v{V11}, 15, v{VL}
    v_add_u32 v{V11}, s60, v{V11}
    v_lshrrev_b32 v{VO}, 4, v{VL}
    v_mul_u32_u24 v{V11}, 1280, v{V11}
    v_lshl_add_u32 v{V11}, v{VO}, 3, v{V11}
    s_mul_i32 s60, s21, 160
    s_mul_i32 s62, s61, 96
    s_add_u32 s60, s60, s62
    s_mov_b32 s62, 0xffff0000
    s_waitcnt lgkmcnt(0)
    """)
    for jj in range(3):
        if jj == 2:
            A(f"s_cmp_eq_u32 s61, 1\ns_cbranch_scc1 {name}_fin")
        base = jj * 32
        a0, a1, b1 = base, base + 4, base + 8
        pk = lambda op, d, x, y: A(f"{op} v[{d}:{d+1}], v[{x}:{x+1}], v[{y}:{y+1}]")
        for h in (0, 2):
            pk("v_pk_add_f32", a0 + h, a0 + h, a1 + h)
            pk("v_pk_add_f32", b1 + h, b1 + h, b1 + 4 + h)
            pk("v_pk_add_f32", b1 + 8 + h, b1 + 8 + h, b1 + 12 + h)
            pk("v_pk_add_f32", b1 + 16 + h, b1 + 16 + h, b1 + 20 + h)
        for h in (0, 2):
            pk("v_pk_add_f32", b1 + h, b1 + h, b1 + 8 + h)
        for h in (0, 2):
            pk("v_pk_add_f32", b1 + h, b1 + h, b1 + 16 + h)
        for p in range(2):
            ra, rb = a0 + 2 * p, b1 + 2 * p
            t0, t1 = b1 + 8 + 2 * p, b1 + 12 + 2 * p
            A(f"""
            v_cvt_pk_bf16_f32 v{t0}, v{ra}, v{ra+1}
            v_cvt_pk_bf16_f32 v{t1}, v{rb}, v{rb+1}
            v_lshlrev_b32 v{ra}, 16, v{t0}
            v_and_b32 v{ra+1}, s62, v{t0}
            v_lshlrev_b32 v{rb}, 16, v{t1}
            v_and_b32 v{rb+1}, s62, v{t1}
            v_mul_f32 v{ra}, v{V7}, v{ra}
            v_mul_f32 v{ra+1}, v{V7}, v{ra+1}
            v_fmac_f32 v{ra}, v{V9}, v{rb}
            v_fmac_f32 v{ra+1}, v{V9}, v{rb+1}
            v_cvt_pk_bf16_f32 v{VO+2*jj+p}, v{ra}, v{ra+1}
            """)
        A(f"buffer_store_dwordx2 v[{VO+2*jj}:{VO+2*jj+1}], v{V11}, s[36:39], s60 offen offset:{jj*32}")
    A(f"{name}_fin:")
    if stamp:
        A(f"""
        s_waitcnt vmcnt(0)
        s_memrealtime s[94:95]
        s_waitcnt lgkmcnt(0)
        v_mov_b32 v16, s80
        v_mov_b32 v17, s94
        v_mov_b32 v18, s82
        v_mov_b32 v19, s84
        v_mov_b32 v20, s86
        v_mov_b32 v21, s88
        v_mov_b32 v22, s90
        v_mov_b32 v23, 0
        s_lshl_b32 s60, s2, 3
        s_add_u32 s60, s60, s50
        s_lshl_b32 s60, s60, 5
        s_add_u32 s60, s60, {WS_STAMP}
        v_mov_b32 v14, 0
        buffer_store_dwordx4 v[16:19], v14, s[28:31], s60 offen
        buffer_store_dwordx4 v[20:23], v14, s[28:31], s60 offen offset:16
        """)
    A(f"{name}_exit:")
    A("s_endpgm")


def desc(name):
    return f"""
.section .rodata,"a"
.p2align 6
.amdhsa_kernel {name}
  .amdhsa_next_free_vgpr 168
  .amdhsa_next_free_sgpr 102
  .amdhsa_accum_offset 168
  .amdhsa_group_segment_fixed_size 0
  .amdhsa_kernarg_size 88
  .amdhsa_user_sgpr_count 2
  .amdhsa_user_sgpr_kernarg_segment_ptr 1
  .amdhsa_system_sgpr_workgroup_id_x 1
.end_amdhsa_kernel
"""


if __name__ == "__main__":
    import sys
    NAME = "gated_mix__sliding_local_dilated__dense_activation_mish__prompt"
    out = f"cdna_kernels/{NAME}.s"
    for a in sys.argv[1:]:
        if a.endswith(".s"): out = a
    A = Asm()
    A.raw(f"; @launch grid=(256,1,1) block=({NWAVE*64},1,1) lds={P1_LDS}")
    A.raw('.amdgcn_target "amdgcn-amd-amdhsa--gfx950"')
    if "norot" in sys.argv: ROT = 0
    for a in sys.argv:
        if a.startswith("common="): COMMON = int(a[7:])
    if "notouch" in sys.argv: WTOUCH = 0
    gen_fused(A, NAME + "_kernel", stamp="stamp" in sys.argv, prefetch="pf" in sys.argv)
    open(out, "w").write(A.finish() + desc(NAME + "_kernel"))
    print("wrote", out)
```

```python
from asmlib import Asm

WS_ACT, WS_WF, WS_G = 0, 0xA00000, 0xE00000
WS_SIZE = 0x1000000
WS_STAMP = 0xF00000
WS_FLAG = 0xE80000
WS_FLAG2 = 0xE90000
OUT_BYTES = 2048 * 640 * 2
P1_LDS = 160 * 1024
STAGE = 49152
XREG = 18432
RL_BASE = 3 * STAGE
GLDS = RL_BASE + 15360
BLDS = GLDS + 64
RSQ = 488
LOG2E = 0x3fb8aa3b
SCALE = 0x3e64f92e

ACC = 0
F0 = 72
F1 = 108
VW = 144
VXA = 148
VXH = 150
VLANE16 = 152
VL = 153
VBRAW = 154
VPF = 162
VC2 = 164
VT = 72
VTA = 154
VBIAS = 72
VTB = 88
VDB = 120
VDMA = 4
HT = 8
HF = 100
NWAVE = 12
ROT = 1
ROT2 = 0
COMMON = 0
WTOUCH = 0
PF0 = 2


def xfrag(fs, i):
    return fs + 4 * i
def wfrag(fs, j):
    return fs + 20 + 4 * j
def R(b, n=4):
    return "v[%d:%d]" % (b, b + n - 1)


def interleave(A, mf, fillers):
    n = len(mf)
    for mi, m in enumerate(mf):
        A(m)
        if mi < len(fillers):
            for l in fillers[mi]: A(l)
    for g in fillers[n:]:
        for l in g: A(l)


class VQ:
    def __init__(self): self.q = []
    def add(self, tag, n): self.q += [tag] * n
    def wait_for(self, tag):
        last = max(i for i, t in enumerate(self.q) if t == tag)
        n = len(self.q) - 1 - last
        self.q = self.q[last + 1:]
        return n


def gen_fused(A, name, stamp=False, prefetch=False):
    ST = " sc1"
    LD = ""
    A(f"""
.text
.globl {name}
.p2align 8
.type {name},@function
{name}:
    s_cmp_ge_u32 s2, 256
    s_cbranch_scc1 {name}_exit
    """)
    if stamp:
        A("s_memrealtime s[80:81]")
        A("s_memtime s[92:93]")
    A(f"""
    s_load_dwordx4 s[96:99], s[0:1], 64
    s_load_dwordx4 s[4:7], s[0:1], 0
    s_load_dwordx2 s[8:9], s[0:1], 16
    s_load_dwordx2 s[10:11], s[0:1], 80
    s_load_dwordx4 s[12:15], s[0:1], 32
    s_load_dwordx4 s[16:19], s[0:1], 48
    v_lshrrev_b32 v1, 6, v0
    v_and_b32 v{VL}, 63, v0
    v_readfirstlane_b32 s50, v1
    v_lshlrev_b32 v{VLANE16}, 4, v{VL}
    s_and_b32 s60, s2, 7
    s_lshr_b32 s61, s2, 3
    s_and_b32 s62, s60, 1
    s_lshl_b32 s62, s62, 3
    s_and_b32 s63, s61, 7
    s_add_u32 s54, s62, s63            ; s54 = mt (0..15)
    s_lshl_b32 s52, s54, 7             ; s52 = m0
    s_lshr_b32 s62, s60, 1             ; cq
    s_lshr_b32 s63, s61, 3             ; cl
    s_lshr_b32 s51, s63, 1             ; s51 = type (0=A,1=B)
    s_and_b32 s63, s63, 1
    s_lshl_b32 s62, s62, 1
    s_add_u32 s53, s62, s63
    s_mul_i32 s55, s53, 14
    s_lshr_b32 s62, s53, 2
    s_lshl_b32 s62, s62, 1
    s_sub_u32 s55, s55, s62
    s_and_b32 s62, s53, 3
    s_cmp_eq_u32 s62, 3
    s_cselect_b32 s56, 1, 0
    s_and_b32 s57, s50, 1              ; s57 = mh
    s_lshr_b32 s58, s50, 1             ; s58 = ng
    s_mov_b32 s64, 3456
    s_cmp_eq_u32 s51, 0
    s_cselect_b32 s64, 3840, s64
    s_cselect_b32 s65, 1152, 0
    s_mul_i32 s62, s53, 160
    s_mul_i32 s63, s55, 32
    s_cselect_b32 s66, s62, s63
    s_lshl_b32 s62, s56, 1
    s_sub_u32 s62, 14, s62
    s_cmp_eq_u32 s51, 0
    s_cselect_b32 s67, 64, s62
    s_lshl_b32 s68, s64, 6
    s_lshl_b32 s3, s54, 4
    s_lshl_b32 s60, s51, 3
    s_add_u32 s3, s3, s60
    s_add_u32 s3, s3, s53
    s_cmp_ge_u32 s50, 4
    s_cbranch_scc1 {name}_compute
    s_setprio 3
    v_mov_b32 v{HF}, 0
    s_lshl_b32 s60, s50, 4
    s_mul_i32 s72, s60, s64
    s_lshl_b32 s61, s64, 1
    s_add_u32 s73, s72, s61            ; +2
    s_lshl_b32 s62, s64, 3
    s_add_u32 s74, s72, s62            ; +8
    s_add_u32 s75, s74, s61            ; +10
    s_lshl_b32 s63, s64, 2
    s_add_u32 s76, s72, s63            ; +4
    s_add_u32 s77, s76, s61            ; +6
    s_add_u32 s78, s74, s63            ; +12
    s_add_u32 s79, s78, s61            ; +14
    s_lshl_b32 s60, s50, 5
    s_add_u32 s60, s60, s52
    s_mul_i32 s20, s60, 1280
    s_sub_u32 s60, s52, 16
    s_lshl_b32 s61, s50, 3
    s_add_u32 s60, s60, s61
    s_mul_i32 s22, s60, 1280
    s_cmp_eq_u32 s52, 0
    s_cselect_b32 s22, 0x80000000, s22
    s_mov_b32 s90, -1
    s_mov_b32 s91, 0x0fffffff
    s_mul_i32 s71, s50, 7680
    s_add_u32 s71, s71, {XREG}
    s_lshl_b32 s23, s50, 12
    s_add_u32 s23, s23, 2048
    s_lshl_b32 s48, s50, 10
    s_lshl_b32 s60, s51, 1
    s_add_u32 s60, s60, s50
    s_cmp_lt_u32 s60, 2
    s_cselect_b32 s70, 1, 0
    s_cmp_eq_u32 s51, 0
    s_cselect_b32 s62, 12, 14
    s_and_b32 s63, s53, 1
    s_cselect_b32 s63, s63, 0
    s_cmp_eq_u32 s51, 0
    s_cselect_b32 s63, s63, 0
    s_lshl_b32 s60, s62, 1
    v_lshrrev_b32 v{HT}, 1, v{VL}                    ; pos
    v_cmp_le_u32 vcc, s62, v{HT}
    v_subrev_u32 v{HT+1}, s62, v{HT}
    v_xor_b32 v{HT+1}, 1, v{HT+1}
    v_cndmask_b32 v{HT+1}, v{HT}, v{HT+1}, vcc
    v_cndmask_b32 v{HT+2}, 0, 1, vcc                 ; parity
    v_lshrrev_b32 v{HT+3}, 2, v{HT+1}
    v_mul_u32_u24 v{HT+3}, s65, v{HT+3}
    v_lshl_add_u32 v{HT+3}, v{HT+1}, 5, v{HT+3}
    s_lshl_b32 s61, s63, 5
    v_add_u32 v{HT+3}, s61, v{HT+3}
    ; singles (type A): q = pos-24 (0..5): parity = q>=3, grp = q%3, e = hgpar?0:4
    v_subrev_u32 v{HT+4}, 24, v{HT}
    v_cmp_le_u32 vcc, 3, v{HT+4}
    v_subrev_u32 v{HT+5}, 3, v{HT+4}
    v_cndmask_b32 v{HT+4}, v{HT+4}, v{HT+5}, vcc
    v_cndmask_b32 v{HT+5}, 0, 1, vcc
    v_mul_u32_u24 v{HT+4}, 1280, v{HT+4}
    s_lshl_b32 s61, s63, 7
    s_sub_u32 s61, 128, s61
    v_add_u32 v{HT+4}, s61, v{HT+4}
    v_cmp_le_u32 vcc, s60, v{HT}
    v_cndmask_b32 v{HT+3}, v{HT+3}, v{HT+4}, vcc
    v_cndmask_b32 v{HT+2}, v{HT+2}, v{HT+5}, vcc
    v_mul_u32_u24 v{HT+2}, s64, v{HT+2}
    v_and_b32 v{HT+4}, 1, v{VL}
    v_lshl_add_u32 v{HT+3}, v{HT+4}, 4, v{HT+3}
    v_add3_u32 v{HT+1}, v{HT+2}, v{HT+3}, s66        ; offset
    s_cmp_eq_u32 s51, 0
    s_cselect_b32 s60, 64, s60
    v_cmp_le_u32 vcc, s60, v{HT}
    v_mov_b32 v{HT+2}, 0x80000000
    v_cndmask_b32 v{HT+1}, v{HT+1}, v{HT+2}, vcc
    v_cmp_le_u32 vcc, s62, v{HT}
    v_subrev_u32 v{HT+4}, s62, v{HT}
    v_cndmask_b32 v{HT+4}, v{HT}, v{HT+4}, vcc
    v_cmp_le_u32 vcc, s67, v{HT+4}
    v_lshrrev_b32 v{HT+3}, 3, v{VL}
    v_cndmask_b32 v{VDMA}, v{HT+1}, v{HT+2}, vcc
    v_mul_u32_u24 v{HT+3}, 1280, v{HT+3}
    v_and_b32 v{HT+1}, 7, v{VL}
    v_lshrrev_b32 v{HT+2}, 4, v{VL}
    v_xor_b32 v{HT+1}, v{HT+1}, v{HT+2}
    v_lshl_add_u32 v{VDMA+1}, v{HT+1}, 4, v{HT+3}
    v_xor_b32 v{VDMA+2}, 64, v{VDMA+1}
    v_mov_b32 v{VDMA+3}, v{VDMA+1}
    s_cmp_eq_u32 s50, 1
    s_cbranch_scc0 {name}_h0
    v_mov_b32 v{VDMA+3}, v{VDMA+2}
    {name}_h0:
    s_waitcnt lgkmcnt(0)
    s_mov_b32 s36, s4
    s_and_b32 s37, s5, 0xffff
    s_mov_b32 s38, 2621440
    s_mov_b32 s39, 0x20000
    s_mov_b32 s26, 2211840
    s_cmp_eq_u32 s51, 0
    s_cselect_b32 s24, s6, s12
    s_cselect_b32 s25, s7, s13
    s_cselect_b32 s26, 2457600, s26
    s_and_b32 s25, s25, 0xffff
    s_mov_b32 s27, 0x20000
    s_mov_b32 s28, s10
    s_and_b32 s29, s11, 0xffff
    s_mov_b32 s30, {WS_SIZE}
    s_mov_b32 s31, 0x20000
    s_mov_b32 s40, s18
    s_and_b32 s41, s19, 0xffff
    s_mov_b32 s42, 1280
    s_mov_b32 s43, 0x20000
    s_mov_b32 s21, 0
    s_lshl_b32 s67, s64, 6
    s_lshr_b32 s60, s2, 6              ; cl
    s_mul_i32 s60, s60, 5
    s_lshr_b32 s60, s60, 1
    s_and_b32 s61, s54, 7
    s_add_u32 s60, s60, s61
    s_lshr_b32 s61, s61, 2
    s_add_u32 s60, s60, s61
    s_sub_u32 s61, s60, {10-COMMON}
    s_cmp_ge_u32 s60, {10-COMMON}
    s_cselect_b32 s60, s61, s60
    s_sub_u32 s61, s60, {10-COMMON}
    s_cmp_ge_u32 s60, {10-COMMON}
    s_cselect_b32 s60, s61, s60
    s_mul_i32 s60, s60, {ROT}
    s_add_u32 s45, s60, {COMMON}
    s_mov_b32 s44, {"0" if COMMON else "s45"}
    s_lshl_b32 s60, s44, 7
    s_add_u32 s20, s20, s60
    s_add_u32 s22, s22, s60
    s_mul_i32 s60, s44, s67
    s_add_u32 s72, s72, s60
    s_add_u32 s73, s73, s60
    s_add_u32 s74, s74, s60
    s_add_u32 s75, s75, s60
    s_add_u32 s76, s76, s60
    s_add_u32 s77, s77, s60
    s_add_u32 s78, s78, s60
    s_add_u32 s79, s79, s60
    s_mov_b32 s66, 0
    s_and_b32 s63, s3, 31
    s_lshl_b32 s60, s50, 5
    s_add_u32 s63, s63, s60                ; kb
    s_mov_b32 s34, 2211840
    s_cmp_lt_u32 s63, 20
    s_cselect_b32 s32, s8, s16
    s_cselect_b32 s33, s9, s17
    s_cselect_b32 s34, 819200, s34
    s_cselect_b32 s60, 0, 20
    s_sub_u32 s60, s63, s60
    s_mul_i32 s60, s60, 40960
    s_lshr_b32 s61, s3, 5
    s_mul_i32 s61, s61, 160
    s_add_u32 s62, s60, s61
    s_cmp_lt_u32 s63, 74
    s_cselect_b32 s62, s62, 0x80000000
    s_lshl_b32 s60, s55, 5
    s_cmp_eq_u32 s50, 3
    s_cselect_b32 s32, s14, s32
    s_cselect_b32 s33, s15, s33
    s_cselect_b32 s34, 3456, s34
    s_cselect_b32 s62, s60, s62
    s_and_b32 s33, s33, 0xffff
    s_mov_b32 s35, 0x20000
    s_lshr_b32 s60, s3, 5
    s_mul_i32 s60, s60, 74
    s_add_u32 s60, s60, s63
    s_mul_i32 s60, s60, 5120
    s_add_u32 s64, s60, {WS_WF}
    s_cmp_lt_u32 s63, 74
    s_cselect_b32 s64, s64, 0x80000000
    s_add_u32 s65, s64, 4096
    s_mul_i32 s63, s50, 5120
    s_add_u32 s63, s63, {RL_BASE + 0}
    s_lshl_b32 s60, s53, 4
    s_add_u32 s60, s60, s52
    s_lshl_b32 s61, s50, 2
    s_add_u32 s49, s60, s61
    s_cmp_eq_u32 s70, 1
    s_cbranch_scc1 {name}_hA
    s_cmp_eq_u32 s51, 0
    s_cbranch_scc1 {name}_hC
    s_branch {name}_hB
    """)

    def dma_sub(halo):
        A(f"{name}_dma{int(halo)}:")
        A(f"""
        s_add_u32 s66, s66, 1
        s_add_u32 s46, s44, 1
        s_cmp_eq_u32 s46, 10
        s_cselect_b32 s46, {COMMON}, s46
        s_cmp_eq_u32 s66, {COMMON}
        s_cselect_b32 s46, s45, s46
        s_sub_u32 s47, s46, s44
        s_mov_b32 s44, s46
        s_mul_i32 s46, s47, s67
        s_lshl_b32 s47, s47, 7
        """)
        A("s_add_u32 s68, s23, s21")
        for i in range(4):
            A(f"""
            s_add_u32 s69, s20, {i*10240}
            s_add_u32 m0, s68, {i*1024}
            buffer_load_dwordx4 v{VDMA+1+(i&1)}, s[36:39], s69 offen lds
            """)
        if halo:
            A(f"""
            s_add_u32 m0, s48, s21
            buffer_load_dwordx4 v{VDMA+3}, s[36:39], s22 offen lds
            s_add_u32 s22, s22, s47
            """)
        A("s_add_u32 s68, s71, s21")
        A("s_mov_b64 exec, s[90:91]")
        for i in range(8):
            A(f"""
            s_add_u32 m0, s68, {i*960}
            buffer_load_dwordx4 v{VDMA}, s[24:27], s{72+i} offen lds
            s_add_u32 s{72+i}, s{72+i}, s46
            """)
        A("s_mov_b64 exec, -1")
        A(f"""
        s_add_u32 s20, s20, s47
        s_add_u32 s21, s21, {STAGE}
        s_cmp_eq_u32 s21, {3*STAGE}
        s_cselect_b32 s21, 0, s21
        s_setpc_b64 s[88:89]
        """)
    dma_sub(False)
    dma_sub(True)

    GX = HT + 8
    G = [HT + 36 + r for r in range(4)]
    T2 = HT + 40

    def early_aux():
        A(f"""
        s_cmp_eq_u32 s50, 3
        s_cbranch_scc0 {name}_ea_end{early_aux.n}
        s_mov_b32 m0, {BLDS}
        s_mov_b64 exec, 0xffffffff
        buffer_load_dwordx4 v{VLANE16}, s[32:35], s62 offen lds
        s_lshr_b32 s60, s3, 4
        s_lshl_b32 s60, s60, 8
        s_and_b32 s61, s3, 15
        s_lshl_b32 s61, s61, 2
        s_add_u32 s60, s60, s61
        s_add_u32 s60, s60, {WS_FLAG}
        v_mov_b32 v{HT+1}, 0
        s_mov_b64 exec, 1
        buffer_store_dword v{HT+1}, v{HT+1}, s[28:31], s60 offen sc1
        s_lshl_b32 s60, s3, 2
        s_add_u32 s60, s60, {WS_FLAG2}
        buffer_store_dword v{HT+1}, v{HT+1}, s[28:31], s60 offen sc1
        s_mov_b64 exec, -1
        {name}_ea_end{early_aux.n}:
        """)
        early_aux.n += 1
    early_aux.n = 0

    def rl_store(tag):
        A(f"""
        v_lshrrev_b32 v{HT}, 2, v{VL}
        v_mul_u32_u24 v{HT}, 160, v{HT}
        v_and_b32 v{HT+1}, 3, v{VL}
        v_lshl_add_u32 v{HT}, v{HT+1}, 3, v{HT}
        v_add_u32 v{HT}, s63, v{HT}
        """)
        for j in range(5):
            b = HT + 64 + 4 * j
            A(f"ds_read_b64_tr_b16 v[{b}:{b+1}], v{HT} offset:{j*32}")
            A(f"ds_read_b64_tr_b16 v[{b+2}:{b+3}], v{HT} offset:{j*32 + 2560}")
        A("s_waitcnt lgkmcnt(0)")
        for j in range(5):
            b = HT + 64 + 4 * j
            if j < 4:
                A(f"buffer_store_dwordx4 v[{b}:{b+3}], v{VLANE16}, s[28:31], s64 offen offset:{j*1024}{ST}")
            else:
                A(f"buffer_store_dwordx4 v[{b}:{b+3}], v{VLANE16}, s[28:31], s65 offen{ST}")
        return 5

    def aux_loads(rl):
        A(f"""
        s_mul_i32 s61, s49, 1280
        s_add_u32 s60, s61, 2560
        v_lshlrev_b32 v{HT}, 2, v{VL}
        """)
        for r in range(4):
            so = "s61" if r < 2 else "s60"
            A(f"buffer_load_dwordx4 v[{GX+4*r}:{GX+4*r+3}], v{VLANE16}, s[36:39], {so} offen offset:{(r%2)*1280}")
            A(f"buffer_load_dword v{GX+20+r}, v{HT}, s[36:39], {so} offen offset:{(r%2)*1280 + 1024}")
        A(f"""
        buffer_load_dwordx4 v[{GX+16}:{GX+19}], v{VLANE16}, s[40:43], 0 offen
        buffer_load_dword v{GX+24}, v{HT}, s[40:43], 0 offen offset:1024
        """)
        return 10

    def aux_proc(rl):
        A("s_mov_b32 s68, 0xffff0000")
        for r in range(4):
            for i in range(5):
                x = GX + 4 * r + i if i < 4 else GX + 20 + r
                gw = GX + 16 + i if i < 4 else GX + 24
                t = T2 + 4 * i
                A(f"""
                v_lshlrev_b32 v{t}, 16, v{x}
                v_and_b32 v{t+1}, s68, v{x}
                v_lshlrev_b32 v{t+2}, 16, v{gw}
                v_and_b32 v{t+3}, s68, v{gw}
                v_pk_mul_f32 v[{t}:{t+1}], v[{t}:{t+1}], v[{t+2}:{t+3}]
                v_cvt_pk_bf16_f32 v{t}, v{t}, v{t+1}
                v_and_b32 v{t+1}, s68, v{t}
                v_lshlrev_b32 v{t}, 16, v{t}
                """)
            A(f"""
            v_pk_add_f32 v[{T2}:{T2+1}], v[{T2}:{T2+1}], v[{T2+4}:{T2+5}]
            v_pk_add_f32 v[{T2+8}:{T2+9}], v[{T2+8}:{T2+9}], v[{T2+12}:{T2+13}]
            v_pk_add_f32 v[{T2}:{T2+1}], v[{T2}:{T2+1}], v[{T2+16}:{T2+17}]
            v_pk_add_f32 v[{T2}:{T2+1}], v[{T2}:{T2+1}], v[{T2+8}:{T2+9}]
            v_add_f32 v{G[r]}, v{T2}, v{T2+1}
            """)
        for sh in (1, 2, 4, 8):
            for r in range(4):
                A(f"v_add_f32_dpp v{G[r]}, v{G[r]}, v{G[r]} row_ror:{sh} row_mask:0xf bank_mask:0xf")
        for swap in ("v_permlane16_swap_b32", "v_permlane32_swap_b32"):
            for r in range(4):
                A(f"v_mov_b32 v{T2+r}, v{G[r]}")
            for r in range(4):
                A(f"{swap} v{T2+r}, v{G[r]}")
            for r in range(4):
                A(f"v_add_f32 v{G[r]}, v{G[r]}, v{T2+r}")
        for op in ("v_cvt_pk_bf16_f32 v{0}, v{0}, v{0}", "v_lshlrev_b32 v{0}, 16, v{0}", "v_mul_f32 v{0}, 0xbfb8aa3b, v{0}",
                   "v_exp_f32 v{0}, v{0}", "v_add_f32 v{0}, 1.0, v{0}", "v_rcp_f32 v{0}, v{0}",
                   "v_cvt_pk_bf16_f32 v{0}, v{0}, v{0}", "v_lshlrev_b32 v{0}, 16, v{0}"):
            for r in range(4):
                A(op.format(G[r]))
        A(f"""
        s_lshl_b32 s60, s50, 4
        s_add_u32 s60, s60, {GLDS}
        v_mov_b32 v{HT}, s60
        s_mov_b64 exec, 1
        ds_write_b128 v{HT}, v[{G[0]}:{G[3]}]
        s_mov_b64 exec, -1
        s_waitcnt lgkmcnt(0)
        """)

    for var, halo, gate in (("hA", True, False), ("hC", False, False), ("hB", False, True)):
        nd = 13 if halo else 12
        q = VQ()
        A(f"{name}_{var}:")
        def D(k):
            A(f"s_call_b64 s[88:89], {name}_dma{int(halo)}")
            q.add(f"D{k}", nd)
        def B(k):
            A(f"s_waitcnt vmcnt({q.wait_for(f'D{k}')})")
            A("s_barrier")
        D(0); D(1); B(0)
        D(2); early_aux(); B(1)
        D(3); B(2)
        D(4); B(3)
        if not halo:
            A(f"""
            s_cmp_eq_u32 s50, 3
            s_cbranch_scc0 {name}_nordy{var}
            s_mov_b32 s32, s98
            s_and_b32 s33, s99, 0xffff
            s_mov_b32 s34, 256
            s_mov_b32 s35, 0x20000
            v_mov_b32 v{HT+1}, 1
            v_mov_b32 v{HT+2}, 0
            s_mov_b64 exec, 1
            buffer_store_byte v{HT+1}, v{HT+2}, s[32:35], s3 offen sc1
            s_mov_b64 exec, -1
            {name}_nordy{var}:
            """)
        D(5); B(4)
        D(6)
        if gate: q.add("aux", aux_loads(False))
        B(5)
        D(7); B(6)
        A(f"""
        s_cmp_eq_u32 s50, 1
        s_cbranch_scc0 {name}_nowf{var}
        v_mov_b32 v{HT+1}, 1
        v_mov_b32 v{HT+2}, 0
        s_lshl_b32 s60, s3, 2
        s_add_u32 s60, s60, {WS_FLAG2}
        s_mov_b64 exec, 1
        buffer_store_dword v{HT+1}, v{HT+2}, s[28:31], s60 offen sc1
        s_mov_b64 exec, -1
        {name}_nowf{var}:
        """)
        D(8)
        A(f"""
        s_cmp_eq_u32 s50, 0
        s_cbranch_scc0 {name}_nodbg{var}
        s_mov_b32 s32, s98
        s_and_b32 s33, s99, 0xffff
        s_mov_b32 s34, 256
        s_mov_b32 s35, 0x20000
        s_and_b32 s60, s2, 7
        s_lshr_b32 s61, s2, 3
        s_lshl_b32 s56, s60, 2
        s_lshr_b32 s62, s61, 3
        s_add_u32 s56, s56, s62                ; t2
        s_and_b32 s57, s61, 7                  ; u2
        s_lshr_b32 s58, s56, 1
        s_lshl_b32 s60, s58, 4
        s_lshl_b32 s61, s57, 5
        s_sub_u32 s61, s61, 16
        v_min_u32 v{HF+2}, 11, v{VL}
        v_lshlrev_b32 v{HF}, 2, v{HF+2}
        v_cmp_gt_u32 vcc, 4, v{HF+2}
        v_mov_b32 v{HF+3}, s61
        v_mov_b32 v{HF+4}, s60
        v_cndmask_b32 v{HF+3}, v{HF+3}, v{HF+4}, vcc
        v_add_u32 v{HF}, v{HF}, v{HF+3}
        buffer_load_dword v{HF+1}, v{HF}, s[32:35], 0 offen sc1
    
        {name}_nodbg{var}:
        """)
        A(f"s_waitcnt vmcnt({q.wait_for('D7')})")
        A("s_barrier")
        D(9)
        if gate: aux_proc(False)
        B(8)
        A(f"""
        s_cmp_eq_u32 s50, 0
        s_cbranch_scc1 {name}_htail
        s_waitcnt vmcnt(0)
        s_barrier
        s_endpgm
        """)
    def hw(tag, slot0, i0):
        A(f"""
        s_mov_b32 s73, 0
        s_mov_b32 s74, s72
        s_mov_b32 s75, {slot0*40960}
        {name}_hw{tag}:
        s_cmp_lt_u32 s73, 2
        s_cselect_b32 s76, 10, 9
        """)
        for un in range(2):
            A(f"""
            s_add_u32 s77, s59, {i0 + un}
            s_sub_u32 s78, s77, s76
            s_cmp_ge_u32 s77, s76
            s_cselect_b32 s77, s78, s77
            s_mul_i32 s77, s77, 5120
            s_add_u32 s69, s74, s77
            s_add_u32 m0, s75, {un*40960}
            """)
            for j in range(4):
                A(f"buffer_load_dwordx4 v{VLANE16}, s[28:31], s69 offen offset:{j*1024} lds")
            A(f"""
            s_add_u32 m0, s75, {un*40960 + 4096}
            s_add_u32 s69, s69, 4096
            buffer_load_dwordx4 v{VLANE16}, s[28:31], s69 offen lds
            """)
        A(f"""
        s_add_u32 s75, s75, 5120
        s_mul_i32 s77, s76, 5120
        s_add_u32 s74, s74, s77
        s_add_u32 s73, s73, 1
        s_cmp_lt_u32 s73, 8
        s_cbranch_scc1 {name}_hw{tag}
        """)
    A(f"""
    {name}_htail:
    s_setprio 0
    s_waitcnt vmcnt(0)
    s_barrier                              ; B9
    v_and_b32 v{HT+5}, 31, v{VL}
    v_lshlrev_b32 v{HT+5}, 2, v{HT+5}
    s_lshl_b32 s23, s57, 7
    s_add_u32 s23, s23, {WS_FLAG2}
    buffer_load_dword v{HT+6}, v{HT+5}, s[28:31], s23 offen sc1
    s_mul_i32 s72, s57, {74*5120}
    s_add_u32 s72, s72, {WS_WF}
    s_and_b32 s60, s57, 3
    s_lshl_b32 s60, s60, 1
    s_and_b32 s61, s56, 7
    s_add_u32 s60, s60, s61
    s_sub_u32 s61, s60, 9
    s_cmp_ge_u32 s60, 9
    s_cselect_b32 s59, s61, s60
    s_mul_i32 s59, s59, {ROT2}
    s_mov_b32 s26, 0x01010101
    s_barrier                              ; B10
    s_cmp_eq_u32 s51, 0
    s_cbranch_scc0 {name}_hnoattn
    s_barrier
    {name}_hnoattn:
    s_mov_b32 s27, 0
    {name}_hwf:
    s_waitcnt vmcnt(0)
    v_and_b32 v{HF+1}, s26, v{HF+1}
    v_cmp_ne_u32 vcc, s26, v{HF+1}
    s_cbranch_vccnz {name}_hretry
    v_cmp_ne_u32 vcc, 1, v{HT+6}
    s_cbranch_vccz {name}_hwfok
    {name}_hretry:
    s_add_u32 s27, s27, 1
    s_cmp_gt_u32 s27, 0x8000
    s_cbranch_scc1 {name}_hwfok
    s_sleep 8
    buffer_load_dword v{HF+1}, v{HF}, s[32:35], 0 offen sc1
    s_waitcnt vmcnt(0)
    buffer_load_dword v{HT+6}, v{HT+5}, s[28:31], s23 offen sc1
    s_branch {name}_hwf
    {name}_hwfok:
    """)
    hw("a", 2, 0)
    A(f"""
    v_mov_b32 v{HT+3}, 1
    v_mov_b32 v{HT+2}, 0
    s_lshr_b32 s60, s3, 4
    s_lshl_b32 s60, s60, 8
    s_and_b32 s61, s3, 15
    s_lshl_b32 s61, s61, 2
    s_add_u32 s60, s60, s61
    s_add_u32 s60, s60, {WS_FLAG}
    s_waitcnt vmcnt(0)
    s_setprio 3
    s_barrier
    s_mov_b64 exec, 1
    buffer_store_dword v{HT+3}, v{HT+2}, s[28:31], s60 offen sc1
    s_endpgm
    """)

    A(f"""
    {name}_compute:
    s_sub_u32 s50, s50, 4
    s_and_b32 s57, s50, 1              ; s57 = mh
    s_lshr_b32 s58, s50, 1             ; s58 = ng
    s_lshl_b32 s60, s58, 2
    s_cmp_eq_u32 s58, 3
    s_cselect_b32 s61, 10, s60
    s_cmp_eq_u32 s56, 1
    s_cselect_b32 s60, s61, s60
    s_and_b32 s61, s58, 1
    s_lshl_b32 s61, s61, 3
    s_lshr_b32 s62, s58, 1
    s_lshl_b32 s62, s62, 2
    s_add_u32 s61, s61, s62
    s_cmp_eq_u32 s51, 0
    s_cselect_b32 s59, s61, s60
    """)
    A(f"""
    v_and_b32 v{VT}, 15, v{VL}                 ; mi
    v_lshrrev_b32 v{VT+1}, 4, v{VL}            ; g
    v_lshrrev_b32 v{VT+2}, 1, v{VT}            ; mi>>1
    v_xor_b32 v{VT+3}, v{VT+1}, v{VT+2}
    v_lshlrev_b32 v{VT+3}, 4, v{VT+3}
    v_lshl_add_u32 v{VXH}, v{VT}, 7, v{VT+3}
    v_xor_b32 v{VXH+1}, 64, v{VXH}
    s_lshl_b32 s60, s57, 13
    s_add_u32 s60, s60, 2048
    v_add_u32 v{VXA}, s60, v{VXH}
    v_add_u32 v{VXA+1}, s60, v{VXH+1}
    v_lshrrev_b32 v{VT+2}, 1, v{VT+1}          ; g1
    v_and_b32 v{VT+3}, 1, v{VT+1}              ; g0
    v_lshrrev_b32 v{VT+4}, 3, v{VT}            ; rr>>1
    v_lshl_add_u32 v{VT+4}, v{VT+3}, 1, v{VT+4}
    v_lshl_add_u32 v{VT+4}, v{VT+2}, 3, v{VT+4}    ; slot>>1
    v_mul_u32_u24 v{VT+4}, 960, v{VT+4}
    v_and_b32 v{VT+5}, 3, v{VT}
    v_lshl_add_u32 v{VT+4}, v{VT+5}, 3, v{VT+4}
    v_add_u32 v{VT+4}, {XREG}, v{VT+4}
    v_bfe_u32 v{VT+5}, v{VT}, 2, 1
    v_cmp_eq_u32 vcc, 1, v{VT+5}
    s_cmp_eq_u32 s51, 0
    s_cselect_b32 s62, 12, 14
    s_and_b32 s63, s53, 1
    s_cmp_eq_u32 s51, 0
    s_cselect_b32 s63, s63, 0
    """)
    for j in range(4):
        A(f"""
        s_add_u32 s69, s59, {j}
        s_mul_i32 s60, s69, 13
        s_lshr_b32 s60, s60, 6
        s_mul_i32 s61, s60, 5
        s_sub_u32 s61, s69, s61                ; e
        s_sub_u32 s61, s61, s63
        s_lshl_b32 s78, s60, 2
        s_add_u32 s78, s78, s61
        s_cmp_eq_u32 s51, 0
        s_cselect_b32 s78, s78, s69
        s_cselect_b32 s79, s61, 0
        s_xor_b32 s77, s78, 1
        s_add_u32 s77, s77, s62
        s_add_u32 s76, s60, 24
        s_add_u32 s69, s60, 27
        s_cmp_gt_u32 s79, 3
        s_cselect_b32 s78, s76, s78
        s_cselect_b32 s77, s69, s77
        s_lshl_b32 s78, s78, 5
        s_lshl_b32 s77, s77, 5
        v_mov_b32 v{VT+6}, s78
        v_mov_b32 v{VT+7}, s77
        v_cndmask_b32 v{VT+6}, v{VT+6}, v{VT+7}, vcc
        v_add_u32 v{VW+j}, v{VT+6}, v{VT+4}
        """)
    for i in range(72):
        A(f"v_mov_b32 v{ACC+i}, 0")
    A(f"""
    s_waitcnt lgkmcnt(0)
    s_mov_b32 s28, s10
    s_and_b32 s29, s11, 0xffff
    s_mov_b32 s30, {WS_SIZE}
    s_mov_b32 s31, 0x20000
    s_mov_b32 s44, s14
    s_and_b32 s45, s15, 0xffff
    s_mov_b32 s46, 3456
    s_mov_b32 s47, 0x20000
    """)
    A(f"""
    s_mov_b32 s32, s98
    s_and_b32 s33, s99, 0xffff
    s_mov_b32 s34, 256
    s_mov_b32 s35, 0x20000
    s_mov_b32 s36, s96
    s_and_b32 s37, s97, 0xffff
    s_mov_b32 s38, {OUT_BYTES}
    s_mov_b32 s39, 0x20000
    s_and_b32 s60, s2, 7
    s_lshr_b32 s61, s2, 3
    s_lshl_b32 s20, s60, 2
    s_lshr_b32 s62, s61, 3
    s_add_u32 s20, s20, s62                ; t2
    s_and_b32 s21, s61, 7                  ; u2
    s_mul_i32 s60, s50, 9
    s_add_u32 s60, s60, 2
    s_mul_i32 s61, s50, 10
    s_cmp_lt_u32 s50, 2
    s_cselect_b32 s60, s61, s60            ; kb0
    s_mul_i32 s22, s20, 74
    s_add_u32 s22, s22, s60
    s_lshl_b32 s22, s22, 12
    s_mul_i32 s23, s21, 74
    s_add_u32 s23, s23, s60
    s_mul_i32 s23, s23, 5120
    s_add_u32 s23, s23, {WS_WF}
    s_and_b32 s60, s21, 3
    s_lshl_b32 s60, s60, 1
    s_and_b32 s61, s20, 7
    s_add_u32 s60, s60, s61
    s_sub_u32 s61, s60, 9
    s_cmp_ge_u32 s60, 9
    s_cselect_b32 s26, s61, s60
    s_mul_i32 s26, s26, {ROT2}
    s_cmp_lt_u32 s50, 2
    s_cselect_b32 s48, 10, 9
    s_add_u32 s27, s26, 2
    s_sub_u32 s60, s27, s48
    s_cmp_ge_u32 s27, s48
    s_cselect_b32 s27, s60, s27
    s_lshl_b32 s60, s26, 12
    s_add_u32 s22, s22, s60
    s_mul_i32 s60, s27, 5120
    s_add_u32 s23, s23, s60
    s_mul_i32 s24, s50, 5120
    s_cmp_eq_u32 s50, 0
    s_cselect_b32 s25, 7, 99
    s_lshr_b32 s60, s3, 5
    s_and_b32 s61, s3, 31
    s_lshl_b32 s62, s50, 5
    s_add_u32 s61, s61, s62
    s_mul_i32 s60, s60, 74
    s_add_u32 s60, s60, s61
    s_mul_i32 s60, s60, 5120
    s_add_u32 s40, s60, {WS_WF}
    s_cmp_lt_u32 s61, 74
    s_cselect_b32 s40, s40, 0x80000000
    s_add_u32 s41, s40, 4096
    s_mul_i32 s42, s50, 5120
    s_add_u32 s42, s42, {RL_BASE}
    s_lshl_b32 s60, s53, 4
    s_add_u32 s60, s60, s52
    s_lshl_b32 s60, s60, 2
    s_add_u32 s43, s60, {WS_G}
    s_cmp_eq_u32 s51, 1
    s_cselect_b32 s43, s43, 0x80000000
    s_cmp_gt_u32 s50, 2
    s_cbranch_scc1 {name}_norl
    s_cmp_ge_u32 s61, 74
    s_cbranch_scc1 {name}_norl
    s_mov_b32 s70, 2211840
    s_cmp_lt_u32 s61, 20
    s_cselect_b32 s68, s8, s16
    s_cselect_b32 s69, s9, s17
    s_cselect_b32 s70, 819200, s70
    s_cselect_b32 s60, 0, 20
    s_and_b32 s69, s69, 0xffff
    s_mov_b32 s71, 0x20000
    s_sub_u32 s60, s61, s60
    s_mul_i32 s60, s60, 40960
    s_lshr_b32 s62, s3, 5
    s_mul_i32 s62, s62, 160
    s_add_u32 s60, s60, s62
    """)
    for i in range(5):
        A(f"""
        v_add_u32 v{VT+1}, {64*i}, v{VL}
        v_mul_u32_u24 v{VT+2}, 205, v{VT+1}
        v_lshrrev_b32 v{VT+2}, 11, v{VT+2}
        v_mul_u32_u24 v{VT+3}, 10, v{VT+2}
        v_sub_u32 v{VT+3}, v{VT+1}, v{VT+3}
        v_mul_u32_u24 v{VT+2}, 1280, v{VT+2}
        v_lshl_add_u32 v{VT+2}, v{VT+3}, 4, v{VT+2}
        s_add_u32 m0, s42, {i*1024}
        buffer_load_dwordx4 v{VT+2}, s[68:71], s60 offen lds
        """)
    A(f"{name}_norl:")
    if prefetch:
        A(f"""
        s_and_b32 s60, s2, 7
        s_lshr_b32 s61, s2, 3                  ; idx
        s_lshr_b32 s62, s60, 1                 ; cq
        s_and_b32 s60, s60, 1                  ; M half
        v_cmp_le_u32 vcc, 9, v{VL}
        v_subrev_u32 v{VT+1}, 9, v{VL}
        v_cndmask_b32 v{VT+1}, v{VL}, v{VT+1}, vcc
        s_cmp_lt_u32 s50, 4
        s_cbranch_scc0 {name}_pfW
        s_lshl_b32 s63, s61, 2
        s_add_u32 s63, s63, s50
        s_mul_i32 s63, s63, 9
        s_lshl_b32 s60, s60, 10
        s_add_u32 s63, s63, s60
        s_sub_u32 s63, s63, 16
        v_add_u32 v{VT+2}, s63, v{VT+1}
        v_max_i32 v{VT+2}, 0, v{VT+2}
        v_mul_u32_u24 v{VT+2}, 1280, v{VT+2}
        s_mov_b32 s68, s4
        s_and_b32 s69, s5, 0xffff
        s_mov_b32 s70, 2621440
        s_mov_b32 s72, 128
        s_branch {name}_pfgo
        {name}_pfW:
        s_lshl_b32 s63, s61, 1
        s_and_b32 s60, s50, 1
        s_add_u32 s63, s63, s60
        s_cmp_lt_u32 s50, 6
        s_cbranch_scc0 {name}_pfW1
        v_mul_u32_u24 v{VT+2}, 11, v{VT+1}
        v_lshrrev_b32 v{VT+2}, 5, v{VT+2}      ; grp = l9/3
        v_mul_u32_u24 v{VT+3}, 896, v{VT+2}    ; grp*(1280-384)
        v_lshl_add_u32 v{VT+2}, v{VT+1}, 7, v{VT+3}
        s_mul_i32 s60, s62, 320
        s_and_b32 s60, s60, 0xffffff80
        s_mul_i32 s63, s63, 3840
        s_add_u32 s60, s60, s63
        v_add_u32 v{VT+2}, s60, v{VT+2}
        s_mov_b32 s68, s6
        s_and_b32 s69, s7, 0xffff
        s_mov_b32 s70, 2457600
        s_mov_b32 s72, {64*3840}
        s_branch {name}_pfgo
        {name}_pfW1:
        s_mul_i32 s60, s62, 28
        s_lshr_b32 s72, s62, 1
        s_lshl_b32 s72, s72, 1
        s_sub_u32 s60, s60, s72
        s_lshl_b32 s60, s60, 5
        s_and_b32 s60, s60, 0xffffff80
        s_mul_i32 s63, s63, 3456
        s_add_u32 s60, s60, s63
        v_min_u32 v{VT+1}, 7, v{VT+1}
        v_lshlrev_b32 v{VT+2}, 7, v{VT+1}
        v_add_u32 v{VT+2}, s60, v{VT+2}
        s_mov_b32 s68, s12
        s_and_b32 s69, s13, 0xffff
        s_mov_b32 s70, 2211840
        s_mov_b32 s72, {64*3456}
        {name}_pfgo:
        s_mov_b32 s71, 0x20000
        v_mov_b32 v{VT+3}, 0x80000000
        v_add_u32 v{VT+4}, s72, v{VT+2}
        v_cndmask_b32 v{VT+4}, v{VT+2}, v{VT+4}, vcc
        v_cndmask_b32 v{VPF+1}, v{VT+2}, v{VT+3}, vcc
        v_cmp_le_u32 vcc, 18, v{VL}
        v_cndmask_b32 v{VT+4}, v{VT+4}, v{VT+3}, vcc
        s_mul_i32 s73, s72, {PF0}
        buffer_load_dword v{VPF}, v{VT+4}, s[68:71], s73 offen
        s_mul_i32 s73, s72, {PF0 + 2}
        s_mov_b32 s74, {PF0 + 2}
        """)
    A(f"""
    s_mov_b32 s76, 0
    s_mov_b32 s77, 0
    s_mov_b32 s49, {STAGE}
    """)
    classes = {"c4": (4, ()), "c4a": (4, (0, 1)), "c4b": (4, (2, 3)), "c4c": (4, (1,)),
               "c3a": (3, (0, 1)), "c3b": (3, (2,)), "c3": (2, ())}
    amap = {0: "c4", 1: "c4", 2: "c4a", 3: "c4b", 4: "c4b", 5: "c4c", 6: "c3a", 7: "c3b"}
    A(f"""
    s_cmp_eq_u32 s51, 0
    s_cbranch_scc1 {name}_dispA
    s_add_u32 s60, s58, s56
    s_cmp_lt_u32 s60, 3
    s_cbranch_scc1 {name}_c4
    s_branch {name}_c3
    {name}_dispA:
    """)
    for w in range(2, 8):
        A(f"s_cmp_eq_u32 s50, {w}\ns_cbranch_scc1 {name}_{amap[w]}")
    A(f"s_branch {name}_c4")

    def reads(fs, kk, nc, halo):
        out = []
        for j in range(nc):
            b = wfrag(fs, j)
            out.append(f"ds_read_b64_tr_b16 v[{b}:{b+1}], v{VW+j} offset:{kk*15360}")
            out.append(f"ds_read_b64_tr_b16 v[{b+2}:{b+3}], v{VW+j} offset:{kk*15360 + 3840}")
            if j == 0:
                for i in range(4):
                    out.append(f"ds_read_b128 {R(xfrag(fs, i))}, v{VXA+kk} offset:{i*2048}")
        if halo:
            out.append(f"ds_read_b128 {R(xfrag(fs, 4))}, v{VXH+kk}")
        return out

    def mfmas(fs, nc, halo):
        out = []
        for j in range(nc):
            for i in range(4):
                a = ACC + (i * 4 + j) * 4
                out.append(f"v_mfma_f32_16x16x32_bf16 {R(a)}, {R(wfrag(fs, j))}, {R(xfrag(fs, i))}, {R(a)}")
        for hi, j in enumerate(halo):
            a = ACC + (16 + hi) * 4
            out.append(f"v_mfma_f32_16x16x32_bf16 {R(a)}, {R(wfrag(fs, j))}, {R(xfrag(fs, 4))}, {R(a)}")
        return out

    def wdma(slot):
        return [f"s_add_u32 m0, s24, {slot*40960}"] + \
               [f"buffer_load_dwordx4 v{VLANE16}, s[28:31], s23 offen offset:{j*1024}{LD} lds" for j in range(4)] + \
               [f"s_add_u32 m0, s24, {slot*40960 + 4096}", "s_add_u32 s60, s23, 4096",
                f"buffer_load_dwordx4 v{VLANE16}, s[28:31], s60 offen{LD} lds",
                "s_add_u32 s23, s23, 5120", "s_add_u32 s27, s27, 1", "s_cmp_eq_u32 s27, s48",
                "s_cselect_b32 s60, s63, 0", "s_cselect_b32 s27, 0, s27", "s_sub_u32 s23, s23, s60"]

    A(f"""
    {name}_auxst:
    s_cmp_gt_u32 s50, 2
    s_cbranch_scc1 {name}_auxret
    """)
    A(f"""
    v_lshrrev_b32 v{F1}, 2, v{VL}
    v_mul_u32_u24 v{F1}, 160, v{F1}
    v_and_b32 v{F1+1}, 3, v{VL}
    v_lshl_add_u32 v{F1}, v{F1+1}, 3, v{F1}
    v_add_u32 v{F1}, s42, v{F1}
    s_waitcnt vmcnt(0)
    """)
    for j in range(5):
        b = F1 + 4 + 4 * j
        A(f"ds_read_b64_tr_b16 v[{b}:{b+1}], v{F1} offset:{j*32}")
        A(f"ds_read_b64_tr_b16 v[{b+2}:{b+3}], v{F1} offset:{j*32 + 2560}")
    A("s_waitcnt lgkmcnt(0)")
    for j in range(5):
        b = F1 + 4 + 4 * j
        if j < 4:
            A(f"buffer_store_dwordx4 v[{b}:{b+3}], v{VLANE16}, s[28:31], s40 offen offset:{j*1024}{ST}")
        else:
            A(f"buffer_store_dwordx4 v[{b}:{b+3}], v{VLANE16}, s[28:31], s41 offen{ST}")
    A("s_nop 1\ns_setpc_b64 s[88:89]")
    A(f"""
    {name}_auxg:
    v_lshrrev_b32 v{F1}, 4, v{VL}
    v_lshlrev_b32 v{F1}, 3, v{F1}
    s_lshl_b32 s60, s59, 5
    s_add_u32 s60, s60, {BLDS}
    v_add_u32 v{F1}, s60, v{F1}
    ds_read_b64 v[{VBRAW}:{VBRAW+1}], v{F1}
    ds_read_b64 v[{VBRAW+2}:{VBRAW+3}], v{F1} offset:32
    ds_read_b64 v[{VBRAW+4}:{VBRAW+5}], v{F1} offset:64
    ds_read_b64 v[{VBRAW+6}:{VBRAW+7}], v{F1} offset:96
    s_cmp_eq_u32 s50, 3
    s_cbranch_scc0 {name}_auxret
    v_lshlrev_b32 v{F1}, 2, v{VL}
    v_add_u32 v{F1+1}, {GLDS}, v{F1}
    s_mov_b64 exec, 0xffff
    ds_read_b32 v{F1+2}, v{F1+1}
    s_waitcnt lgkmcnt(0)
    buffer_store_dword v{F1+2}, v{F1}, s[28:31], s43 offen{ST}
    s_mov_b64 exec, -1
    {name}_auxret:
    s_setpc_b64 s[88:89]
    """)
    for cname, (nc, halo) in classes.items():
        A(f"{name}_{cname}:")
        A("s_barrier")
        if stamp:
            A("s_memrealtime s[82:83]")
        for l in reads(F0, 0, nc, halo): A(l)
        lab = f"{name}_{cname}_loop"
        A(f"{lab}:")
        A("s_waitcnt lgkmcnt(0)")
        interleave(A, mfmas(F0, nc, halo), [[l] for l in reads(F1, 1, nc, halo)])
        A(f"""
        s_cmp_eq_u32 s77, {2*STAGE}
        s_cselect_b32 s78, {(-2*STAGE) & 0xffffffff}, s49
        s_add_u32 s77, s77, s78
        s_waitcnt lgkmcnt(0)
        s_barrier
        """)
        fill = [[f"v_add_u32 v{VW}, s78, v{VW}", f"v_add_u32 v{VXA}, s78, v{VXA}"]]
        f2 = [f"v_add_u32 v{VXA+1}, s78, v{VXA+1}"]
        if halo:
            f2.append(f"v_add_u32 v{VXH+1}, s78, v{VXH+1}")
        seq = []
        for l in reads(F0, 0, nc, halo):
            for j in range(1, nc):
                if f"v{VW+j} offset:0" in l and l.endswith("offset:0"):
                    seq.append(f"v_add_u32 v{VW+j}, s78, v{VW+j}")
            if halo and l.endswith(f"v{VXH}"):
                seq.append(f"v_add_u32 v{VXH}, s78, v{VXH}")
            seq.append(l)
        for k in range(0, len(seq), 2):
            fill.append(seq[k:k + 2])
        fill.append(f2)
        if prefetch:
            fill.append([f"buffer_load_dword v{VPF}, v{VPF+1}, s[68:71], s73 offen",
                         "s_add_u32 s73, s73, s72", "s_add_u32 s74, s74, 1", "s_cmp_lt_u32 s74, 10",
                         "s_cselect_b32 s73, s73, 0x80000000"])
        interleave(A, mfmas(F1, nc, halo), fill)
        A(f"""
        s_add_u32 s76, s76, 1
        s_cmp_eq_u32 s76, 2
        s_cbranch_scc0 {lab}_na
        s_nop 7
        s_call_b64 s[88:89], {name}_auxst
        {lab}_na:
        s_cmp_eq_u32 s76, 5
        s_cbranch_scc0 {lab}_nv
        s_waitcnt vmcnt(0)
        {lab}_nv:
        s_cmp_eq_u32 s76, 9
        s_cbranch_scc0 {lab}_ng
        s_nop 7
        s_call_b64 s[88:89], {name}_auxg
        {lab}_ng:
        """)
        A(f"""
        s_cmp_lt_u32 s76, 10
        s_cbranch_scc1 {lab}
        """)
        A("s_waitcnt lgkmcnt(0)")
        A("s_setprio 2")
        if halo or cname == "c4":
            if cname == "c4":
                A(f"s_cmp_eq_u32 s51, 1\ns_cbranch_scc1 {name}_epiB4")
            A(f"""
            v_and_b32 v{VTA}, 15, v{VL}
            v_lshrrev_b32 v{VTA+1}, 4, v{VL}
            v_mul_u32_u24 v{VTA}, {RSQ}, v{VTA}
            v_lshl_add_u32 v{VTA}, v{VTA+1}, 3, v{VTA}
            s_lshl_b32 s60, s59, 5
            v_add_u32 v{VTA}, s60, v{VTA}
            s_lshl_b32 s60, s57, 2
            s_add_u32 s60, s60, 1
            s_mul_i32 s60, s60, {16*RSQ}
            v_add_u32 v{VTA+1}, s60, v{VTA}
            """)
            k = 0
            for j in range(nc):
                for i in range(4):
                    a = ACC + (i * 4 + j) * 4
                    t = F0 + 2 * k; k += 1
                    A(f"v_cvt_pk_bf16_f32 v{t}, v{a}, v{a+1}")
                    A(f"v_cvt_pk_bf16_f32 v{t+1}, v{a+2}, v{a+3}")
                    A(f"ds_write_b64 v{VTA+1}, v[{t}:{t+1}] offset:{i*16*RSQ + j*32}")
            for hi, j in enumerate(halo):
                a = ACC + (16 + hi) * 4
                t = F0 + 2 * k; k += 1
                A(f"v_cvt_pk_bf16_f32 v{t}, v{a}, v{a+1}")
                A(f"v_cvt_pk_bf16_f32 v{t+1}, v{a+2}, v{a+3}")
                A(f"ds_write_b64 v{VTA}, v[{t}:{t+1}] offset:{j*32}")
            A(f"s_branch {name}_attn")
        else:
            A(f"s_branch {name}_epiB3")

    A(f"{name}_attn:")
    mi, g = VTA, VTA + 1
    vQ, vK0, vK1, vV = VTA + 2, VTA + 3, VTA + 4, VTA + 5
    vmlo, vmhi, vsh = VTA + 6, VTA + 7, VTA + 8
    A(f"""
    v_and_b32 v{mi}, 15, v{VL}
    v_lshrrev_b32 v{g}, 4, v{VL}
    s_mul_i32 s60, s50, {16*RSQ}
    v_mul_u32_u24 v{vK0}, {RSQ}, v{mi}
    v_lshl_add_u32 v{vK0}, v{g}, 4, v{vK0}
    v_add_u32 v{vK0}, s60, v{vK0}
    v_add_u32 v{vQ}, {16*RSQ}, v{vK0}
    v_add_u32 v{vK0}, 160, v{vK0}
    v_add_u32 v{vK1}, 160, v{vQ}
    v_lshrrev_b32 v{VTA+9}, 2, v{mi}
    v_lshl_add_u32 v{VTA+9}, v{g}, 2, v{VTA+9}
    v_mul_u32_u24 v{vV}, {RSQ}, v{VTA+9}
    v_and_b32 v{VTA+9}, 3, v{mi}
    v_lshl_add_u32 v{vV}, v{VTA+9}, 3, v{vV}
    v_add_u32 v{vV}, s60, v{vV}
    v_add_u32 v{vV}, 320, v{vV}
    v_cmp_gt_u32 vcc, 3, v{g}
    v_cndmask_b32 v{vmlo}, 0, -1, vcc
    v_cmp_gt_u32 vcc, 2, v{g}
    v_cndmask_b32 v{vmhi}, 0, -1, vcc
    v_and_b32 v{VTA+9}, 1, v{mi}
    v_lshlrev_b32 v{vsh}, 4, v{VTA+9}
    v_cmp_eq_u32 s[60:61], 1, v{VTA+9}            ; Mpar
    v_lshrrev_b32 v{VTA+9}, 1, v{mi}              ; qe
    v_lshlrev_b32 v{VTA+10}, 1, v{g}
    v_cmp_le_u32 s[62:63], v{VTA+10}, v{VTA+9}
    v_add_u32 v{VTA+10}, 1, v{VTA+10}
    v_cmp_le_u32 s[64:65], v{VTA+10}, v{VTA+9}
    v_cmp_le_u32 s[70:71], 1, v{g}               ; Mg1
    v_cmp_le_u32 s[72:73], 2, v{g}               ; Mg2
    v_cmp_le_u32 s[74:75], 3, v{g}               ; Mg3
    s_add_u32 s76, s52, s50
    s_not_b64 s[66:67], s[62:63]
    s_not_b64 s[68:69], s[64:65]
    s_cmp_eq_u32 s76, 0
    s_cselect_b64 s[66:67], s[66:67], 0          ; Minv0
    s_cselect_b64 s[68:69], s[68:69], 0          ; Minv1
    s_waitcnt lgkmcnt(0)
    s_barrier
    """)
    Q = lambda h: 0 + 4 * h
    K0 = lambda h: 16 + 4 * h
    K1 = lambda h: 32 + 4 * h
    V = lambda b: 48 + 4 * b
    S0 = lambda h: 68 + 4 * h
    S1 = lambda h: 84 + 4 * h
    L = lambda h, t: 100 + 2 * h + t
    M = lambda h: 108 + h
    T = lambda h: 112 + h
    P = lambda h: 116 + 4 * h
    O = lambda n: 0 + 4 * n
    PK = 132
    for h in range(4):
        A(f"ds_read2_b64 {R(Q(h))}, v{vQ} offset0:{h*5} offset1:{h*5+1}")
        A(f"ds_read2_b64 {R(K0(h))}, v{vK0} offset0:{h*5} offset1:{h*5+1}")
        A(f"ds_read2_b64 {R(K1(h))}, v{vK1} offset0:{h*5} offset1:{h*5+1}")
    for h in range(4):
        A(f"s_waitcnt lgkmcnt({9 - 3*h})")
        q = Q(h)
        A(f"""
        v_and_b32 v{q}, v{q}, v{vmlo}
        v_and_b32 v{q+1}, v{q+1}, v{vmlo}
        v_and_b32 v{q+2}, v{q+2}, v{vmhi}
        v_and_b32 v{q+3}, v{q+3}, v{vmhi}
        v_mfma_f32_16x16x32_bf16 {R(S0(h))}, {R(K0(h))}, {R(q)}, 0
        v_mfma_f32_16x16x32_bf16 {R(S1(h))}, {R(K1(h))}, {R(q)}, 0
        """)
    for b in range(5):
        A(f"ds_read_b64_tr_b16 v[{V(b)}:{V(b)+1}], v{vV} offset:{b*32}")
        A(f"ds_read_b64_tr_b16 v[{V(b)+2}:{V(b)+3}], v{vV} offset:{b*32 + 16*RSQ}")
    A(f"s_mov_b32 s77, 0xffff0000")
    A(f"s_mov_b32 s78, {SCALE}")
    A(f"s_mov_b32 s79, 0xce6e6b28")
    A(f"v_mov_b32 v{VTA+11}, s79")
    Mc = ["s[62:63]", "s[64:65]"]; Minv = ["s[66:67]", "s[68:69]"]
    for h in range(4):
        for t in range(2):
            A(f"v_cndmask_b32 v{S0(h)+2*t}, v{S0(h)+2*t}, v{S0(h)+2*t+1}, s[60:61]")
            A(f"v_cndmask_b32 v{S1(h)+2*t}, v{S1(h)+2*t}, v{S1(h)+2*t+1}, s[60:61]")
    for h in range(4):
        for t in range(2):
            A(f"v_cndmask_b32 v{L(h,t)}, v{S0(h)+2*t}, v{S1(h)+2*t}, {Mc[t]}")
    for h in range(4):
        l0, l1, t_ = L(h, 0), L(h, 1), T(h)
        A(f"""
        v_cvt_pk_bf16_f32 v{t_}, v{l0}, v{l1}
        v_lshlrev_b32 v{l0}, 16, v{t_}
        v_and_b32 v{l1}, s77, v{t_}
        v_mul_f32 v{l0}, s78, v{l0}
        v_mul_f32 v{l1}, s78, v{l1}
        v_cvt_pk_bf16_f32 v{t_}, v{l0}, v{l1}
        v_lshlrev_b32 v{l0}, 16, v{t_}
        v_and_b32 v{l1}, s77, v{t_}
        v_cndmask_b32 v{l0}, v{l0}, v{VTA+11}, {Minv[0]}
        v_cndmask_b32 v{l1}, v{l1}, v{VTA+11}, {Minv[1]}
        v_max_f32 v{M(h)}, v{l0}, v{l1}
        """)
    for swap in ("v_permlane16_swap_b32", "v_permlane32_swap_b32"):
        for h in range(4):
            A(f"v_mov_b32 v{T(h)}, v{M(h)}")
        for h in range(4):
            A(f"{swap} v{T(h)}, v{M(h)}")
        for h in range(4):
            A(f"v_max_f32 v{M(h)}, v{M(h)}, v{T(h)}")
    A(f"s_mov_b32 s79, {LOG2E}")
    for h in range(4):
        for t in range(2):
            A(f"v_sub_f32 v{L(h,t)}, v{L(h,t)}, v{M(h)}")
    for h in range(4):
        for t in range(2):
            A(f"v_mul_f32 v{L(h,t)}, s79, v{L(h,t)}")
    for h in range(4):
        for t in range(2):
            A(f"v_exp_f32 v{L(h,t)}, v{L(h,t)}")
    for h in range(4):
        A(f"v_add_f32 v{M(h)}, v{L(h,0)}, v{L(h,1)}")
    for swap in ("v_permlane16_swap_b32", "v_permlane32_swap_b32"):
        for h in range(4):
            A(f"v_mov_b32 v{T(h)}, v{M(h)}")
        for h in range(4):
            A(f"{swap} v{T(h)}, v{M(h)}")
        for h in range(4):
            A(f"v_add_f32 v{M(h)}, v{M(h)}, v{T(h)}")
    for h in range(4):
        A(f"v_rcp_f32 v{M(h)}, v{M(h)}")
    for h in range(4):
        for t in range(2):
            A(f"v_mul_f32 v{L(h,t)}, v{L(h,t)}, v{M(h)}")
    for h in range(4):
        for t in range(2):
            A(f"v_cvt_pk_bf16_f32 v{L(h,t)}, v{L(h,t)}, 0")
    for h in range(4):
        for t in range(2):
            A(f"v_lshlrev_b32 v{L(h,t)}, v{vsh}, v{L(h,t)}")
    for h in range(4):
        for t in range(2):
            A(f"v_cndmask_b32 v{P(h)+t}, v{L(h,t)}, 0, {Mc[t]}")
            A(f"v_cndmask_b32 v{P(h)+2+t}, 0, v{L(h,t)}, {Mc[t]}")
    A("s_waitcnt lgkmcnt(0)")
    for h in range(4):
        for e in range(2):
            A(f"v_mfma_f32_16x16x32_bf16 {R(O(2*h+e))}, {R(V(h+e))}, {R(P(h))}, 0")
    Mg = {1: "s[70:71]", 2: "s[72:73]", 3: "s[74:75]"}
    A(f"""
    s_lshr_b32 s60, s50, 2
    s_lshl_b32 s61, s54, 1
    s_add_u32 s60, s60, s61              ; t
    s_mul_i32 s60, s60, 74
    s_mul_i32 s61, s53, 5
    s_lshr_b32 s61, s61, 1
    s_add_u32 s60, s60, s61              ; t*74 + kb0
    s_lshl_b32 s60, s60, 2
    s_and_b32 s61, s50, 3
    s_add_u32 s60, s60, s61
    s_lshl_b32 s60, s60, 10
    s_add_u32 s61, s60, 4096
    s_add_u32 s62, s60, 8192
    """)
    A(f"v_cvt_pk_bf16_f32 v{PK}, v{O(0)}, v{O(0)+1}")
    A(f"v_cvt_pk_bf16_f32 v{PK+1}, v{O(0)+2}, v{O(0)+3}")
    for b in (1, 2, 3):
        lo, hi = O(2 * (b - 1) + 1), O(2 * b)
        for r in range(4):
            A(f"v_cndmask_b32 v{lo+r}, v{lo+r}, v{hi+r}, {Mg[b]}")
        A(f"v_cvt_pk_bf16_f32 v{PK+2*b}, v{lo}, v{lo+1}")
        A(f"v_cvt_pk_bf16_f32 v{PK+2*b+1}, v{lo+2}, v{lo+3}")
    A(f"v_cvt_pk_bf16_f32 v{PK+8}, v{O(7)}, v{O(7)+1}")
    A(f"v_cvt_pk_bf16_f32 v{PK+9}, v{O(7)+2}, v{O(7)+3}")
    A(f"""
    v_lshlrev_b32 v{VTA}, 3, v{VL}
    s_and_b32 s63, s53, 1
    s_cmp_eq_u32 s63, 1
    s_cbranch_scc1 {name}_ostodd
    buffer_store_dwordx4 v[{PK}:{PK+3}], v{VLANE16}, s[28:31], s60 offen{ST}
    buffer_store_dwordx4 v[{PK+4}:{PK+7}], v{VLANE16}, s[28:31], s61 offen{ST}
    buffer_store_dwordx2 v[{PK+8}:{PK+9}], v{VTA}, s[28:31], s62 offen{ST}
    s_branch {name}_done
    {name}_ostodd:
    buffer_store_dwordx2 v[{PK}:{PK+1}], v{VTA}, s[28:31], s60 offen offset:512{ST}
    buffer_store_dwordx4 v[{PK+2}:{PK+5}], v{VLANE16}, s[28:31], s61 offen{ST}
    buffer_store_dwordx4 v[{PK+6}:{PK+9}], v{VLANE16}, s[28:31], s62 offen{ST}
    s_branch {name}_done
    """)

    def mish_blocks(blks):
        def each(f):
            for (a, bias, dst, t, h) in blks:
                A(f(a, bias, dst, t, h))
        A("s_set_gpr_idx_on s63, gpr_idx(SRC0)\ns_nop 1")
        each(lambda a, b, d, t, h: f"v_pk_add_f32 v[{h}:{h+1}], v[{a}:{a+1}], v[{b}:{b+1}]\n"
                                   f"v_pk_add_f32 v[{h+2}:{h+3}], v[{a+2}:{a+3}], v[{b+2}:{b+3}]")
        A("s_set_gpr_idx_off\ns_nop 1")
        each(lambda a, b, d, t, h: f"v_pk_mul_f32 v[{t}:{t+1}], v[{h}:{h+1}], s[78:79]\n"
                                   f"v_pk_mul_f32 v[{t+2}:{t+3}], v[{h+2}:{h+3}], s[78:79]")
        each(lambda a, b, d, t, h: "\n".join(f"v_exp_f32 v{t+r}, v{t+r}" for r in range(4)))
        each(lambda a, b, d, t, h: f"v_pk_add_f32 v[{t}:{t+1}], v[{t}:{t+1}], s[66:67]\n"
                                   f"v_pk_add_f32 v[{t+2}:{t+3}], v[{t+2}:{t+3}], s[66:67]")
        each(lambda a, b, d, t, h: f"v_pk_fma_f32 v[{t}:{t+1}], v[{t}:{t+1}], v[{t}:{t+1}], s[66:67]\n"
                                   f"v_pk_fma_f32 v[{t+2}:{t+3}], v[{t+2}:{t+3}], v[{t+2}:{t+3}], s[66:67]")
        each(lambda a, b, d, t, h: "\n".join(f"v_rcp_f32 v{t+r}, v{t+r}" for r in range(4)))
        each(lambda a, b, d, t, h: f"v_pk_fma_f32 v[{t}:{t+1}], v[{t}:{t+1}], v[{VC2}:{VC2+1}], s[66:67]\n"
                                   f"v_pk_fma_f32 v[{t+2}:{t+3}], v[{t+2}:{t+3}], v[{VC2}:{VC2+1}], s[66:67]")
        each(lambda a, b, d, t, h: f"v_pk_mul_f32 v[{t}:{t+1}], v[{t}:{t+1}], v[{h}:{h+1}]\n"
                                   f"v_pk_mul_f32 v[{t+2}:{t+3}], v[{t+2}:{t+3}], v[{h+2}:{h+3}]")
        each(lambda a, b, d, t, h: f"v_cvt_pk_bf16_f32 v{d}, v{t}, v{t+1}\nv_cvt_pk_bf16_f32 v{d+1}, v{t+2}, v{t+3}")

    def epiB_common():
        A(f"""
        s_mov_b32 s77, 0xffff0000
        s_mov_b32 s78, {LOG2E}
        s_mov_b32 s79, {LOG2E}
        s_mov_b32 s66, 1.0
        s_mov_b32 s67, 1.0
        v_mov_b32 v{VC2}, -2.0
        v_mov_b32 v{VC2+1}, -2.0
        s_add_u32 s60, s55, s59            ; fb0
        s_lshl_b32 s61, s54, 1
        s_add_u32 s61, s61, s57            ; t
        s_mul_i32 s61, s61, 74
        s_lshr_b32 s62, s60, 1
        s_add_u32 s61, s61, s62
        s_add_u32 s61, s61, 20
        s_lshl_b32 s61, s61, 12
        s_add_u32 s62, s61, 4096
        """)
        for j in range(4):
            A(f"v_lshlrev_b32 v{VBIAS+4*j}, 16, v{VBRAW+2*j}")
            A(f"v_and_b32 v{VBIAS+4*j+1}, s77, v{VBRAW+2*j}")
            A(f"v_lshlrev_b32 v{VBIAS+4*j+2}, 16, v{VBRAW+2*j+1}")
            A(f"v_and_b32 v{VBIAS+4*j+3}, s77, v{VBRAW+2*j+1}")

    def blk(i, j):
        return ACC + (i * 4 + j) * 4
    def mloop(tag, nc, doff, stores):
        d = VDB
        A(f"s_mov_b32 s63, 0\n{name}_ml{tag}:")
        mish_blocks([(blk(0, j), VBIAS + 4 * j, d + doff + 2 * j, VTB + 4 * j, VTB + 16 + 4 * j) for j in range(nc)])
        for l in stores(d): A(l)
        A(f"""
        s_add_u32 s61, s61, 1024
        s_add_u32 s62, s62, 1024
        s_add_u32 s63, s63, 16
        s_cmp_lt_u32 s63, 64
        s_cbranch_scc1 {name}_ml{tag}
        s_branch {name}_done
        """)
    A(f"{name}_epiB4:")
    epiB_common()
    mloop("4", 4, 0, lambda d: [f"buffer_store_dwordx4 v[{d}:{d+3}], v{VLANE16}, s[28:31], s61 offen{ST}",
                                f"buffer_store_dwordx4 v[{d+4}:{d+7}], v{VLANE16}, s[28:31], s62 offen{ST}"])
    A(f"{name}_epiB3:")
    epiB_common()
    mloop("2", 2, 0, lambda d: [f"buffer_store_dwordx4 v[{d}:{d+3}], v{VLANE16}, s[28:31], s61 offen{ST}"])

    A(f"{name}_done:")
    if stamp:
        A("s_memrealtime s[86:87]")
    A(f"""
    s_waitcnt vmcnt(0) lgkmcnt(0)
    s_setprio 0
    s_barrier
    """)
    if stamp:
        A("s_memrealtime s[84:85]")
    A(f"""
    s_lshl_b32 s62, s48, 12
    s_mul_i32 s63, s48, 5120
    """)
    A(f"""
    s_lshr_b32 s25, s20, 1
    s_lshl_b32 s25, s25, 8
    s_add_u32 s25, s25, {WS_FLAG}
    s_cmp_lt_u32 s50, 2
    s_cselect_b32 s61, 0, 8
    v_and_b32 v0, 15, v{VL}
    v_or_b32 v0, s61, v0
    v_lshlrev_b32 v0, 2, v0
    """)
    for l in wdma(0): A(l)
    A("buffer_load_dword v1, v0, s[28:31], s25 offen sc1")
    for l in wdma(1): A(l)
    A(f"""
    s_waitcnt vmcnt(5)
    s_mov_b32 s61, 0
    {name}_poll:
    v_cmp_ne_u32 vcc, 1, v1
    s_cbranch_vccz {name}_go
    s_add_u32 s61, s61, 1
    s_cmp_gt_u32 s61, 0x8000
    s_cbranch_scc1 {name}_go
    s_sleep 5
    buffer_load_dword v1, v0, s[28:31], s25 offen sc1
    s_waitcnt vmcnt(0)
    s_branch {name}_poll
    {name}_go:
    """)
    if stamp:
        A("s_memrealtime s[88:89]")
    AB = lambda b, i: (80 + 16 * b if b < 3 else 152) + 4 * i
    WB = lambda j: 128 + 4 * j
    V7, VL16, VA = 148, 149, 150
    V5 = 80
    NB = 4
    A(f"""
    s_lshl_b32 s60, s20, 6
    s_lshr_b32 s61, s50, 1
    s_lshl_b32 s61, s61, 4
    s_add_u32 s60, s60, s61
    v_and_b32 v{V5}, 15, v{VL}
    v_add_u32 v{V5}, s60, v{V5}
    v_lshlrev_b32 v{V7}, 2, v{V5}
    s_mov_b32 s61, {WS_G}
    buffer_load_dword v{V7}, v{V7}, s[28:31], s61 offen
    v_add_u32 v{VA}, s24, v{VLANE16}
    v_mov_b32 v{VL16}, v{VLANE16}
    v_add_u32 v{VA+1}, 0x14000, v{VA}
    s_lshl_b32 s62, s48, 12
    s_mul_i32 s63, s48, 5120
    """)

    def aloads(b, split=False):
        if split:
            ld = [f"v_lshrrev_b32 v{AB(b,i)}, 1, v{VL16}\n"
                  f"buffer_load_dwordx2 v[{AB(b,i)+2}:{AB(b,i)+3}], v{AB(b,i)}, s[28:31], s22 offen offset:{i*1024+512}\n"
                  f"buffer_load_dwordx2 v[{AB(b,i)}:{AB(b,i)+1}], v{AB(b,i)}, s[28:31], s22 offen offset:{i*1024}" for i in range(4)]
        else:
            ld = [f"buffer_load_dwordx4 {R(AB(b, i))}, v{VL16}, s[28:31], s22 offen offset:{i*1024}{LD}" for i in range(4)]
        return ld + \
               ["s_add_u32 s22, s22, 4096", "s_add_u32 s26, s26, 1", "s_cmp_eq_u32 s26, s48",
                "s_cselect_b32 s60, s62, 0", "s_cselect_b32 s26, 0, s26", "s_sub_u32 s22, s22, s60"]

    def body2(n):
        q = VQ()
        sp = lambda u: n == 10 and u % 5 == 2
        for i in range(NB - 1):
            for l in aloads(i, sp(i)): A(l)
            q.add(f"A{i}", 8 if sp(i) else 4)
        def wread(u, j):
            sl = (u + 2) % 4
            return f"ds_read_b128 {R(WB(j))}, v{VA + sl//2} offset:{(sl % 2) * 40960 + j * 1024}"
        for j in range(5): A(wread(0, j))
        for i in range(n):
            slot = (i + 2) % 4
            tags = [t for t in (f"A{i}", f"W{i+1}") if t in q.q]
            last = max(tags, key=lambda t: max(k for k, x in enumerate(q.q) if x == t))
            A(f"s_waitcnt vmcnt({q.wait_for(last)}) lgkmcnt(1)")
            al = []
            if i + NB - 1 < n:
                al = aloads((i + NB - 1) % NB, sp(i + NB - 1))
                al = [al[0:1], al[1:2], al[2:3], al[3:]]
                q.add(f"A{i+NB-1}", 8 if sp(i + NB - 1) else 4)
            wd = []
            if i + 4 < n:
                w = [l.replace(f'v{VLANE16},', f'v{VL16},') for l in wdma(slot)]
                wd = [w[0:2], w[2:3], w[3:4], w[4:5], w[5:]]
                q.add(f"W{i+4}", 5)
            for j in range(5):
                if j == 4:
                    A(f"s_waitcnt lgkmcnt({4 if i + 1 < n else 0})")
                for ii in range(4):
                    acc = R((ii * 5 + j) * 4)
                    A(f"v_mfma_f32_16x16x32_bf16 {acc}, {R(WB(j))}, {R(AB(i % NB, ii))}, {acc if i else 0}")
                    if j < 4 and ii == 1 and al:
                        for l in al[j]: A(l)
                    if j == 4 and wd:
                        for l in wd[ii]: A(l)
                if i + 1 < n:
                    A(wread(i + 1, j))
            if wd:
                for l in wd[4]: A(l)

    A(f"""
    s_cmp_lt_u32 s50, 2
    s_cbranch_scc0 {name}_b9
    """)
    body2(10)
    A(f"s_branch {name}_epi2")
    A(f"{name}_b9:")
    body2(9)
    A(f"{name}_epi2:")
    if stamp:
        A("s_memrealtime s[90:91]")
    for i in range(4):
        for j in range(5):
            A(f"ds_write_b128 v{VA + i//2}, {R((i*5+j)*4)} offset:{(i%2)*40960 + j*1024}")
    A(f"""
    s_lshr_b32 s60, s50, 1
    s_mul_i32 s60, s60, 40960
    s_and_b32 s61, s50, 1
    s_mul_i32 s62, s61, 3072
    s_add_u32 s60, s60, s62
    v_add_u32 v{VA}, s60, v{VL16}
    v_lshrrev_b32 v{VL}, 4, v{VL16}
    s_waitcnt lgkmcnt(0)
    s_barrier
    """)
    for jj in range(3):
        if jj == 2:
            A(f"s_cmp_eq_u32 s61, 1\ns_cbranch_scc1 {name}_rd_done")
        for w in range(8):
            b = (jj * 8 + w) * 4
            A(f"ds_read_b128 v[{b}:{b+3}], v{VA} offset:{jj*1024 + w*5120}")
    A(f"{name}_rd_done:")
    V9, V11, VO = 151, 154, 156
    A(f"""
    s_waitcnt vmcnt(0)
    v_sub_f32 v{V9}, 1.0, v{V7}
    v_cvt_pk_bf16_f32 v{V9}, v{V9}, v{V9}
    v_lshlrev_b32 v{V9}, 16, v{V9}
    s_lshl_b32 s60, s20, 6
    s_lshr_b32 s62, s50, 1
    s_lshl_b32 s62, s62, 4
    s_add_u32 s60, s60, s62
    v_and_b32 v{V11}, 15, v{VL}
    v_add_u32 v{V11}, s60, v{V11}
    v_lshrrev_b32 v{VO}, 4, v{VL}
    v_mul_u32_u24 v{V11}, 1280, v{V11}
    v_lshl_add_u32 v{V11}, v{VO}, 3, v{V11}
    s_mul_i32 s60, s21, 160
    s_mul_i32 s62, s61, 96
    s_add_u32 s60, s60, s62
    s_mov_b32 s62, 0xffff0000
    s_waitcnt lgkmcnt(0)
    """)
    for jj in range(3):
        if jj == 2:
            A(f"s_cmp_eq_u32 s61, 1\ns_cbranch_scc1 {name}_fin")
        base = jj * 32
        a0, a1, b1 = base, base + 4, base + 8
        pk = lambda op, d, x, y: A(f"{op} v[{d}:{d+1}], v[{x}:{x+1}], v[{y}:{y+1}]")
        for h in (0, 2):
            pk("v_pk_add_f32", a0 + h, a0 + h, a1 + h)
            pk("v_pk_add_f32", b1 + h, b1 + h, b1 + 4 + h)
            pk("v_pk_add_f32", b1 + 8 + h, b1 + 8 + h, b1 + 12 + h)
            pk("v_pk_add_f32", b1 + 16 + h, b1 + 16 + h, b1 + 20 + h)
        for h in (0, 2):
            pk("v_pk_add_f32", b1 + h, b1 + h, b1 + 8 + h)
        for h in (0, 2):
            pk("v_pk_add_f32", b1 + h, b1 + h, b1 + 16 + h)
        for p in range(2):
            ra, rb = a0 + 2 * p, b1 + 2 * p
            t0, t1 = b1 + 8 + 2 * p, b1 + 12 + 2 * p
            A(f"""
            v_cvt_pk_bf16_f32 v{t0}, v{ra}, v{ra+1}
            v_cvt_pk_bf16_f32 v{t1}, v{rb}, v{rb+1}
            v_lshlrev_b32 v{ra}, 16, v{t0}
            v_and_b32 v{ra+1}, s62, v{t0}
            v_lshlrev_b32 v{rb}, 16, v{t1}
            v_and_b32 v{rb+1}, s62, v{t1}
            v_mul_f32 v{ra}, v{V7}, v{ra}
            v_mul_f32 v{ra+1}, v{V7}, v{ra+1}
            v_fmac_f32 v{ra}, v{V9}, v{rb}
            v_fmac_f32 v{ra+1}, v{V9}, v{rb+1}
            v_cvt_pk_bf16_f32 v{VO+2*jj+p}, v{ra}, v{ra+1}
            """)
        A(f"buffer_store_dwordx2 v[{VO+2*jj}:{VO+2*jj+1}], v{V11}, s[36:39], s60 offen offset:{jj*32}")
    A(f"{name}_fin:")
    if stamp:
        A(f"""
        s_waitcnt vmcnt(0)
        s_memrealtime s[94:95]
        s_waitcnt lgkmcnt(0)
        v_mov_b32 v16, s80
        v_mov_b32 v17, s94
        v_mov_b32 v18, s82
        v_mov_b32 v19, s84
        v_mov_b32 v20, s86
        v_mov_b32 v21, s88
        v_mov_b32 v22, s90
        v_mov_b32 v23, 0
        s_lshl_b32 s60, s2, 3
        s_add_u32 s60, s60, s50
        s_lshl_b32 s60, s60, 5
        s_add_u32 s60, s60, {WS_STAMP}
        v_mov_b32 v14, 0
        buffer_store_dwordx4 v[16:19], v14, s[28:31], s60 offen
        buffer_store_dwordx4 v[20:23], v14, s[28:31], s60 offen offset:16
        """)
    A(f"{name}_exit:")
    A("s_endpgm")


def desc(name):
    return f"""
.section .rodata,"a"
.p2align 6
.amdhsa_kernel {name}
  .amdhsa_next_free_vgpr 168
  .amdhsa_next_free_sgpr 102
  .amdhsa_accum_offset 168
  .amdhsa_group_segment_fixed_size 0
  .amdhsa_kernarg_size 88
  .amdhsa_user_sgpr_count 2
  .amdhsa_user_sgpr_kernarg_segment_ptr 1
  .amdhsa_system_sgpr_workgroup_id_x 1
.end_amdhsa_kernel
"""


if __name__ == "__main__":
    import sys
    NAME = "gated_mix__sliding_local_dilated__dense_activation_mish__prompt"
    out = f"cdna_kernels/{NAME}.s"
    for a in sys.argv[1:]:
        if a.endswith(".s"): out = a
    A = Asm()
    A.raw(f"; @launch grid=(256,1,1) block=({NWAVE*64},1,1) lds={P1_LDS}")
    A.raw('.amdgcn_target "amdgcn-amd-amdhsa--gfx950"')
    if "norot" in sys.argv: ROT = 0
    for a in sys.argv:
        if a.startswith("common="): COMMON = int(a[7:])
    if "notouch" in sys.argv: WTOUCH = 0
    gen_fused(A, NAME + "_kernel", stamp="stamp" in sys.argv, prefetch="pf" in sys.argv)
    open(out, "w").write(A.finish() + desc(NAME + "_kernel"))
    print("wrote", out)
```
